```python
import torch

def _softmax(x, axis=-1):
    return torch.softmax(x, dim=axis)

def _gelu(x):
    return torch.nn.functional.gelu(x, approximate='tanh')

def _silu(x):
    return torch.nn.functional.silu(x)

def _sigmoid(x):
    return torch.sigmoid(x)

def _layernorm(x, axis=-1, eps=1e-05):
    m = x.mean(dim=axis, keepdim=True)
    v = x.var(dim=axis, keepdim=True, unbiased=False)
    return (x - m) / torch.sqrt(v + eps)

def _scatter_add(tgt, idx, src, axis=0):
    return tgt.clone().index_add_(axis, idx, src)

def _segment_sum(src, seg, n):
    out = torch.zeros((n,) + src.shape[1:], dtype=src.dtype)
    return out.index_add_(0, seg, src)

def _pad(x, pw):
    flat = tuple((v for pair in reversed(pw) for v in pair))
    return torch.nn.functional.pad(x, flat)
kernel_name = 'adaLN_cond__mha_block__glu_gated_glu__prompt'

def setup_inputs():

    _w = lambda a: (lambda t: t.to(torch.bfloat16) if t.is_floating_point() else t)(torch.as_tensor(a))

    def _A_setup():
        B, S, D, H = (1, 2048, 640, 32)
        return {'x': _w((lambda *s: torch.randn(*s, dtype=torch.bfloat16) * 0.05)(B, S, D)), 'wqkv': _w((lambda *s: torch.randn(*s, dtype=torch.bfloat16) * 0.05)(D, 3 * D)), 'wo': _w((lambda *s: torch.randn(*s, dtype=torch.bfloat16) * 0.05)(D, D))}
    _A_in = _A_setup()

    def _B_setup():
        B, S, D, F = (1, 2048, 640, 1536)
        return {'x': _w((lambda *s: torch.randn(*s, dtype=torch.bfloat16) * 0.05)(B, S, D)), 'w_gate': _w((lambda *s: torch.randn(*s, dtype=torch.bfloat16) * 0.05)(D, F)), 'w_up': _w((lambda *s: torch.randn(*s, dtype=torch.bfloat16) * 0.05)(D, F)), 'w_down': _w((lambda *s: torch.randn(*s, dtype=torch.bfloat16) * 0.05)(F, D))}
    _B_in = _B_setup()
    return {'A_x': _A_in['x'], 'A_wqkv': _A_in['wqkv'], 'A_wo': _A_in['wo'], 'B_x': _B_in['x'], 'B_w_gate': _B_in['w_gate'], 'B_w_up': _B_in['w_up'], 'B_w_down': _B_in['w_down'], 'c': _w((lambda *s: torch.randn(*s, dtype=torch.bfloat16) * 0.1)(1, 640) * 8.0), 'w_mod': _w((lambda *s: torch.randn(*s, dtype=torch.bfloat16) * 0.1)(640, 6 * 640) * 640 ** (-0.5) * 8.0)}

def reference(A_x, A_wqkv, A_wo, B_x, B_w_gate, B_w_up, B_w_down, c, w_mod):

    def _A_ref(x, wqkv, wo):
        B, S, D = x.shape
        H = 32
        Dh = D // H
        qkv = (lambda x, *d: x.permute(*d))((x @ wqkv).reshape(B, S, 3, H, Dh), 2, 0, 3, 1, 4)
        q, k, v = (qkv[0], qkv[1], qkv[2])
        scores = torch.einsum('bhqd,bhkd->bhqk', q, k) * Dh ** (-0.5)
        p = _softmax(scores, axis=-1)
        o = torch.einsum('bhqk,bhkd->bhqd', p, v)
        return (lambda x, *d: x.permute(*d))(o, 0, 2, 1, 3).reshape(B, S, D) @ wo

    def _B_ref(x, w_gate, w_up, w_down):
        g = torch.einsum('bsd,df->bsf', x, w_gate)
        u = torch.einsum('bsd,df->bsf', x, w_up)
        h = _sigmoid(g) * u
        return torch.einsum('bsf,fd->bsd', h, w_down)
    x = A_x
    mod = (_silu(c) @ w_mod).reshape(c.shape[0], 6, 1, -1)
    sa, ca, ga, sb, cb, gb = (mod[:, 0].clone(), mod[:, 1].clone(), mod[:, 2].clone(), mod[:, 3].clone(), mod[:, 4].clone(), mod[:, 5].clone())
    h = _layernorm(x, axis=-1) * (1 + ca) + sa
    x = x + ga * _A_ref(h, A_wqkv, A_wo)
    h = _layernorm(x, axis=-1) * (1 + cb) + sb
    x = x + gb * _B_ref(h, B_w_gate, B_w_up, B_w_down)
    return x
```

```python
import re

class Asm:
    def __init__(self):
        self.lines = []
        self._uid = 0
    def __call__(self, text):
        for ln in text.strip("\n").split("\n"):
            ln = ln.strip()
            if ln:
                self.lines.append(ln)
    def label(self, name):
        self.lines.append(name + ":")
    def uid(self, base):
        self._uid += 1
        return f"{base}_{self._uid}"
    def nop(self, n):
        while n > 0:
            k = min(n, 16)
            self.lines.append(f"s_nop {k-1}")
            n -= k
    def text(self):
        out = []
        for ln in self.lines:
            if ln.endswith(":") or ln.startswith("."):
                out.append(ln)
            else:
                out.append("    " + ln)
        return "\n".join(out) + "\n"

def vr(a, n=1):
    return f"v{a}" if n == 1 else f"v[{a}:{a+n-1}]"
def sr(a, n=1):
    return f"s{a}" if n == 1 else f"s[{a}:{a+n-1}]"

_REG = re.compile(r"^(-?)(?:abs\()?([vsa])(?:(\d+)|\[(\d+):(\d+)\])\)?$")
def regs(op):
    op = op.strip()
    if op == "vcc": return {("s", "vcc")}
    if op in ("exec", "exec_lo", "exec_hi"): return {("s", "exec")}
    if op == "m0": return {("s", "m0")}
    m = _REG.match(op)
    if not m: return set()
    k = m.group(2)
    if m.group(3) is not None: return {(k, int(m.group(3)))}
    return {(k, i) for i in range(int(m.group(4)), int(m.group(5)) + 1)}

TRANS = ("v_exp_", "v_log_", "v_rcp_", "v_rsq_", "v_sqrt_", "v_sin_", "v_cos_")
class Ins:
    __slots__ = ("text", "mn", "ops", "wr", "rd", "kind", "passes", "nops", "target", "mods")
    def __init__(self, text):
        self.text = text
        t = text.split(";")[0].strip()
        p = t.split(None, 1)
        self.mn = p[0]
        rest = p[1] if len(p) > 1 else ""
        toks = [x.strip() for x in rest.split(",")] if rest else []
        mods = ""
        if toks:
            last = toks[-1].split(None, 1)
            toks[-1] = last[0]
            mods = last[1] if len(last) > 1 else ""
        self.ops, self.mods = toks, mods
        self.wr, self.rd = set(), set()
        self.kind, self.passes, self.nops, self.target = "other", 0, 1, None
        mn = self.mn
        R = [regs(o) for o in toks]
        if mn == "s_nop":
            self.nops = int(toks[0]) + 1; self.kind = "nop"
        elif mn.startswith("v_mfma"):
            self.kind = "mfma"; self.wr = R[0]; self.rd = R[1] | R[2] | R[3]
            self.passes = 8 if "32x32" in mn else 4
        elif mn.startswith("v_cmp"):
            self.kind = "valu"; self.wr = R[0]; self.rd = set().union(*R[1:])
            if mn.startswith("v_cmpx"): self.wr = self.wr | {("s", "exec")}
        elif mn.startswith("v_permlane") and "swap" in mn:
            self.kind = "permlane"; self.wr = R[0] | R[1]; self.rd = R[0] | R[1]
        elif mn.startswith("v_readfirstlane") or mn.startswith("v_readlane"):
            self.kind = "readlane"; self.wr = R[0]; self.rd = set().union(*R[1:])
        elif mn.startswith("v_"):
            self.kind = "valu"
            nd = 2 if ("_co_" in mn or mn.startswith("v_div_scale")) else 1
            self.wr = set().union(*R[:nd]); self.rd = set().union(*R[nd:]) if len(R) > nd else set()
            if mn.startswith(("v_fmac", "v_mac", "v_dot2c", "v_dot4c", "v_pk_fmac")) or "UNUSED_PRESERVE" in mods or "d16" in mn:
                self.rd |= R[0]
            if mn.startswith("v_cndmask") and len(toks) == 3: self.rd |= {("s", "vcc")}
            if mn.startswith(TRANS): self.kind = "trans"
        elif mn.startswith("ds_"):
            self.kind = "ds"
            if mn.startswith(("ds_read", "ds_bpermute", "ds_permute", "ds_swizzle")):
                self.wr = R[0]; self.rd = set().union(*R[1:])
            else:
                self.rd = set().union(*R)
        elif mn.startswith(("buffer_", "global_")):
            self.kind = "vmem"
            is_lds = " lds" in (" " + mods)
            if mn.startswith(("buffer_wbl2", "buffer_inv")):
                pass
            elif "load" in mn and not is_lds:
                self.wr = R[0]; self.rd = set().union(*R[1:])
                if "d16" in mn: self.rd |= R[0]
            elif "atomic" in mn:
                self.rd = set().union(*R)
                if "sc0" in mods: self.wr = R[0]
            else:
                self.rd = set().union(*R)
                if is_lds: self.rd |= {("s", "m0")}
        elif mn.startswith("s_cbranch") or mn == "s_branch":
            self.kind = "branch"; self.target = toks[0]
        elif mn in ("s_endpgm",):
            self.kind = "end"
        elif mn.startswith(("s_waitcnt", "s_barrier", "s_sleep", "s_setprio")):
            self.kind = "sync"
        elif mn.startswith("s_cmp") or mn.startswith("s_bitcmp"):
            self.kind = "salu"; self.rd = set().union(*R)
        elif mn.startswith("s_"):
            self.kind = "smem" if mn.startswith(("s_load", "s_memtime", "s_memrealtime", "s_buffer_load")) else "salu"
            self.wr = R[0] if R else set(); self.rd = set().union(*R[1:]) if len(R) > 1 else set()
            if "saveexec" in mn: self.wr = self.wr | {("s", "exec")}
        self.mods = mods

def _isv(s): return {r for r in s if r[0] in ("v", "a")}
def _iss(s): return {r for r in s if r[0] == "s"}
VALU = ("valu", "trans", "permlane", "readlane")

def required(p, c):
    n = 0
    pw_v, pw_s = _isv(p.wr), _iss(p.wr)
    if p.kind in VALU:
        if c.kind == "mfma" and pw_v & c.rd: n = max(n, 2)
        if c.kind == "permlane" and pw_v & c.rd: n = max(n, 2)
        if c.kind == "readlane" and pw_v & c.rd: n = max(n, 1)
        if c.kind in VALU and "dpp" in c.text.lower().replace("_dpp", " dpp") and pw_v & c.rd: n = max(n, 2)
        if c.kind in VALU and any(k in c.mods for k in ("row_", "quad_perm", "wave_")) and pw_v & c.rd: n = max(n, 2)
        if c.kind == "vmem" and pw_s & c.rd: n = max(n, 5)
        if c.kind in VALU and pw_s & c.rd: n = max(n, 2)
        if c.kind == "readlane" and pw_s & c.rd: n = max(n, 4)
        if c.kind in ("salu", "branch") and pw_s & c.rd: n = max(n, 1)
        if ("s", "exec") in p.wr and c.kind == "mfma": n = max(n, 4)
        if ("s", "exec") in p.wr and c.kind in ("permlane", "readlane"): n = max(n, 4)
    if p.kind == "trans" and c.kind in VALU + ("mfma",) and c.kind != "trans" and pw_v & c.rd: n = max(n, 1)
    if p.kind in VALU and ("sdwa" in p.mn or "op_sel" in p.mods) and "pk_" not in p.mn and c.kind in VALU and pw_v & (c.rd | c.wr): n = max(n, 1)
    if p.kind == "mfma":
        far = 12 if p.passes == 8 else 8
        if c.kind == "mfma":
            srcc = regs(c.ops[3]); ab = regs(c.ops[1]) | regs(c.ops[2])
            if p.wr & ab: n = max(n, far)
            if p.wr & srcc:
                if not (srcc == p.wr and c.passes == p.passes): n = max(n, 10 if p.passes == 8 else 6)
            if p.wr & c.wr and not (c.wr == p.wr and srcc == p.wr) and not (p.wr & srcc):
                n = max(n, 10 if p.passes == 8 else 6)
        elif c.kind in VALU + ("ds", "vmem"):
            if p.wr & (c.rd | c.wr): n = max(n, far)
        srcc = regs(p.ops[3])
        if c.kind in VALU and srcc & _isv(c.wr): n = max(n, 7 if p.passes == 8 else 3)
        if c.kind in ("ds", "vmem") and srcc & _isv(c.wr): n = max(n, 7 if p.passes == 8 else 3)
    if p.kind == "vmem" and "store" in p.mn and ("x4" in p.mn or "x3" in p.mn):
        data = regs(p.ops[0])
        if c.kind in VALU + ("mfma",) and data & _isv(c.wr): n = max(n, 2)
        elif c.kind in ("ds", "vmem") and data & _isv(c.wr): n = max(n, 1)
    if p.kind == "salu" and ("s", "m0") in p.wr:
        if c.kind == "vmem" and ("s", "m0") in c.rd: n = max(n, 1)
    if p.kind == "salu" and ("s", "exec") in p.wr and False: pass
    return n

def check_hazards(lines, name=""):
    ins, labels = [], {}
    for ln in lines:
        if ln.endswith(":"): labels[ln[:-1]] = len(ins)
        elif ln.startswith(".") or ln.startswith(";"): continue
        else: ins.append(Ins(ln))
    def succ(i):
        x = ins[i]
        if x.kind == "end": return []
        if x.kind == "branch":
            t = [labels[x.target]] if x.target in labels else []
            if x.mn == "s_branch": return t
            return t + ([i + 1] if i + 1 < len(ins) else [])
        return [i + 1] if i + 1 < len(ins) else []
    problems = []
    MAXD = 12
    for i, p in enumerate(ins):
        if p.kind not in VALU + ("mfma", "vmem", "salu"): continue
        if not p.wr and p.kind != "vmem" and p.kind != "mfma": continue
        stack = [(j, 0) for j in succ(i)]
        seen = {}
        while stack:
            j, d = stack.pop()
            if d >= MAXD or seen.get(j, 99) <= d: continue
            seen[j] = d
            c = ins[j]
            need = required(p, c)
            if need > d:
                problems.append(f"{name}: need {need} have {d}: [{p.text}] -> [{c.text}]")
            for k in succ(j): stack.append((k, d + c.nops))
    return problems

def kernel_text(name, asm):
    return f".globl {name}\n.p2align 8\n.type {name},@function\n{name}:\n" + asm.text()

def descriptor(name, nvgpr=256, nsgpr=102):
    return f""".p2align 6
.amdhsa_kernel {name}
  .amdhsa_next_free_vgpr {nvgpr}
  .amdhsa_next_free_sgpr {nsgpr}
  .amdhsa_accum_offset {((nvgpr + 3)//4)*4}
  .amdhsa_group_segment_fixed_size 0
  .amdhsa_kernarg_size 96
  .amdhsa_user_sgpr_count 2
  .amdhsa_user_sgpr_kernarg_segment_ptr 1
  .amdhsa_system_sgpr_workgroup_id_x 1
  .amdhsa_float_denorm_mode_32 3
.end_amdhsa_kernel
"""
```

```python
from asmlib import *
from layout import *

P_X, P_WQKV, P_WO, P_BX, P_WG, P_WU, P_WD, P_C = 16, 18, 20, 22, 24, 26, 28, 30
P_WMOD, P_OUT, P_DBG, P_WS = 32, 34, 36, 38
S_WAVE = 40
LOG2E = 1.4426950408889634

def f32bits(x):
    import struct
    return struct.unpack("<I", struct.pack("<f", x))[0]
def fl(x): return hex(f32bits(x))

def prologue(a, nwg, end_label, wg=2):
    a(f"s_cmp_ge_u32 s{wg}, {nwg}")
    a(f"s_cbranch_scc1 {end_label}")
    a("s_load_dwordx16 s[16:31], s[0:1], 0")
    a("s_load_dwordx8 s[32:39], s[0:1], 64")
    a("v_lshrrev_b32 v1, 6, v0")
    a("v_and_b32 v0, 63, v0")
    a(f"v_readfirstlane_b32 s{S_WAVE}, v1")
    a("s_waitcnt lgkmcnt(0)")

def srd(a, d, ptr, off, size):
    if off:
        a(f"s_add_u32 s{d}, s{ptr}, {hex(off)}")
        a(f"s_addc_u32 s{d+1}, s{ptr+1}, 0")
    else:
        a(f"s_mov_b32 s{d}, s{ptr}")
        a(f"s_mov_b32 s{d+1}, s{ptr+1}")
    a(f"s_mov_b32 s{d+2}, {hex(size)}")
    a(f"s_mov_b32 s{d+3}, 0x20000")

def divmod_const(a, q, r, x, c, tmp=None):
    m = -(-(1 << 32) // c)
    a(f"s_mul_hi_u32 s{q}, s{x}, {hex(m)}")
    if r is not None:
        t = r if r != x else tmp
        a(f"s_mul_i32 s{t}, s{q}, {c}")
        a(f"s_sub_u32 s{r}, s{x}, s{t}")

def gather_frag_loads(a, dst8, voff, srd_, sbase, stmp, pitch, korder):
    for i in range(8):
        krel = i if korder == "nat" else 8*(i//4) + (i % 4)
        if krel == 0:
            a(f"buffer_load_ushort v{dst8}, v{voff}, s[{srd_}:{srd_+3}], s{sbase} offen")
        else:
            a(f"s_add_u32 s{stmp}, s{sbase}, {krel*pitch}")
            a(f"buffer_load_ushort v{dst8+i}, v{voff}, s[{srd_}:{srd_+3}], s{stmp} offen")

def pack_frag(a, dst4, src8):
    for j in range(4):
        a(f"v_lshl_or_b32 v{dst4+j}, v{src8+2*j+1}, 16, v{src8+2*j}")

def exec_lo32(a):
    a("s_mov_b32 exec_lo, -1")
    a("s_mov_b32 exec_hi, 0")
def exec_all(a):
    a("s_mov_b64 exec, -1")
```

```python
from common import *

class VmQ:
    def __init__(self, a): self.a, self.q = a, []
    def issue(self, tag, n=1): self.q += [tag]*n
    def wait(self, tag):
        idx = [i for i, t in enumerate(self.q) if t == tag]
        if not idx: return
        n = len(self.q) - 1 - idx[-1]
        assert n <= 63, n
        self.a(f"s_waitcnt vmcnt({n})")
        self.q = self.q[idx[-1]+1:]

def compute_loop(a, KS, CK, NU, P, acc, sh_regs, pv_regs, sh_addr, pv_addr, swap, nbar_extra_first=False):
    M = KS*NU
    NSH = len(sh_regs)
    q = []
    def rd(tag, dst, addr):
        v, off = addr
        assert 0 <= off < 65536, off
        a(f"ds_read_b128 v[{dst}:{dst+3}], v{v} offset:{off}")
        q.append(tag)
    def issue_for(m):
        s, t = divmod(m, NU)
        if t == 0: rd(("sh", s), sh_regs[s % NSH], sh_addr(s))
        rd(("pv", m), pv_regs[m % P], pv_addr(s, t))
    def wait_for(m):
        s, t = divmod(m, NU)
        need = [i for i, x in enumerate(q) if x == ("pv", m) or x == ("sh", s)]
        if need:
            n = len(q) - 1 - max(need)
            assert n <= 15
            a(f"s_waitcnt lgkmcnt({n})")
            del q[:max(need)+1]
    chunk = lambda m: (m // NU) // CK
    a("s_barrier")
    nxt = 0
    while nxt < min(P, M):
        issue_for(nxt); nxt += 1
    for m in range(M):
        s, t = divmod(m, NU)
        wait_for(m)
        A, B = (pv_regs[m % P], sh_regs[s % NSH])
        if swap: A, B = B, A
        c = "0" if s == 0 else f"v[{acc(t)}:{acc(t)+15}]"
        a(f"v_mfma_f32_32x32x16_bf16 v[{acc(t)}:{acc(t)+15}], v[{A}:{A+3}], v[{B}:{B+3}], {c}")
        while nxt < M and nxt <= m + P:
            if chunk(nxt) != chunk(nxt-1) and (nxt // NU) % CK == 0 and nxt % NU == 0:
                if nxt == m + P and m + 1 < M and P > 1:
                    break
                a("s_waitcnt lgkmcnt(0)"); q.clear()
                a("s_barrier")
            issue_for(nxt); nxt += 1

def lane_consts(a):
    a("v_lshlrev_b32 v1, 4, v0")
    a("v_and_b32 v2, 31, v0")
    a("v_lshrrev_b32 v3, 5, v0")

def mod_vec_loads(a, vq, dst, voff, srd_, vec, tag):
    for qq in range(4):
        a(f"s_mov_b32 s90, {qq*15360 + vec*2560}")
        a(f"buffer_load_dwordx4 v[{dst+4*qq}:{dst+4*qq+3}], v{voff}, s[{srd_}:{srd_+3}], s90 offen")
        vq.issue(tag)
def mod_vec_sum(a, dst, src, outn=4):
    for j in range(4):
        a(f"v_add_f32 v{src+j}, v{src+j}, v{src+4+j}")
        a(f"v_add_f32 v{src+8+j}, v{src+8+j}, v{src+12+j}")
    for j in range(4):
        a(f"v_add_f32 v{src+j}, v{src+j}, v{src+8+j}")
    round_bf16_4(a, dst, src)
def round_bf16_4(a, dst, src):
    a(f"v_cvt_pk_bf16_f32 v{src}, v{src}, v{src+1}")
    a(f"v_cvt_pk_bf16_f32 v{src+2}, v{src+2}, v{src+3}")
    a(f"v_and_b32 v{dst+1}, 0xffff0000, v{src}")
    a(f"v_and_b32 v{dst+3}, 0xffff0000, v{src+2}")
    a(f"v_lshlrev_b32 v{dst}, 16, v{src}")
    a(f"v_lshlrev_b32 v{dst+2}, 16, v{src+2}")

SRD_A, SRD_B, SRD_M, SRD_E0, SRD_E1, SRD_E2 = 44, 48, 52, 56, 60, 64
S_RB, S_CG, S_J = 68, 69, 70

def modulated_loader(a, end, *, NC, nA, a_chunk_bytes, RA, lds_A, lds_B, lds_tab, vec_shift, vec_scale,
                     korder, ln2, b_tb_stride, qscale_sgpr=None, lds_stat=None):
    vq = VmQ(a)
    CK = 4
    a(f"s_sub_u32 s{S_J}, s{S_WAVE}, 4")
    lane_consts(a)
    a(f"s_lshl_b32 s71, s{S_J}, 6")
    a("v_add_u32 v4, s71, v0")
    a("v_lshlrev_b32 v5, 4, v4")
    a("v_min_u32 v5, 0x9f0, v5")
    mod_vec_loads(a, vq, 64, 5, SRD_M, vec_shift, "T")
    mod_vec_loads(a, vq, 80, 5, SRD_M, vec_scale, "T")
    if ln2:
        a(f"s_lshl_b32 s72, s{S_RB}, 2")
        a(f"s_add_u32 s72, s72, s{S_J}")
        a("s_lshl_b32 s72, s72, 8")
        a("v_lshlrev_b32 v6, 3, v2")
        a("v_add_u32 v6, s72, v6")
        for c in range(8):
            a(f"s_mov_b32 s90, {c*2048*8}")
            a(f"buffer_load_dwordx2 v[{96+2*c}:{97+2*c}], v6, s[{SRD_E0}:{SRD_E0+3}], s90 offen")
            vq.issue("T")
    a(f"s_lshl_b32 s72, s{S_J}, 10")
    a("v_add_u32 v7, s72, v1")
    a(f"s_mul_i32 s73, s{S_CG}, {NC*a_chunk_bytes}")
    a(f"s_lshl_b32 s74, s{S_RB}, 2")
    a(f"s_mul_i32 s74, s74, {b_tb_stride}")
    RAW = 128
    def issue(c):
        for tb in range(4):
            a(f"s_add_u32 s75, s74, {tb*b_tb_stride + c*CK*1024}")
            r = RAW + (c % 3)*16 + tb*4
            a(f"buffer_load_dwordx4 v[{r}:{r+3}], v7, s[{SRD_B}:{SRD_B+3}], s75 offen")
            vq.issue(("I", c))
        for n in range(nA):
            a(f"s_add_u32 m0, s72, {lds_A + (c % RA)*a_chunk_bytes + n*4096}")
            a(f"s_add_u32 s75, s73, {c*a_chunk_bytes + n*4096}")
            a(f"buffer_load_dwordx4 v7, s[{SRD_A}:{SRD_A+3}], s75 offen lds")
            vq.issue(("I", c))
    for c in range(min(RA-1, NC)): issue(c)
    vq.wait("T")
    mod_vec_sum(a, 8, 64)
    for j in range(4):
        a(f"v_add_f32 v{80+j}, v{80+j}, v{84+j}")
        a(f"v_add_f32 v{88+j}, v{88+j}, v{92+j}")
    for j in range(4):
        a(f"v_add_f32 v{80+j}, v{80+j}, v{88+j}")
    round_bf16_4(a, 12, 80)
    for j in range(4):
        a(f"v_add_f32 v{80+j}, 1.0, v{12+j}")
    round_bf16_4(a, 12, 80)
    if qscale_sgpr is not None:
        for j in range(8):
            a(f"v_mul_f32 v{8+j}, s{qscale_sgpr}, v{8+j}")
    a(f"v_add_u32 v6, {lds_tab}, v5")
    a("ds_write_b128 v6, v[12:15]")
    a("ds_write_b128 v6, v[8:11] offset:2560")
    if ln2:
        for c in range(1, 8):
            a(f"v_add_f32 v96, v96, v{96+2*c}")
            a(f"v_add_f32 v97, v97, v{97+2*c}")
        a(f"v_mul_f32 v96, {fl(1.0/640)}, v96")
        a(f"v_mul_f32 v97, {fl(1.0/640)}, v97")
        a("v_fma_f32 v97, -v96, v96, v97")
        a("v_max_f32 v97, 0, v97")
        a(f"v_add_f32 v97, {fl(1e-5)}, v97")
        a("v_rsq_f32 v98, v97")
        a("s_nop 0")
        a("v_mul_f32 v99, v96, v98")
        a("v_sub_f32 v99, 0, v99")
        a(f"s_lshl_b32 s75, s{S_J}, 8")
        a(f"s_add_u32 s75, s75, {lds_stat}")
        a("v_lshl_add_u32 v6, v2, 3, s75")
        a("ds_write_b64 v6, v[98:99]")
    a("s_waitcnt lgkmcnt(0)")
    a("s_barrier")
    if ln2:
        a(f"v_lshlrev_b32 v6, 3, v2")
        a(f"v_add_u32 v6, {lds_stat}, v6")
        for tb in range(4):
            a(f"ds_read_b64 v[{100+2*tb}:{101+2*tb}], v6 offset:{256*tb}")
    hshift, second = (5, 16) if korder == "nat" else (4, 32)
    a(f"v_lshlrev_b32 v9, {hshift}, v3")
    a(f"s_lshl_b32 s75, s{S_J}, 6")
    a(f"s_add_u32 s75, s75, {lds_tab}")
    a("v_add_u32 v9, s75, v9")
    a(f"s_add_u32 s75, s72, {lds_B}")
    a("v_add_u32 v10, s75, v1")
    T, G, SH = 16, 32, 40
    for c in range(NC):
        toff = c*CK*64
        a(f"ds_read_b128 v[{G}:{G+3}], v9 offset:{toff}")
        a(f"ds_read_b128 v[{G+4}:{G+7}], v9 offset:{toff+second}")
        a(f"ds_read_b128 v[{SH}:{SH+3}], v9 offset:{toff+2560}")
        a(f"ds_read_b128 v[{SH+4}:{SH+7}], v9 offset:{toff+2560+second}")
        vq.wait(("I", c))
        a("s_waitcnt lgkmcnt(0)")
        for tb in range(4):
            r = RAW + (c % 3)*16 + tb*4
            t = T + 8*(tb % 2)
            o = 48 + 4*(tb % 2)
            for j in range(4):
                a(f"v_lshlrev_b32 v{t+2*j}, 16, v{r+j}")
                a(f"v_and_b32 v{t+2*j+1}, 0xffff0000, v{r+j}")
            if ln2:
                for j in range(4):
                    a(f"v_pk_fma_f32 v[{t+2*j}:{t+2*j+1}], v[{t+2*j}:{t+2*j+1}], v[{100+2*tb}:{101+2*tb}], v[{100+2*tb}:{101+2*tb}] op_sel:[0,0,1] op_sel_hi:[1,0,1]")
            for j in range(4):
                a(f"v_pk_fma_f32 v[{t+2*j}:{t+2*j+1}], v[{t+2*j}:{t+2*j+1}], v[{G+2*j}:{G+2*j+1}], v[{SH+2*j}:{SH+2*j+1}]")
            for j in range(4):
                a(f"v_cvt_pk_bf16_f32 v{o+j}, v{t+2*j}, v{t+2*j+1}")
            a(f"ds_write_b128 v10, v[{o}:{o+3}] offset:{(c % 2)*16384 + tb*4096}")
        a("s_waitcnt lgkmcnt(0)")
        a("s_barrier")
        if c + RA - 1 < NC: issue(c + RA - 1)
    a(f"s_branch {end}")

def plain_loader(a, end, *, NC, R, lds_ring, a_tb_stride_k, KS):
    vq = VmQ(a)
    SLOT = 36864
    a(f"s_sub_u32 s{S_J}, s{S_WAVE}, 4")
    lane_consts(a)
    a(f"s_lshl_b32 s72, s{S_J}, 10")
    a("v_add_u32 v7, s72, v1")
    a(f"s_mul_i32 s73, s{S_CG}, {KS*2560}")
    a(f"s_lshl_b32 s74, s{S_RB}, 1")
    a(f"s_mul_i32 s74, s74, {KS*1024}")
    def issue(c):
        base = lds_ring + (c % R)*SLOT
        for n in range(4):
            tb, hl = divmod(n, 2)
            a(f"s_add_u32 m0, s72, {base + 20480 + n*4096}")
            a(f"s_add_u32 s75, s74, {tb*KS*1024 + c*8192 + hl*4096}")
            a(f"buffer_load_dwordx4 v7, s[{SRD_B}:{SRD_B+3}], s75 offen lds")
            vq.issue(("I", c))
        for n in range(5):
            a(f"s_add_u32 m0, s72, {base + n*4096}")
            a(f"s_add_u32 s75, s73, {c*20480 + n*4096}")
            a(f"buffer_load_dwordx4 v7, s[{SRD_A}:{SRD_A+3}], s75 offen lds")
            vq.issue(("I", c))
    for c in range(min(R-1, NC)): issue(c)
    for c in range(NC):
        vq.wait(("I", c))
        a("s_barrier")
        if c + R - 1 < NC: issue(c + R - 1)
    a(f"s_branch {end}")

def lds_addr_set(a, dst, nseg, extra_v):
    for k in range(nseg):
        if k == 0: a(f"v_mov_b32 v{dst}, v{extra_v}")
        else: a(f"v_add_u32 v{dst+k}, {k*65536}, v{extra_v}")
def seg(dst, off): return (dst + off // 65536, off % 65536)
```

```python
from common import *

def gen_k0(a, end):
    L_ln = a.uid("K0_ln")
    a(f"s_cmp_ge_u32 s{S_WAVE}, 4")
    a(f"s_cbranch_scc1 {L_ln}")
    a(f"s_cmp_ge_u32 s2, 240")
    a(f"s_cbranch_scc1 {end}")
    srd(a, 44, P_WMOD, 0, 640*3840*2)
    srd(a, 48, P_C, 0, 640*2)
    srd(a, 52, P_WS, WS_MODP, SZ_MODP)
    divmod_const(a, 56, 57, 2, 60)
    a("v_lshrrev_b32 v2, 1, v0")
    a("v_and_b32 v3, 1, v0")
    a("s_mul_i32 s58, s56, 160")
    a("v_add_u32 v4, s58, v2")
    a("v_lshlrev_b32 v5, 1, v4")
    a("s_movk_i32 s59, 7680")
    a("v_mul_lo_u32 v6, v4, s59")
    a("s_lshl_b32 s60, s57, 7")
    a(f"s_lshl_b32 s61, s{S_WAVE}, 5")
    a("s_add_u32 s60, s60, s61")
    a("v_lshl_add_u32 v6, v3, 4, v6")
    a("v_add_u32 v6, s60, v6")
    for m in range(5):
        a(f"buffer_load_ushort v{8+m}, v5, s[48:51], 0 offen offset:{64*m}")
    for m in range(5):
        a(f"s_mov_b32 s62, {m*32*7680}")
        a(f"buffer_load_dwordx4 v[{16+4*m}:{19+4*m}], v6, s[44:47], s62 offen")
    a("s_waitcnt vmcnt(5)")
    for m in range(5):
        a(f"v_lshlrev_b32 v{8+m}, 16, v{8+m}")
    for m in range(5):
        a(f"v_mul_f32 v{40+m}, {fl(-LOG2E)}, v{8+m}")
    for m in range(5):
        a(f"v_exp_f32 v{40+m}, v{40+m}")
    a("s_nop 0")
    for m in range(5):
        a(f"v_add_f32 v{40+m}, 1.0, v{40+m}")
    for m in range(5):
        a(f"v_rcp_f32 v{40+m}, v{40+m}")
    a("s_nop 0")
    for m in range(5):
        a(f"v_mul_f32 v{8+m}, v{8+m}, v{40+m}")
    for m in range(5):
        a(f"v_cvt_pk_bf16_f32 v{8+m}, v{8+m}, v{8+m}")
    for m in range(5):
        a(f"v_and_b32 v{8+m}, 0xffff0000, v{8+m}")
    for m in range(5):
        a(f"s_waitcnt vmcnt({4-m})")
        for j in range(4):
            a(f"v_lshlrev_b32 v46, 16, v{16+4*m+j}")
            a(f"v_and_b32 v47, 0xffff0000, v{16+4*m+j}")
            if m == 0:
                a(f"v_mul_f32 v{48+2*j}, v8, v46")
                a(f"v_mul_f32 v{49+2*j}, v8, v47")
            else:
                a(f"v_fmac_f32 v{48+2*j}, v{8+m}, v46")
                a(f"v_fmac_f32 v{49+2*j}, v{8+m}, v47")
    a(f"s_lshl_b32 s62, s{S_WAVE}, 11")
    a("v_lshlrev_b32 v7, 5, v0")
    a("v_add_u32 v7, s62, v7")
    a("ds_write_b128 v7, v[48:51]")
    a("ds_write_b128 v7, v[52:55] offset:16")
    a("v_and_b32 v3, 15, v0")
    a("v_lshlrev_b32 v7, 2, v3")
    a("v_add_u32 v7, s62, v7")
    a("s_waitcnt lgkmcnt(0)")
    for half in range(2):
        for r in range(16):
            a(f"ds_read_b32 v{64+16*half+r}, v7 offset:{(16*half+r)*64}")
    a("s_waitcnt lgkmcnt(0)")
    n = 32
    while n > 1:
        n //= 2
        for r in range(n):
            a(f"v_add_f32 v{64+r}, v{64+r}, v{64+n+r}")
    a("s_mul_i32 s62, s56, 15360")
    a("s_lshl_b32 s63, s60, 1")
    a("s_add_u32 s62, s62, s63")
    a("v_lshlrev_b32 v7, 2, v3")
    a("v_cmp_gt_u32 vcc, 16, v0")
    a("s_nop 0")
    a("s_and_saveexec_b64 s[64:65], vcc")
    a("buffer_store_dword v64, v7, s[52:55], s62 offen")
    a(f"s_branch {end}")

    a.label(L_ln)
    srd(a, 44, P_X, 0, S*D*2)
    srd(a, 48, P_WS, WS_XH, SZ_XH)
    srd(a, 52, P_WQKV, 0, 640*1920*2)
    srd(a, 56, P_WS, WS_WQKV, SZ_WQKV)
    a(f"s_sub_u32 s60, s{S_WAVE}, 4")
    a("s_lshl_b32 s61, s2, 3")
    a("s_lshl_b32 s62, s60, 1")
    a("s_add_u32 s61, s61, s62")
    a("v_lshrrev_b32 v2, 5, v0")
    a("v_and_b32 v3, 31, v0")
    a("v_add_u32 v4, s61, v2")
    a("s_movk_i32 s62, 1280")
    a("v_mul_lo_u32 v5, v4, s62")
    a("v_lshl_add_u32 v5, v3, 3, v5")
    for m in range(5):
        a(f"buffer_load_dwordx2 v[{8+2*m}:{9+2*m}], v5, s[44:47], 0 offen offset:{256*m}")
    a("s_movk_i32 s62, 30720")
    a("v_mul_lo_u32 v6, v2, s62")
    a("v_lshl_add_u32 v6, v3, 1, v6")
    a("s_lshl_b32 s63, s2, 2")
    a("s_add_u32 s63, s63, s60")
    for n in range(3):
        jn = 64 + n
        a(f"s_add_u32 s{jn}, s63, {1024*n}")
        a(f"s_min_u32 s67, s{jn}, 2399")
        a("s_and_b32 s68, s67, 3")
        a("s_lshr_b32 s69, s67, 2")
        divmod_const(a, 70, 71, 69, 40)
        a("s_mul_i32 s71, s71, 61440")
        a("s_lshl_b32 s70, s70, 8")
        a("s_lshl_b32 s68, s68, 6")
        a("s_add_u32 s71, s71, s70")
        a("s_add_u32 s71, s71, s68")
        gather_frag_loads(a, 64+8*n, 6, 52, 71, 72, 3840, "nat")
    a("s_waitcnt vmcnt(24)")
    for m in range(5):
        for j in range(2):
            a(f"v_lshlrev_b32 v{20+4*m+2*j}, 16, v{8+2*m+j}")
            a(f"v_and_b32 v{21+4*m+2*j}, 0xffff0000, v{8+2*m+j}")
    def tree_sum(dst, src0, n, tmp):
        a(f"v_add_f32 v{tmp}, v{src0}, v{src0+1}")
        a(f"v_add_f32 v{tmp+1}, v{src0+2}, v{src0+3}")
        for r in range(4, n, 2):
            a(f"v_add_f32 v{tmp}, v{tmp}, v{src0+r}")
            a(f"v_add_f32 v{tmp+1}, v{tmp+1}, v{src0+r+1}")
        a(f"v_add_f32 v{dst}, v{tmp}, v{tmp+1}")
    def reduce32(x, t):
        for sh in (8, 4, 2, 1):
            a("s_nop 1")
            a(f"v_add_f32_dpp v{x}, v{x}, v{x} row_ror:{sh} row_mask:0xf bank_mask:0xf")
        a(f"v_mov_b32 v{t}, v{x}")
        a("s_nop 1")
        a(f"v_permlane16_swap_b32 v{x}, v{t}")
        a("s_nop 1")
        a(f"v_add_f32 v{x}, v{x}, v{t}")
    tree_sum(40, 20, 20, 42)
    reduce32(40, 41)
    a(f"v_mul_f32 v40, {fl(1.0/640)}, v40")
    for r in range(20):
        a(f"v_sub_f32 v{20+r}, v{20+r}, v40")
    a("v_mul_f32 v42, v20, v20")
    a("v_mul_f32 v43, v21, v21")
    for r in range(2, 20, 2):
        a(f"v_fmac_f32 v42, v{20+r}, v{20+r}")
        a(f"v_fmac_f32 v43, v{21+r}, v{21+r}")
    a("v_add_f32 v41, v42, v43")
    reduce32(41, 42)
    a(f"v_mov_b32 v42, {fl(1e-5)}")
    a(f"v_fmac_f32 v42, {fl(1.0/640)}, v41")
    a("v_rsq_f32 v42, v42")
    a("s_nop 0")
    for r in range(20):
        a(f"v_mul_f32 v{20+r}, v{20+r}, v42")
    for r in range(10):
        a(f"v_cvt_pk_bf16_f32 v{8+r}, v{20+2*r}, v{21+2*r}")
    a("v_lshrrev_b32 v44, 5, v4")
    a("s_mov_b32 s62, 40960")
    a("v_mul_lo_u32 v44, v44, s62")
    a("v_lshrrev_b32 v45, 2, v3")
    a("v_lshl_add_u32 v44, v45, 10, v44")
    a("v_bfe_u32 v45, v3, 1, 1")
    a("v_lshl_add_u32 v44, v45, 9, v44")
    a("v_and_b32 v45, 31, v4")
    a("v_lshl_add_u32 v44, v45, 4, v44")
    a("v_and_b32 v45, 1, v3")
    a("v_lshl_add_u32 v44, v45, 3, v44")
    for m in range(5):
        a(f"s_mov_b32 s62, {m*8192}")
        a(f"buffer_store_dwordx2 v[{8+2*m}:{9+2*m}], v44, s[48:51], s62 offen")
    a("v_lshlrev_b32 v45, 4, v0")
    a("s_waitcnt vmcnt(5)")
    for n in range(3):
        a(f"s_cmp_ge_u32 s{64+n}, 2400")
        a(f"s_cbranch_scc1 {end}")
        pack_frag(a, 92+4*n, 64+8*n)
        a(f"s_lshl_b32 s62, s{64+n}, 10")
        a(f"buffer_store_dwordx4 v[{92+4*n}:{95+4*n}], v45, s[56:59], s62 offen")
    a(f"s_branch {end}")
```

```python
from gemm import *
QSCALE = (20 ** -0.5) * LOG2E

def map_k1(a, end):
    a("s_and_b32 s71, s2, 7")
    a("s_lshr_b32 s72, s2, 3")
    a("s_lshr_b32 s73, s71, 1")
    a("s_lshl_b32 s73, s73, 2")
    a("s_and_b32 s74, s72, 3")
    a(f"s_add_u32 s{S_RB}, s73, s74")
    a("s_and_b32 s73, s71, 1")
    a("s_lshl_b32 s73, s73, 3")
    a("s_lshr_b32 s74, s72, 2")
    a(f"s_add_u32 s{S_CG}, s73, s74")
    a(f"s_cmp_ge_u32 s{S_CG}, 15")
    a(f"s_cbranch_scc1 {end}")

LDS_K1 = 103424
def gen_k1(a, end):
    map_k1(a, end)
    srd(a, SRD_A, P_WS, WS_WQKV, SZ_WQKV)
    srd(a, SRD_B, P_WS, WS_XH, SZ_XH)
    srd(a, SRD_M, P_WS, WS_MODP, SZ_MODP)
    L_comp = a.uid("K1_comp")
    a(f"s_cmp_lt_u32 s{S_WAVE}, 4")
    a(f"s_cbranch_scc1 {L_comp}")
    a("s_mov_b32 s76, 1.0")
    a(f"s_cmp_lt_u32 s{S_CG}, 5")
    a(f"s_cselect_b32 s76, {fl(QSCALE)}, s76")
    modulated_loader(a, end, NC=10, nA=4, a_chunk_bytes=16384, RA=4, lds_A=0, lds_B=65536, lds_tab=98304,
                     vec_shift=0, vec_scale=1, korder="nat", ln2=False, b_tb_stride=40960, qscale_sgpr=76)
    a.label(L_comp)
    lane_consts(a)
    a(f"s_lshl_b32 s71, s{S_WAVE}, 12")
    a("s_add_u32 s71, s71, 65536")
    a("v_add_u32 v4, s71, v1")
    a(f"s_lshl_b32 s72, s{S_RB}, 2")
    a(f"s_add_u32 s72, s72, s{S_WAVE}")
    ACC = 64
    args = dict(KS=40, CK=4, NU=4, P=4, acc=lambda t: ACC+16*t, sh_regs=[32, 36], pv_regs=[16, 20, 24, 28],
                sh_addr=lambda s: (4, ((s//4) % 2)*16384 + (s % 4)*1024),
                pv_addr=lambda s, t: (1, ((s//4) % 4)*16384 + (s % 4)*4096 + t*1024))
    L_v = a.uid("K1_v")
    a(f"s_cmp_ge_u32 s{S_CG}, 10")
    a(f"s_cbranch_scc1 {L_v}")
    a(f"s_mov_b32 s73, {KVT}")
    a(f"s_mov_b32 s74, {WS_KV}")
    a(f"s_cmp_lt_u32 s{S_CG}, 5")
    a(f"s_cselect_b32 s73, {QT}, s73")
    a(f"s_cselect_b32 s74, {WS_Q}, s74")
    a(f"s_cselect_b32 s75, 0, 5")
    a(f"s_sub_u32 s75, s{S_CG}, s75")
    a(f"s_add_u32 s{SRD_E0}, s{P_WS}, s74")
    a(f"s_addc_u32 s{SRD_E0+1}, s{P_WS+1}, 0")
    a(f"s_mov_b32 s{SRD_E0+2}, {hex(SZ_KV)}")
    a(f"s_mov_b32 s{SRD_E0+3}, 0x20000")
    a("s_mul_i32 s78, s72, s73")
    a("s_lshl_b32 s79, s73, 6")
    a("s_lshl_b32 s80, s75, 5")
    a("v_add_u32 v5, s80, v3")
    a("v_lshlrev_b32 v6, 4, v2")
    a("v_lshlrev_b32 v7, 3, v2")
    a("v_add_u32 v7, 1024, v7")
    for T in range(4):
        for g in range(4):
            o = 128 + 4*T + g
            a(f"v_add_u32 v8, {8*T+2*g}, v5")
            a(f"v_mul_u32_u24 v9, 0xcccd, v8")
            a("v_lshrrev_b32 v9, 18, v9")
            a("v_mul_u32_u24 v10, 5, v9")
            a("v_sub_u32 v10, v8, v10")
            a("v_cmp_eq_u32 vcc, 4, v10")
            a("v_lshrrev_b32 v11, 1, v10")
            a("v_and_b32 v12, 1, v10")
            a("v_lshl_add_u32 v11, v11, 9, v6")
            a("v_lshl_add_u32 v11, v12, 3, v11")
            a(f"v_mul_lo_u32 v{o}, v9, s79")
            a("v_cndmask_b32 v11, v11, v7, vcc")
            a(f"v_add_u32 v{o}, v{o}, v11")
    a("s_barrier")
    compute_loop(a, swap=False, **args)
    a.nop(12)
    for T in range(4):
        for g in range(4):
            r = ACC + 16*T + 4*g
            p = 16 + 2*((4*T+g) % 8)
            a(f"v_cvt_pk_bf16_f32 v{p}, v{r}, v{r+1}")
            a(f"v_cvt_pk_bf16_f32 v{p+1}, v{r+2}, v{r+3}")
            a(f"buffer_store_dwordx2 v[{p}:{p+1}], v{128+4*T+g}, s[{SRD_E0}:{SRD_E0+3}], s78 offen")
    a(f"s_branch {end}")
    a.label(L_v)
    srd(a, SRD_E0, P_WS, WS_KV, SZ_KV)
    a(f"s_mul_i32 s78, s72, {KVT}")
    a(f"s_sub_u32 s75, s{S_CG}, 10")
    a("s_lshl_b32 s80, s75, 7")
    a("v_add_u32 v5, s80, v2")
    a("v_mul_u32_u24 v6, 320, v3")
    a(f"s_mov_b32 s79, {64*KVT}")
    for T in range(4):
        a(f"v_add_u32 v8, {32*T}, v5")
        a("v_mul_u32_u24 v9, 0xcccd, v8")
        a("v_lshrrev_b32 v9, 20, v9")
        a("v_mul_u32_u24 v10, 20, v9")
        a(f"v_sub_u32 v{132+T}, v8, v10")
        a(f"v_mul_lo_u32 v{128+T}, v9, s79")
        a(f"v_lshl_add_u32 v{128+T}, v{132+T}, 4, v{128+T}")
        a(f"v_add_u32 v{128+T}, v{128+T}, v6")
    a("s_barrier")
    compute_loop(a, swap=True, **args)
    a.nop(12)
    for T in range(4):
        for tp in range(2):
            r = ACC + 16*T + 8*tp
            p = 16 + 4*((2*T+tp) % 4)
            for j in range(4):
                a(f"v_cvt_pk_bf16_f32 v{p+j}, v{r+2*j}, v{r+2*j+1}")
            a(f"buffer_store_dwordx4 v[{p}:{p+3}], v{128+T}, s[{SRD_E0}:{SRD_E0+3}], s78 offen offset:{1280+640*tp}")
    a(f"s_branch {end}")
```

```python
from gemm import *

CH = 40960
ONES = 3*CH
LDS_K2 = 4*CH
Q1, Q2, CM, SA, SB, OA = 8, 12, 16, 32, 48, 64
P0, P1 = 80, 84
KB = [(88, 92), (96, 100)]
VB = [(104, 108), (112, 116)]
AK1, AK2, AV = 120, 123, 126
PREP = 136
SRD_Q, SRD_KV, SRD_O = 44, 48, 52
SRD_W0, SRD_W1, SRD_WD = 56, 60, 64
S_HEAD, S_TQ = 68, 69

def exps(a, S, lo, hi): return [f"v_exp_f32 v{S+i}, v{S+i}" for i in range(lo, hi)]
def cvt(S, i, P): return f"v_cvt_pk_bf16_f32 v{P + (i//2) % 4}, v{S+i}, v{S+i+1}"

def qk1(a, S, kb):  a(f"v_mfma_f32_32x32x16_bf16 v[{S}:{S+15}], v[{kb[0]}:{kb[0]+3}], v[{Q1}:{Q1+3}], v[{CM}:{CM+15}]")
def qk2(a, S, kb):  a(f"v_mfma_f32_32x32x8bf16_1k v[{S}:{S+15}], v[{kb[1]}:{kb[1]+1}], v[{Q2}:{Q2+1}], v[{S}:{S+15}]")
def pv(a, vreg, P, first=False):
    c = "0" if first else f"v[{OA}:{OA+15}]"
    a(f"v_mfma_f32_32x32x16_bf16 v[{OA}:{OA+15}], v[{vreg}:{vreg+3}], v[{P}:{P+3}], {c}")

def rdK(a, t):
    c, tl = divmod(t, 16); kb = KB[t % 2]
    a(f"ds_read_b128 v[{kb[0]}:{kb[0]+3}], v{AK1 + c % 3} offset:{tl*KVT}")
    a(f"ds_read_b64 v[{kb[1]}:{kb[1]+1}], v{AK2 + c % 3} offset:{tl*KVT}")
def rdV(a, t, tp):
    c, tl = divmod(t, 16); vb = VB[t % 2]
    a(f"ds_read_b128 v[{vb[tp]}:{vb[tp]+3}], v{AV + c % 3} offset:{tl*KVT + 1280 + 640*tp}")

def prep_frag(a, dst8, srd_, voff, sbase, pitch, korder):
    gather_frag_loads(a, dst8, voff, srd_, sbase, 95, pitch, korder)

def gen_k2(a, end):
    a("s_and_b32 s71, s2, 7")
    a("s_lshr_b32 s72, s2, 3")
    a("s_and_b32 s72, s72, 3")
    a("s_lshl_b32 s72, s72, 3")
    a(f"s_add_u32 s{S_HEAD}, s71, s72")
    a("s_lshr_b32 s72, s2, 5")
    a("s_lshl_b32 s72, s72, 3")
    a(f"s_add_u32 s{S_TQ}, s72, s{S_WAVE}")
    srd(a, SRD_Q, P_WS, WS_Q, SZ_Q)
    srd(a, SRD_KV, P_WS, WS_KV, SZ_KV)
    srd(a, SRD_O, P_WS, WS_O, SZ_O)
    lane_consts(a)
    vq = VmQ(a)
    a(f"s_lshl_b32 s71, s{S_HEAD}, 6")
    a(f"s_add_u32 s71, s71, s{S_TQ}")
    a(f"s_mul_i32 s71, s71, {QT}")
    a(f"s_mul_i32 s72, s{S_HEAD}, {64*KVT}")
    a("v_lshlrev_b32 v4, 3, v2")
    a("v_add_u32 v4, 1024, v4")
    a(f"v_mov_b32 v{Q2}, 0")
    a(f"v_mov_b32 v{Q2+1}, 0")
    a(f"buffer_load_dwordx4 v[{Q1}:{Q1+3}], v1, s[{SRD_Q}:{SRD_Q+3}], s71 offen"); vq.issue("Q")
    exec_lo32(a)
    a(f"buffer_load_dwordx2 v[{Q2}:{Q2+1}], v4, s[{SRD_Q}:{SRD_Q+3}], s71 offen"); vq.issue("Q")
    a("s_mov_b64 exec, -1")
    a(f"buffer_load_dwordx4 v[{KB[0][0]}:{KB[0][0]+3}], v1, s[{SRD_KV}:{SRD_KV+3}], s72 offen"); vq.issue("Q")
    a(f"buffer_load_dwordx2 v[{KB[0][1]}:{KB[0][1]+1}], v4, s[{SRD_KV}:{SRD_KV+3}], s72 offen"); vq.issue("Q")
    a(f"s_lshl_b32 s73, s{S_WAVE}, 10")
    a("v_add_u32 v5, s73, v1")
    def dma(c):
        for n in range(5):
            a(f"s_add_u32 m0, s73, {(c % 3)*CH + n*8192}")
            a(f"s_add_u32 s74, s72, {c*CH + n*8192}")
            a(f"buffer_load_dwordx4 v5, s[{SRD_KV}:{SRD_KV+3}], s74 offen lds")
            vq.issue(("C", c))
    for c in range(3): dma(c)
    for j in range(4): a(f"v_mov_b32 v{PREP+j}, 0x3f803f80")
    a("v_lshrrev_b32 v6, 4, v0")
    a(f"s_lshl_b32 s74, s{S_WAVE}, 2")
    a("v_add_u32 v6, s74, v6")
    a("v_lshrrev_b32 v7, 1, v6")
    a(f"v_mul_u32_u24 v7, {KVT}, v7")
    a("v_and_b32 v6, 1, v6")
    a("v_mul_u32_u24 v6, 640, v6")
    a("v_add_u32 v7, v7, v6")
    a("v_and_b32 v6, 15, v0")
    a("v_lshl_add_u32 v7, v6, 4, v7")
    a(f"v_add_u32 v7, {ONES+1280}, v7")
    a(f"ds_write_b128 v7, v[{PREP}:{PREP+3}]")
    a("v_mul_u32_u24 v6, 320, v3")
    a("v_lshl_add_u32 v6, v2, 4, v6")
    a("v_cmp_gt_u32 vcc, 28, v2")
    a("v_mov_b32 v7, 192")
    a("v_mov_b32 v14, 64")
    a("v_cndmask_b32 v7, v7, v14, vcc")
    a("v_lshlrev_b32 v14, 6, v3")
    a("v_add_u32 v7, v7, v14")
    a("v_and_b32 v7, 255, v7")
    a(f"v_add_u32 v7, {ONES}, v7")
    a("v_cmp_gt_u32 vcc, 20, v2")
    for sl in range(3):
        a(f"v_add_u32 v{AK1+sl}, {sl*CH}, v1")
        a(f"v_add_u32 v{AK2+sl}, {sl*CH}, v4")
        a(f"v_add_u32 v14, {sl*CH}, v6")
        a(f"v_cndmask_b32 v{AV+sl}, v7, v14, vcc")
    vq.wait("Q")
    a(f"v_mfma_f32_32x32x16_bf16 v[{SA}:{SA+15}], v[{KB[0][0]}:{KB[0][0]+3}], v[{Q1}:{Q1+3}], 0")
    qk2(a, SA, KB[0])
    a.nop(12)
    def max16(dst, S, init=True):
        if init:
            a(f"v_max3_f32 v{dst}, v{S}, v{S+1}, v{S+2}")
            rest = range(3, 15, 2)
        else:
            a(f"v_max3_f32 v{dst}, v{dst}, v{S}, v{S+1}")
            a(f"v_max_f32 v{dst}, v{dst}, v{S+2}")
            rest = range(3, 15, 2)
        for i in rest: a(f"v_max3_f32 v{dst}, v{dst}, v{S+i}, v{S+i+1}")
        a(f"v_max_f32 v{dst}, v{dst}, v{S+15}")
    def set_cm(m):
        a(f"v_mov_b32 v14, v{m}")
        a("s_nop 1")
        a(f"v_permlane32_swap_b32 v{m}, v14")
        a("s_nop 1")
        a(f"v_max_f32 v{m}, v{m}, v14")
        for i in range(16): a(f"v_sub_f32 v{CM+i}, 0, v{m}")
    max16(15, SA)
    set_cm(15)
    vq.wait(("C", 0))
    a("s_waitcnt lgkmcnt(0)")
    a("s_barrier")
    rdK(a, 0); rdK(a, 1); rdV(a, 0, 0); rdV(a, 0, 1)
    a("s_waitcnt lgkmcnt(4)")
    qk1(a, SA, KB[0]); qk2(a, SA, KB[0])
    a.nop(8)
    NT = 64
    for t in range(NT):
        S = SA if t % 2 == 0 else SB
        SN = SB if t % 2 == 0 else SA
        nxt = t + 1 < NT
        if t % 16 == 14 and t + 2 < NT:
            c1 = t // 16 + 1
            vq.wait(("C", c1))
            a("s_barrier")
            if c1 + 1 >= 3 and c1 + 1 < 4: dma(c1 + 1)
            if c1 == 1: prep_issue(a, vq)
            if c1 == 3: prep_store(a, vq)
        if nxt:
            a("s_waitcnt lgkmcnt(2)")
            qk1(a, SN, KB[(t+1) % 2])
        if t + 2 < NT: rdK(a, t+2)
        elif nxt: a("s_nop 1")
        else: a.nop(4)
        e = exps(a, S, 0, 16)
        seq = [e[0], e[1], e[2], cvt(S, 0, P0), e[3], e[4], cvt(S, 2, P0), e[5], e[6], cvt(S, 4, P0),
               e[7], e[8], cvt(S, 6, P0), e[9], e[10]]
        for x in seq: a(x)
        a(f"s_waitcnt lgkmcnt({2 if t + 2 < NT else 0})")
        pv(a, VB[t % 2][0], P0, first=(t == 0))
        for x in [cvt(S, 8, P1), e[11], e[12], cvt(S, 10, P1)]: a(x)
        if nxt: qk2(a, SN, KB[(t+1) % 2])
        for x in [e[13], e[14], e[15], cvt(S, 12, P1), cvt(S, 14, P1)]: a(x)
        if nxt: rdV(a, t+1, 0); rdV(a, t+1, 1)
        else: a("s_nop 1")
        pv(a, VB[t % 2][1], P1)
    a.nop(12)
    L_slow, L_epi = a.uid("K2_slow"), a.uid("K2_epi")
    a(f"v_max3_f32 v14, abs(v{OA}), abs(v{OA+1}), abs(v{OA+2})")
    for i in range(3, 11, 2): a(f"v_max3_f32 v14, v14, abs(v{OA+i}), abs(v{OA+i+1})")
    a(f"v_max_f32 v14, v14, abs(v{OA+11})")
    a(f"v_mov_b32 v15, {fl(2.0**60)}")
    a(f"v_cmp_nlt_f32 vcc, v{OA+12}, v15")
    a(f"v_mov_b32 v15, {fl(2.0**120)}")
    a("v_cmp_nlt_f32 s[80:81], v14, v15")
    a("s_nop 1")
    a("s_or_b64 vcc, vcc, s[80:81]")
    a(f"s_cbranch_vccnz {L_slow}")
    a.label(L_epi)
    a(f"v_rcp_f32 v14, v{OA+12}")
    a(f"s_mul_i32 s74, s{S_TQ}, 40960")
    a(f"s_mul_i32 s75, s{S_HEAD}, 5")
    for i in range(12): a(f"v_mul_f32 v{OA+i}, v{OA+i}, v14")
    for g in range(3):
        a(f"v_cvt_pk_bf16_f32 v{P0+2*g}, v{OA+4*g}, v{OA+4*g+1}")
        a(f"v_cvt_pk_bf16_f32 v{P0+2*g+1}, v{OA+4*g+2}, v{OA+4*g+3}")
    for g in range(3):
        a(f"v_add_u32 v6, {2*g}, v3")
        a("v_add_u32 v6, s75, v6")
        a("v_lshrrev_b32 v7, 2, v6")
        a("v_lshlrev_b32 v7, 10, v7")
        a("v_bfe_u32 v14, v6, 1, 1")
        a("v_lshl_add_u32 v7, v14, 9, v7")
        a("v_and_b32 v14, 1, v6")
        a("v_lshl_add_u32 v7, v14, 3, v7")
        a("v_lshl_add_u32 v7, v2, 4, v7")
        if g == 2: exec_lo32(a)
        a(f"buffer_store_dwordx2 v[{P0+2*g}:{P0+2*g+1}], v7, s[{SRD_O}:{SRD_O+3}], s74 offen")
    a(f"s_branch {end}")
    a.label(L_slow)
    kb, vb = KB[0], VB[0]
    a(f"v_mov_b32 v15, 0xff800000")
    a("s_mov_b32 s76, 0")
    L1, L2 = a.uid("K2_max"), a.uid("K2_pv")
    a.label(L1)
    a("s_add_u32 s77, s72, s76")
    a(f"buffer_load_dwordx4 v[{kb[0]}:{kb[0]+3}], v1, s[{SRD_KV}:{SRD_KV+3}], s77 offen")
    a(f"buffer_load_dwordx2 v[{kb[1]}:{kb[1]+1}], v4, s[{SRD_KV}:{SRD_KV+3}], s77 offen")
    a("s_waitcnt vmcnt(0)")
    a(f"v_mfma_f32_32x32x16_bf16 v[{SA}:{SA+15}], v[{kb[0]}:{kb[0]+3}], v[{Q1}:{Q1+3}], 0")
    qk2(a, SA, kb)
    a.nop(12)
    max16(15, SA, init=False)
    a(f"s_add_u32 s76, s76, {KVT}")
    a(f"s_cmp_lt_u32 s76, {64*KVT}")
    a(f"s_cbranch_scc1 {L1}")
    set_cm(15)
    for i in range(16): a(f"v_mov_b32 v{OA+i}, 0")
    a("v_mul_u32_u24 v6, 320, v3")
    a("v_lshl_add_u32 v6, v2, 4, v6")
    for j in range(4):
        a(f"v_mov_b32 v{vb[0]+j}, 0x3f803f80")
        a(f"v_mov_b32 v{vb[1]+j}, 0x3f803f80")
    a("v_cmp_gt_u32 s[78:79], 20, v2")
    a("s_mov_b32 s76, 0")
    a.label(L2)
    a("s_add_u32 s77, s72, s76")
    a(f"buffer_load_dwordx4 v[{kb[0]}:{kb[0]+3}], v1, s[{SRD_KV}:{SRD_KV+3}], s77 offen")
    a(f"buffer_load_dwordx2 v[{kb[1]}:{kb[1]+1}], v4, s[{SRD_KV}:{SRD_KV+3}], s77 offen")
    a("s_mov_b64 exec, s[78:79]")
    a(f"buffer_load_dwordx4 v[{vb[0]}:{vb[0]+3}], v6, s[{SRD_KV}:{SRD_KV+3}], s77 offen offset:1280")
    a(f"buffer_load_dwordx4 v[{vb[1]}:{vb[1]+3}], v6, s[{SRD_KV}:{SRD_KV+3}], s77 offen offset:1920")
    a("s_mov_b64 exec, -1")
    a("s_waitcnt vmcnt(0)")
    qk1(a, SA, kb); qk2(a, SA, kb)
    a.nop(12)
    for x in exps(a, SA, 0, 16): a(x)
    a("s_nop 0")
    for i in range(0, 8, 2): a(cvt(SA, i, P0))
    for i in range(8, 16, 2): a(cvt(SA, i, P1))
    a("s_nop 1")
    pv(a, vb[0], P0); pv(a, vb[1], P1)
    a(f"s_add_u32 s76, s76, {KVT}")
    a(f"s_cmp_lt_u32 s76, {64*KVT}")
    a(f"s_cbranch_scc1 {L2}")
    a.nop(12)
    a(f"s_branch {L_epi}")

def prep_issue(a, vq):
    srd(a, SRD_W0, P_WG, 0, 640*1536*2)
    srd(a, SRD_W1, P_WU, 0, 640*1536*2)
    srd(a, SRD_WD, P_WD, 0, 1536*640*2)
    srd(a, 96, P_WO, 0, 640*640*2)
    a("s_lshl_b32 s82, s2, 3")
    a(f"s_add_u32 s82, s82, s{S_WAVE}")
    a("v_and_b32 v6, 15, v0")
    a("v_lshlrev_b32 v6, 1, v6")
    a("v_mul_u32_u24 v7, 12288, v3")
    a("v_add_u32 v6, v6, v7")
    a("v_lshlrev_b32 v7, 1, v2")
    a("v_mul_u32_u24 v14, 5120, v3")
    a("v_add_u32 v14, v14, v7")
    a("v_mul_u32_u24 v15, 10240, v3")
    a("v_add_u32 v15, v15, v7")
    a("s_mov_b32 s84, 0x0000ffff"); a("s_mov_b32 s85, 0x0000ffff")
    a("s_mov_b32 s86, 0xffff0000"); a("s_mov_b32 s87, 0xffff0000")
    for n in range(2):
        a(f"s_add_u32 s88, s82, {2048*n}")
        a("s_min_u32 s88, s88, 3839")
        divmod_const(a, 89, 90, 88, 6)
        divmod_const(a, 91, 92, 89, 40)
        a("s_mul_i32 s92, s92, 49152")
        a("s_mul_i32 s91, s91, 192")
        a("s_lshl_b32 s90, s90, 5")
        a("s_add_u32 s92, s92, s91")
        a("s_add_u32 s92, s92, s90")
        a("s_mov_b64 exec, s[84:85]")
        prep_frag(a, PREP+8*n, SRD_W0, 6, 92, 3072, "d"); vq.issue("P", 8)
        a("s_mov_b64 exec, s[86:87]")
        prep_frag(a, PREP+8*n, SRD_W1, 6, 92, 3072, "d"); vq.issue("P", 8)
        a("s_mov_b64 exec, -1")
    for n in range(2):
        a(f"s_add_u32 s88, s82, {2048*n}")
        a("s_min_u32 s88, s88, 2303")
        divmod_const(a, 89, 90, 88, 3)
        divmod_const(a, 91, 92, 89, 96)
        a("s_mul_i32 s92, s92, 20480")
        a("s_mul_i32 s91, s91, 160")
        a("s_lshl_b32 s90, s90, 6")
        a("s_add_u32 s92, s92, s91")
        a("s_add_u32 s92, s92, s90")
        prep_frag(a, PREP+16+8*n, SRD_WD, 14, 92, 1280, "d"); vq.issue("P", 8)
    a("s_min_u32 s88, s82, 959")
    divmod_const(a, 89, 90, 88, 3)
    divmod_const(a, 91, 92, 89, 40)
    a("s_mul_i32 s92, s92, 20480")
    a("s_mul_i32 s91, s91, 160")
    a("s_lshl_b32 s90, s90, 6")
    a("s_add_u32 s92, s92, s91")
    a("s_add_u32 s92, s92, s90")
    prep_frag(a, PREP+32, 96, 15, 92, 1280, "nat"); vq.issue("P", 8)

def prep_store(a, vq):
    vq.wait("P")
    srd(a, SRD_W0, P_WS, WS_WGU, SZ_WGU)
    srd(a, SRD_W1, P_WS, WS_WD, SZ_WD)
    srd(a, SRD_WD, P_WS, WS_WO, SZ_WO)
    for n in range(5):
        b = PREP + 8*n
        for j in range(4): a(f"v_lshl_or_b32 v{b+j}, v{b+2*j+1}, 16, v{b+2*j}")
    a("v_lshlrev_b32 v6, 8, v3")
    a("v_lshl_add_u32 v6, v2, 4, v6")
    a("v_add_u32 v6, 2048, v6")
    for n in range(2):
        L = a.uid("K2_ps")
        a(f"s_add_u32 s88, s82, {2048*n}")
        a("s_cmp_ge_u32 s88, 3840")
        a(f"s_cbranch_scc1 {L}")
        a("s_lshl_b32 s88, s88, 10")
        a(f"buffer_store_dwordx4 v[{PREP+8*n}:{PREP+8*n+3}], v1, s[{SRD_W0}:{SRD_W0+3}], s88 offen")
        a.label(L)
    def three(reg, idx_add, limit, srd_):
        L, Lh = a.uid("K2_ps"), a.uid("K2_ph")
        a(f"s_add_u32 s88, s82, {idx_add}")
        a(f"s_cmp_ge_u32 s88, {limit}")
        a(f"s_cbranch_scc1 {L}")
        divmod_const(a, 89, 90, 88, 3)
        a("s_mul_i32 s89, s89, 2560")
        a("s_cmp_eq_u32 s90, 2")
        a(f"s_cbranch_scc1 {Lh}")
        a("s_lshl_b32 s90, s90, 10")
        a("s_add_u32 s89, s89, s90")
        a(f"buffer_store_dwordx4 v[{reg}:{reg+3}], v1, s[{srd_}:{srd_+3}], s89 offen")
        a(f"s_branch {L}")
        a.label(Lh)
        a("s_mov_b64 exec, s[84:85]")
        a(f"buffer_store_dwordx4 v[{reg}:{reg+3}], v6, s[{srd_}:{srd_+3}], s89 offen")
        a("s_mov_b64 exec, -1")
        a.label(L)
    three(PREP+16, 0, 2304, SRD_W1)
    three(PREP+24, 2048, 2304, SRD_W1)
    three(PREP+32, 0, 960, SRD_WD)
```

```python
from gemm import *

def map_thin(a):
    a("s_and_b32 s71, s2, 7")
    a("s_lshr_b32 s72, s2, 3")
    a("s_and_b32 s73, s71, 3")
    a("s_lshl_b32 s73, s73, 3")
    a("s_and_b32 s74, s72, 7")
    a(f"s_add_u32 s{S_RB}, s73, s74")
    a("s_lshr_b32 s73, s71, 2")
    a("s_lshl_b32 s73, s73, 2")
    a("s_lshr_b32 s74, s72, 3")
    a(f"s_add_u32 s{S_CG}, s73, s74")

SLOT = 36864
LDS_RED = 4*SLOT
LDS_THIN = LDS_RED + 3072
ACC0, ACC1 = 64, 80

def thin_compute_setup(a):
    lane_consts(a)
    a(f"s_lshl_b32 s71, s{S_WAVE}, 10")
    a("v_add_u32 v11, s71, v1")
    a("v_and_b32 v12, 15, v2")
    a("v_lshlrev_b32 v12, 4, v12")
    a("v_lshl_add_u32 v12, v3, 8, v12")
    a("v_add_u32 v12, 2048, v12")
    a(f"s_cmp_eq_u32 s{S_WAVE}, 2")
    a("s_cselect_b64 vcc, -1, 0")
    a("v_cndmask_b32 v11, v11, v12, vcc")
    lds_addr_set(a, 4, 3, 11)
    lds_addr_set(a, 8, 3, 1)

def thin_loop(a, KS):
    def sh(s): c = s // 8; return seg(4, (c % 4)*SLOT + (s % 8)*2560)
    def pvv(s, t): c = s // 8; return seg(8, (c % 4)*SLOT + 20480 + t*8192 + (s % 8)*1024)
    compute_loop(a, KS=KS, CK=8, NU=2, P=4, acc=lambda t: ACC0+16*t, sh_regs=[32, 36, 40], pv_regs=[16, 20, 24, 28],
                 sh_addr=sh, pv_addr=pvv, swap=True)

def gate_vec_loads(a, vq, vec, dst):
    a(f"s_mul_i32 s71, s{S_CG}, 80")
    a(f"s_lshl_b32 s72, s{S_WAVE}, 5")
    a("s_add_u32 s71, s71, s72")
    a("s_lshl_b32 s72, s71, 2")
    a("v_lshl_add_u32 v13, v3, 4, s72")
    for g in range(4):
        for q in range(4):
            a(f"s_mov_b32 s90, {q*15360 + vec*2560 + g*32}")
            r = dst + 16*g + 4*q
            a(f"buffer_load_dwordx4 v[{r}:{r+3}], v13, s[{SRD_M}:{SRD_M+3}], s90 offen")
            vq.issue("G")
def gate_vec_sum(a, dst, out):
    for g in range(4): mod_vec_sum(a, out+4*g, dst+16*g)

def skip_half(a, g, L):
    if g == 2:
        a(f"s_cmp_eq_u32 s{S_WAVE}, 2")
        a(f"s_cbranch_scc1 {L}")

def gen_k3(a, end):
    map_thin(a)
    srd(a, SRD_A, P_WS, WS_WO, SZ_WO)
    srd(a, SRD_B, P_WS, WS_O, SZ_O)
    srd(a, SRD_M, P_WS, WS_MODP, SZ_MODP)
    L_comp = a.uid("K3_comp")
    a(f"s_cmp_lt_u32 s{S_WAVE}, 4")
    a(f"s_cbranch_scc1 {L_comp}")
    plain_loader(a, end, NC=5, R=4, lds_ring=0, a_tb_stride_k=None, KS=40)
    a.label(L_comp)
    a(f"s_cmp_eq_u32 s{S_WAVE}, 3")
    a(f"s_cbranch_scc1 {end}")
    srd(a, SRD_E0, P_X, 0, S*D*2)
    srd(a, SRD_E1, P_WS, WS_X1, SZ_X1)
    srd(a, SRD_E2, P_WS, WS_STAT, SZ_STAT)
    thin_compute_setup(a)
    vq = VmQ(a)
    gate_vec_loads(a, vq, 2, 128)
    a("v_mul_u32_u24 v14, 1280, v2")
    a("v_lshl_add_u32 v14, v3, 3, v14")
    a("s_lshl_b32 s72, s71, 1")
    a(f"s_mul_i32 s73, s{S_RB}, {64*1280}")
    a("s_add_u32 s72, s72, s73")
    XR = 96
    for u in range(2):
        a(f"s_add_u32 s74, s72, {u*32*1280}")
        for g in range(4):
            r = XR + 8*u + 2*g
            a(f"buffer_load_dwordx2 v[{r}:{r+1}], v14, s[{SRD_E0}:{SRD_E0+3}], s74 offen offset:{16*g}")
            vq.issue("X")
    vq.wait("G")
    GA = 112
    gate_vec_sum(a, 128, GA)
    thin_loop(a, 40)
    vq.wait("X")
    a.nop(12)
    a(f"s_mul_i32 s73, s{S_CG}, 5")
    a(f"s_lshl_b32 s74, s{S_WAVE}, 1")
    a("s_add_u32 s73, s73, s74")
    a("s_lshl_b32 s73, s73, 10")
    a(f"s_lshl_b32 s74, s{S_RB}, 1")
    a("s_mul_i32 s74, s74, 40960")
    a("s_add_u32 s73, s73, s74")
    for u in range(2):
        acc = ACC0 + 16*u
        L = a.uid("K3_e")
        sm, sq = 44 + 2*u, 45 + 2*u
        a(f"v_mov_b32 v{sm}, 0")
        a(f"v_mov_b32 v{sq}, 0")
        a(f"s_add_u32 s75, s73, {u*40960}")
        for tp in range(2):
            if tp == 1:
                a(f"s_cmp_eq_u32 s{S_WAVE}, 2")
                a(f"s_cbranch_scc1 {L}")
            for gg in range(2):
                g = 2*tp + gg
                for jj in range(2):
                    x = XR + 8*u + 2*g + jj
                    a(f"v_lshlrev_b32 v48, 16, v{x}")
                    a(f"v_and_b32 v49, 0xffff0000, v{x}")
                    r = acc + 4*g + 2*jj
                    a(f"v_fma_f32 v{r}, v{GA+4*g+2*jj}, v{r}, v48")
                    a(f"v_fma_f32 v{r+1}, v{GA+4*g+2*jj+1}, v{r+1}, v49")
                    a(f"v_add_f32 v{sm}, v{sm}, v{r}")
                    a(f"v_fmac_f32 v{sq}, v{r}, v{r}")
                    a(f"v_add_f32 v{sm}, v{sm}, v{r+1}")
                    a(f"v_fmac_f32 v{sq}, v{r+1}, v{r+1}")
            p = 16 + 4*(2*u + tp)
            for j in range(4):
                a(f"v_cvt_pk_bf16_f32 v{p+j}, v{acc+8*tp+2*j}, v{acc+8*tp+2*j+1}")
            a(f"buffer_store_dwordx4 v[{p}:{p+3}], v1, s[{SRD_E1}:{SRD_E1+3}], s75 offen offset:{1024*tp}")
        a.label(L)
    a(f"s_lshl_b32 s75, s{S_WAVE}, 9")
    a(f"s_add_u32 s75, s75, {LDS_RED}")
    a("v_lshl_add_u32 v13, v0, 3, s75")
    a("ds_write_b64 v13, v[44:45]")
    a("ds_write_b64 v13, v[46:47] offset:1536")
    a("s_waitcnt lgkmcnt(0)")
    a("s_barrier")
    a(f"s_cmp_lg_u32 s{S_WAVE}, 0")
    a(f"s_cbranch_scc1 {end}")
    a("v_mul_u32_u24 v13, 1536, v3")
    a("v_lshl_add_u32 v13, v2, 3, v13")
    a(f"v_add_u32 v13, {LDS_RED}, v13")
    for T in range(3):
        for h in range(2):
            r = 48 + 2*(2*T+h)
            a(f"ds_read_b64 v[{r}:{r+1}], v13 offset:{T*512 + h*256}")
    a("s_waitcnt lgkmcnt(0)")
    for i in range(1, 6):
        a(f"v_add_f32 v48, v48, v{48+2*i}")
        a(f"v_add_f32 v49, v49, v{49+2*i}")
    a(f"s_mul_i32 s75, s{S_CG}, {2048*8}")
    a(f"s_lshl_b32 s76, s{S_RB}, 9")
    a("s_add_u32 s75, s75, s76")
    a("v_lshlrev_b32 v13, 3, v0")
    a(f"buffer_store_dwordx2 v[48:49], v13, s[{SRD_E2}:{SRD_E2+3}], s75 offen")
    a(f"s_branch {end}")

def gen_k5(a, end):
    map_thin(a)
    srd(a, SRD_A, P_WS, WS_WD, SZ_WD)
    srd(a, SRD_B, P_WS, WS_HH, SZ_HH)
    srd(a, SRD_M, P_WS, WS_MODP, SZ_MODP)
    L_comp = a.uid("K5_comp")
    a(f"s_cmp_lt_u32 s{S_WAVE}, 4")
    a(f"s_cbranch_scc1 {L_comp}")
    plain_loader(a, end, NC=12, R=4, lds_ring=0, a_tb_stride_k=None, KS=96)
    a.label(L_comp)
    a(f"s_cmp_eq_u32 s{S_WAVE}, 3")
    a(f"s_cbranch_scc1 {end}")
    srd(a, SRD_E0, P_OUT, 0, S*D*2)
    srd(a, SRD_E1, P_WS, WS_X1, SZ_X1)
    thin_compute_setup(a)
    vq = VmQ(a)
    gate_vec_loads(a, vq, 5, 128)
    a(f"s_mul_i32 s73, s{S_CG}, 5")
    a(f"s_lshl_b32 s74, s{S_WAVE}, 1")
    a("s_add_u32 s73, s73, s74")
    a("s_lshl_b32 s73, s73, 10")
    a(f"s_lshl_b32 s74, s{S_RB}, 1")
    a("s_mul_i32 s74, s74, 40960")
    a("s_add_u32 s73, s73, s74")
    XR = 96
    for u in range(2):
        a(f"s_add_u32 s75, s73, {u*40960}")
        for tp in range(2):
            r = XR + 8*u + 4*tp
            a(f"buffer_load_dwordx4 v[{r}:{r+3}], v1, s[{SRD_E1}:{SRD_E1+3}], s75 offen offset:{1024*tp}")
            vq.issue("X")
    vq.wait("G")
    GB = 112
    gate_vec_sum(a, 128, GB)
    a("v_mul_u32_u24 v14, 1280, v2")
    a("v_lshl_add_u32 v14, v3, 3, v14")
    a("s_lshl_b32 s72, s71, 1")
    a(f"s_mul_i32 s73, s{S_RB}, {64*1280}")
    a("s_add_u32 s72, s72, s73")
    thin_loop(a, 96)
    vq.wait("X")
    a.nop(12)
    for u in range(2):
        acc = ACC0 + 16*u
        L = a.uid("K5_e")
        a(f"s_add_u32 s74, s72, {u*32*1280}")
        for g in range(4):
            skip_half(a, g, L)
            for jj in range(2):
                x = XR + 8*u + 2*g + jj
                a(f"v_lshlrev_b32 v48, 16, v{x}")
                a(f"v_and_b32 v49, 0xffff0000, v{x}")
                r = acc + 4*g + 2*jj
                a(f"v_fma_f32 v{r}, v{GB+4*g+2*jj}, v{r}, v48")
                a(f"v_fma_f32 v{r+1}, v{GB+4*g+2*jj+1}, v{r+1}, v49")
            p = 16 + 2*((4*u+g) % 8)
            a(f"v_cvt_pk_bf16_f32 v{p}, v{acc+4*g}, v{acc+4*g+1}")
            a(f"v_cvt_pk_bf16_f32 v{p+1}, v{acc+4*g+2}, v{acc+4*g+3}")
            a(f"buffer_store_dwordx2 v[{p}:{p+1}], v14, s[{SRD_E0}:{SRD_E0+3}], s74 offen offset:{16*g}")
        a.label(L)
    a(f"s_branch {end}")

LDS_K4 = 137216
def gen_k4(a, end):
    a("s_and_b32 s71, s2, 7")
    a("s_lshr_b32 s72, s2, 3")
    a("s_and_b32 s73, s71, 1")
    a("s_lshl_b32 s73, s73, 3")
    a("s_and_b32 s74, s72, 7")
    a(f"s_add_u32 s{S_RB}, s73, s74")
    a("s_lshr_b32 s73, s71, 1")
    a("s_lshl_b32 s73, s73, 2")
    a("s_lshr_b32 s74, s72, 3")
    a(f"s_add_u32 s{S_CG}, s73, s74")
    srd(a, SRD_A, P_WS, WS_WGU, SZ_WGU)
    srd(a, SRD_B, P_WS, WS_X1, SZ_X1)
    srd(a, SRD_M, P_WS, WS_MODP, SZ_MODP)
    L_comp = a.uid("K4_comp")
    a(f"s_cmp_lt_u32 s{S_WAVE}, 4")
    a(f"s_cbranch_scc1 {L_comp}")
    srd(a, SRD_E0, P_WS, WS_STAT, SZ_STAT)
    modulated_loader(a, end, NC=10, nA=6, a_chunk_bytes=24576, RA=4, lds_A=0, lds_B=98304, lds_tab=131072,
                     vec_shift=3, vec_scale=4, korder="d", ln2=True, b_tb_stride=40960, lds_stat=136192)
    a.label(L_comp)
    srd(a, SRD_E1, P_WS, WS_HH, SZ_HH)
    lane_consts(a)
    lds_addr_set(a, 4, 2, 1)
    a(f"s_lshl_b32 s71, s{S_WAVE}, 12")
    a("s_add_u32 s71, s71, 98304")
    a("v_add_u32 v6, s71, v1")
    ACC = 64
    a("s_barrier")
    compute_loop(a, KS=40, CK=4, NU=6, P=6, acc=lambda t: ACC+16*t, sh_regs=[40, 44], pv_regs=[16, 20, 24, 28, 32, 36],
                 sh_addr=lambda s: (6, ((s//4) % 2)*16384 + (s % 4)*1024),
                 pv_addr=lambda s, t: seg(4, ((s//4) % 4)*24576 + (s % 4)*6144 + t*1024), swap=False)
    a(f"s_lshl_b32 s72, s{S_RB}, 2")
    a(f"s_add_u32 s72, s72, s{S_WAVE}")
    a("s_mul_i32 s72, s72, 98304")
    a(f"s_mul_i32 s73, s{S_CG}, 6144")
    a("s_add_u32 s72, s72, s73")
    a.nop(8)
    for T in range(6):
        g = ACC + 16*T; u = g + 8
        for i in range(8): a(f"v_mul_f32 v{g+i}, {fl(-LOG2E)}, v{g+i}")
        for i in range(8): a(f"v_exp_f32 v{g+i}, v{g+i}")
        for i in range(8): a(f"v_add_f32 v{g+i}, 1.0, v{g+i}")
        for i in range(8): a(f"v_rcp_f32 v{g+i}, v{g+i}")
        for i in range(8): a(f"v_mul_f32 v{g+i}, v{g+i}, v{u+i}")
        p = 16 + 4*(T % 4)
        for j in range(4): a(f"v_cvt_pk_bf16_f32 v{p+j}, v{g+2*j}, v{g+2*j+1}")
        a(f"s_add_u32 s73, s72, {T*1024}")
        a(f"buffer_store_dwordx4 v[{p}:{p+3}], v1, s[{SRD_E1}:{SRD_E1+3}], s73 offen")
    a(f"s_branch {end}")
```

```python
import numpy as np
S, D, H, DH, F = 2048, 640, 32, 20, 1536

WS_MODP = 0x0000000; SZ_MODP = 4*3840*4
WS_XH   = 0x0100000; SZ_XH   = 64*40*1024
WS_WQKV = 0x0400000; SZ_WQKV = 15*40*4*1024
WS_Q    = 0x0800000; QT = 1280;  SZ_Q  = 32*64*QT
WS_KV   = 0x0C00000; KVT = 2560; SZ_KV = 32*64*KVT
WS_O    = 0x1400000; SZ_O    = 64*40*1024
WS_WO   = 0x1800000; SZ_WO   = 8*40*2560
WS_X1   = 0x1A00000; SZ_X1   = 64*40*1024
WS_STAT = 0x1D00000; SZ_STAT = 8*2048*8
WS_WGU  = 0x2000000; SZ_WGU  = 16*40*6*1024
WS_HH   = 0x2400000; SZ_HH   = 64*96*1024
WS_WD   = 0x2C00000; SZ_WD   = 8*96*2560
WS_TS   = 0x3000000; SZ_TS = 8*2048*256
WS_END  = 0x3500000

def k_nat(s, h, i): return 16*s + 8*h + i
def k_d(s, h, i):   return 16*s + 8*(i//4) + 4*h + (i % 4)

def act_frag(X, korder):
    T, K = X.shape
    out = np.zeros((T//32, K//16, 64, 8), X.dtype)
    for h in range(2):
        for i in range(8):
            ks = np.array([korder(s, h, i) for s in range(K//16)])
            out[:, :, h*32:(h+1)*32, i] = X[:, ks].reshape(T//32, 32, K//16).transpose(0, 2, 1)
    return out
def act_unfrag(Fr, korder):
    nb, ns = Fr.shape[:2]
    X = np.zeros((nb*32, ns*16), Fr.dtype)
    for h in range(2):
        for i in range(8):
            ks = np.array([korder(s, h, i) for s in range(ns)])
            X[:, ks] = Fr[:, :, h*32:(h+1)*32, i].transpose(0, 2, 1).reshape(nb*32, ns)
    return X
def w_frag(W, cols, korder):
    K = W.shape[0]
    out = np.zeros((K//16, 64, 8), W.dtype)
    for h in range(2):
        for i in range(8):
            ks = np.array([korder(s, h, i) for s in range(K//16)])
            out[:, h*32:(h+1)*32, i] = W[ks][:, cols]
    return out
```

```python
import sys
from common import *
import k0, k1, k2, k345

NAME = "adaLN_cond__mha_block__glu_gated_glu__prompt"
HEADER = open(f"cdna_kernels/{NAME}.s.ref").read().split("; Override launch geometry")[0]

KERNELS = [("k0_kernel", k0.gen_k0, 8192), ("k1_kernel", k1.gen_k1, k1.LDS_K1), ("k2_kernel", k2.gen_k2, k2.LDS_K2),
           ("k3_kernel", k345.gen_k3, k345.LDS_THIN), ("k4_kernel", k345.gen_k4, k345.LDS_K4), ("k5_kernel", k345.gen_k5, k345.LDS_THIN)]

def build(kernels=KERNELS, extra_launches=()):
    text, descs, launches, problems = "", "", "", []
    for name, gen, lds in kernels:
        a = Asm()
        end = f"L_end_{name}"
        prologue(a, 256, end)
        gen(a, end)
        a.label(end)
        a("s_endpgm")
        problems += check_hazards(a.lines, name)
        text += kernel_text(name, a)
        descs += descriptor(name)
        launches += f"; @launch kernel={name} grid=(256,1,1) block=(512,1,1) lds={lds}\n"
    for l in extra_launches: launches += l + "\n"
    s = HEADER + launches + '.amdgcn_target "amdgcn-amd-amdhsa--gfx950"\n.text\n' + text + '.section .rodata,"a"\n' + descs
    return s, problems

if __name__ == "__main__":
    s, problems = build()
    for p in problems: print("HAZARD", p)
    out = sys.argv[1] if len(sys.argv) > 1 else f"cdna_kernels/{NAME}.s"
    open(out, "w").write(s)
    print("wrote", out, len(s), "bytes;", len(problems), "hazards")
```

```python
from asmlib import *
from layout import *

P_X, P_WQKV, P_WO, P_BX, P_WG, P_WU, P_WD, P_C = 16, 18, 20, 22, 24, 26, 28, 30
P_WMOD, P_OUT, P_DBG, P_WS = 32, 34, 36, 38
S_WAVE = 40
LOG2E = 1.4426950408889634

def f32bits(x):
    import struct
    return struct.unpack("<I", struct.pack("<f", x))[0]
def fl(x): return hex(f32bits(x))

def prologue(a, nwg, end_label, wg=2):
    a(f"s_cmp_ge_u32 s{wg}, {nwg}")
    a(f"s_cbranch_scc1 {end_label}")
    a("s_load_dwordx16 s[16:31], s[0:1], 0")
    a("s_load_dwordx8 s[32:39], s[0:1], 64")
    a("v_lshrrev_b32 v1, 6, v0")
    a("v_and_b32 v0, 63, v0")
    a(f"v_readfirstlane_b32 s{S_WAVE}, v1")
    a("s_waitcnt lgkmcnt(0)")

def srd(a, d, ptr, off, size):
    if off:
        a(f"s_add_u32 s{d}, s{ptr}, {hex(off)}")
        a(f"s_addc_u32 s{d+1}, s{ptr+1}, 0")
    else:
        a(f"s_mov_b32 s{d}, s{ptr}")
        a(f"s_mov_b32 s{d+1}, s{ptr+1}")
    a(f"s_mov_b32 s{d+2}, {hex(size)}")
    a(f"s_mov_b32 s{d+3}, 0x20000")

def divmod_const(a, q, r, x, c, tmp=None):
    m = -(-(1 << 32) // c)
    a(f"s_mul_hi_u32 s{q}, s{x}, {hex(m)}")
    if r is not None:
        t = r if r != x else tmp
        a(f"s_mul_i32 s{t}, s{q}, {c}")
        a(f"s_sub_u32 s{r}, s{x}, s{t}")

def gather_frag_loads(a, dst8, voff, srd_, sbase, stmp, pitch, korder):
    for i in range(8):
        krel = i if korder == "nat" else 8*(i//4) + (i % 4)
        if krel == 0:
            a(f"buffer_load_ushort v{dst8}, v{voff}, s[{srd_}:{srd_+3}], s{sbase} offen")
        else:
            a(f"s_add_u32 s{stmp}, s{sbase}, {krel*pitch}")
            a(f"buffer_load_ushort v{dst8+i}, v{voff}, s[{srd_}:{srd_+3}], s{stmp} offen")

def pack_frag(a, dst4, src8):
    for j in range(4):
        a(f"v_lshl_or_b32 v{dst4+j}, v{src8+2*j+1}, 16, v{src8+2*j}")

def exec_lo32(a):
    a("s_mov_b32 exec_lo, -1")
    a("s_mov_b32 exec_hi, 0")
def exec_all(a):
    a("s_mov_b64 exec, -1")

INSTR = {"on": False}
def stamp(a, idx):
    if not INSTR["on"]: return
    a("s_memtime s[12:13]")
    a("s_waitcnt lgkmcnt(0)")
    a(f"v_writelane_b32 v255, s12, {idx}")
```

```python
from common import *

class VmQ:
    def __init__(self, a): self.a, self.q = a, []
    def issue(self, tag, n=1): self.q += [tag]*n
    def wait(self, tag):
        idx = [i for i, t in enumerate(self.q) if t == tag]
        if not idx: return
        n = len(self.q) - 1 - idx[-1]
        assert n <= 63, n
        self.a(f"s_waitcnt vmcnt({n})")
        self.q = self.q[idx[-1]+1:]

def compute_loop(a, KS, CK, NU, P, acc, sh_regs, pv_regs, sh_addr, pv_addr, swap, nbar_extra_first=False):
    M = KS*NU
    NSH = len(sh_regs)
    q = []
    def rd(tag, dst, addr):
        v, off = addr
        assert 0 <= off < 65536, off
        a(f"ds_read_b128 v[{dst}:{dst+3}], v{v} offset:{off}")
        q.append(tag)
    def issue_for(m):
        s, t = divmod(m, NU)
        if t == 0: rd(("sh", s), sh_regs[s % NSH], sh_addr(s))
        rd(("pv", m), pv_regs[m % P], pv_addr(s, t))
    def wait_for(m):
        s, t = divmod(m, NU)
        need = [i for i, x in enumerate(q) if x == ("pv", m) or x == ("sh", s)]
        if need:
            n = len(q) - 1 - max(need)
            assert n <= 15
            a(f"s_waitcnt lgkmcnt({n})")
            del q[:max(need)+1]
    chunk = lambda m: (m // NU) // CK
    stamp(a, 1)
    a("s_barrier")
    stamp(a, 2)
    nxt = 0
    while nxt < min(P, M):
        issue_for(nxt); nxt += 1
    for m in range(M):
        s, t = divmod(m, NU)
        wait_for(m)
        A, B = (pv_regs[m % P], sh_regs[s % NSH])
        if swap: A, B = B, A
        c = "0" if s == 0 else f"v[{acc(t)}:{acc(t)+15}]"
        a(f"v_mfma_f32_32x32x16_bf16 v[{acc(t)}:{acc(t)+15}], v[{A}:{A+3}], v[{B}:{B+3}], {c}")
        while nxt < M and nxt <= m + P:
            if chunk(nxt) != chunk(nxt-1) and (nxt // NU) % CK == 0 and nxt % NU == 0:
                if nxt == m + P and m + 1 < M and P > 1:
                    break
                a("s_waitcnt lgkmcnt(0)"); q.clear()
                stamp(a, 4 + 2*chunk(nxt))
                a("s_barrier")
                stamp(a, 5 + 2*chunk(nxt))
            issue_for(nxt); nxt += 1
    stamp(a, 50)

def lane_consts(a):
    a("v_lshlrev_b32 v1, 4, v0")
    a("v_and_b32 v2, 31, v0")
    a("v_lshrrev_b32 v3, 5, v0")

def mod_vec_loads(a, vq, dst, voff, srd_, vec, tag):
    for qq in range(4):
        a(f"s_mov_b32 s90, {qq*15360 + vec*2560}")
        a(f"buffer_load_dwordx4 v[{dst+4*qq}:{dst+4*qq+3}], v{voff}, s[{srd_}:{srd_+3}], s90 offen")
        vq.issue(tag)
def mod_vec_sum(a, dst, src, outn=4):
    for j in range(4):
        a(f"v_add_f32 v{src+j}, v{src+j}, v{src+4+j}")
        a(f"v_add_f32 v{src+8+j}, v{src+8+j}, v{src+12+j}")
    for j in range(4):
        a(f"v_add_f32 v{src+j}, v{src+j}, v{src+8+j}")
    round_bf16_4(a, dst, src)
def round_bf16_4(a, dst, src):
    a(f"v_cvt_pk_bf16_f32 v{src}, v{src}, v{src+1}")
    a(f"v_cvt_pk_bf16_f32 v{src+2}, v{src+2}, v{src+3}")
    a(f"v_and_b32 v{dst+1}, 0xffff0000, v{src}")
    a(f"v_and_b32 v{dst+3}, 0xffff0000, v{src+2}")
    a(f"v_lshlrev_b32 v{dst}, 16, v{src}")
    a(f"v_lshlrev_b32 v{dst+2}, 16, v{src+2}")

SRD_A, SRD_B, SRD_M, SRD_E0, SRD_E1, SRD_E2 = 44, 48, 52, 56, 60, 64
S_RB, S_CG, S_J = 68, 69, 70

def modulated_loader(a, end, *, NC, nA, a_chunk_bytes, RA, lds_A, lds_B, lds_tab, vec_shift, vec_scale,
                     korder, ln2, b_tb_stride, qscale_sgpr=None, lds_stat=None):
    vq = VmQ(a)
    CK = 4
    a(f"s_sub_u32 s{S_J}, s{S_WAVE}, 4")
    lane_consts(a)
    a(f"s_lshl_b32 s71, s{S_J}, 6")
    a("v_add_u32 v4, s71, v0")
    a("v_lshlrev_b32 v5, 4, v4")
    a("v_min_u32 v5, 0x9f0, v5")
    mod_vec_loads(a, vq, 64, 5, SRD_M, vec_shift, "T")
    mod_vec_loads(a, vq, 80, 5, SRD_M, vec_scale, "T")
    if ln2:
        a(f"s_lshl_b32 s72, s{S_RB}, 2")
        a(f"s_add_u32 s72, s72, s{S_J}")
        a("s_lshl_b32 s72, s72, 8")
        a("v_lshlrev_b32 v6, 3, v2")
        a("v_add_u32 v6, s72, v6")
        for c in range(8):
            a(f"s_mov_b32 s90, {c*2048*8}")
            a(f"buffer_load_dwordx2 v[{96+2*c}:{97+2*c}], v6, s[{SRD_E0}:{SRD_E0+3}], s90 offen")
            vq.issue("T")
    a(f"s_lshl_b32 s72, s{S_J}, 10")
    a("v_add_u32 v7, s72, v1")
    a(f"s_mul_i32 s73, s{S_CG}, {NC*a_chunk_bytes}")
    a(f"s_lshl_b32 s74, s{S_RB}, 2")
    a(f"s_mul_i32 s74, s74, {b_tb_stride}")
    RAW = 128
    def issue_ops(c):
        ops = []
        for tb in range(4):
            r = RAW + (c % 3)*16 + tb*4
            ops.append([f"s_add_u32 s75, s74, {tb*b_tb_stride + c*CK*1024}",
                        f"buffer_load_dwordx4 v[{r}:{r+3}], v7, s[{SRD_B}:{SRD_B+3}], s75 offen"])
        for n in range(nA):
            ops.append([f"s_add_u32 m0, s72, {lds_A + (c % RA)*a_chunk_bytes + n*4096}",
                        f"s_add_u32 s75, s73, {c*a_chunk_bytes + n*4096}",
                        f"buffer_load_dwordx4 v7, s[{SRD_A}:{SRD_A+3}], s75 offen lds"])
        return ops
    def emit_op(op, c):
        for x in op: a(x)
        vq.issue(("I", c))
    def issue(c):
        for op in issue_ops(c): emit_op(op, c)
    for c in range(2): issue(c)
    stamp(a, 1)
    vq.wait("T")
    mod_vec_sum(a, 8, 64)
    for j in range(4):
        a(f"v_add_f32 v{80+j}, v{80+j}, v{84+j}")
        a(f"v_add_f32 v{88+j}, v{88+j}, v{92+j}")
    for j in range(4):
        a(f"v_add_f32 v{80+j}, v{80+j}, v{88+j}")
    round_bf16_4(a, 12, 80)
    for j in range(4):
        a(f"v_add_f32 v{80+j}, 1.0, v{12+j}")
    round_bf16_4(a, 12, 80)
    if qscale_sgpr is not None:
        for j in range(8):
            a(f"v_mul_f32 v{8+j}, s{qscale_sgpr}, v{8+j}")
    a(f"v_add_u32 v6, {lds_tab}, v5")
    a("ds_write_b128 v6, v[12:15]")
    a("ds_write_b128 v6, v[8:11] offset:2560")
    if ln2:
        for c in range(1, 8):
            a(f"v_add_f32 v96, v96, v{96+2*c}")
            a(f"v_add_f32 v97, v97, v{97+2*c}")
        a(f"v_mul_f32 v96, {fl(1.0/640)}, v96")
        a(f"v_mul_f32 v97, {fl(1.0/640)}, v97")
        a("v_fma_f32 v97, -v96, v96, v97")
        a("v_max_f32 v97, 0, v97")
        a(f"v_add_f32 v97, {fl(1e-5)}, v97")
        a("v_rsq_f32 v98, v97")
        a("s_nop 0")
        a("v_mul_f32 v99, v96, v98")
        a("v_sub_f32 v99, 0, v99")
        a(f"s_lshl_b32 s75, s{S_J}, 8")
        a(f"s_add_u32 s75, s75, {lds_stat}")
        a("v_lshl_add_u32 v6, v2, 3, s75")
        a("ds_write_b64 v6, v[98:99]")
    a("s_waitcnt lgkmcnt(0)")
    a("s_barrier")
    if ln2:
        a(f"v_lshlrev_b32 v6, 3, v2")
        a(f"v_add_u32 v6, {lds_stat}, v6")
        for tb in range(4):
            a(f"ds_read_b64 v[{100+2*tb}:{101+2*tb}], v6 offset:{256*tb}")
    hshift, second = (5, 16) if korder == "nat" else (4, 32)
    a(f"v_lshlrev_b32 v9, {hshift}, v3")
    a(f"s_lshl_b32 s75, s{S_J}, 6")
    a(f"s_add_u32 s75, s75, {lds_tab}")
    a("v_add_u32 v9, s75, v9")
    a(f"s_add_u32 s75, s72, {lds_B}")
    a("v_add_u32 v10, s75, v1")
    T, G, SH = 16, 32, 40
    for c in range(NC):
        toff = c*CK*64
        a(f"ds_read_b128 v[{G}:{G+3}], v9 offset:{toff}")
        a(f"ds_read_b128 v[{G+4}:{G+7}], v9 offset:{toff+second}")
        a(f"ds_read_b128 v[{SH}:{SH+3}], v9 offset:{toff+2560}")
        a(f"ds_read_b128 v[{SH+4}:{SH+7}], v9 offset:{toff+2560+second}")
        vq.wait(("I", c))
        a("s_waitcnt lgkmcnt(0)")
        stamp(a, 30 + c)
        pend = issue_ops(c + 2) if c + 2 < NC else []
        valu = []
        for tb in range(4):
            r = RAW + (c % 3)*16 + tb*4
            t = T + 8*(tb % 2)
            o = 48 + 4*(tb % 2)
            for j in range(4):
                valu.append(f"v_lshlrev_b32 v{t+2*j}, 16, v{r+j}")
                valu.append(f"v_and_b32 v{t+2*j+1}, 0xffff0000, v{r+j}")
            if ln2:
                for j in range(8):
                    valu.append(f"v_fma_f32 v{t+j}, v{t+j}, v{100+2*tb}, v{101+2*tb}")
            for j in range(8):
                valu.append(f"v_fma_f32 v{t+j}, v{t+j}, v{G+j}, v{SH+j}")
            for j in range(4):
                valu.append(f"v_cvt_pk_bf16_f32 v{o+j}, v{t+2*j}, v{t+2*j+1}")
            valu.append(f"ds_write_b128 v10, v[{o}:{o+3}] offset:{(c % 2)*16384 + tb*4096}")
        step = max(1, len(valu) // (len(pend) + 1)) if pend else 10**9
        k = 0
        for i, x in enumerate(valu):
            a(x)
            if (i + 1) % step == 0 and k < len(pend):
                emit_op(pend[k], c + 2); k += 1
        while k < len(pend):
            emit_op(pend[k], c + 2); k += 1
        a("s_waitcnt lgkmcnt(0)")
        stamp(a, 4 + 2*c)
        a("s_barrier")
        stamp(a, 5 + 2*c)
    a(f"s_branch {end}")

def plain_loader(a, end, *, NC, R, lds_ring, a_tb_stride_k, KS, lookahead=2):
    vq = VmQ(a)
    SLOT = 36864
    a(f"s_sub_u32 s{S_J}, s{S_WAVE}, 4")
    lane_consts(a)
    a(f"s_lshl_b32 s72, s{S_J}, 10")
    a("v_add_u32 v7, s72, v1")
    a(f"s_mul_i32 s73, s{S_CG}, {KS*2560}")
    a(f"s_lshl_b32 s74, s{S_RB}, 1")
    a(f"s_mul_i32 s74, s74, {KS*1024}")
    stamp(a, 57)
    def issue(c):
        base = lds_ring + (c % R)*SLOT
        for n in range(4):
            tb, hl = divmod(n, 2)
            a(f"s_add_u32 m0, s72, {base + 20480 + n*4096}")
            a(f"s_add_u32 s75, s74, {tb*KS*1024 + c*8192 + hl*4096}")
            a(f"buffer_load_dwordx4 v7, s[{SRD_B}:{SRD_B+3}], s75 offen lds")
            vq.issue(("I", c))
        for n in range(5):
            a(f"s_add_u32 m0, s72, {base + n*4096}")
            a(f"s_add_u32 s75, s73, {c*20480 + n*4096}")
            a(f"buffer_load_dwordx4 v7, s[{SRD_A}:{SRD_A+3}], s75 offen lds")
            vq.issue(("I", c))
    LA = lookahead
    issued = 0
    def issue_upto(n):
        nonlocal issued
        while issued < min(n, NC):
            issue(issued)
            if issued < 3: stamp(a, 54 + issued)
            issued += 1
    issue_upto(LA)
    stamp(a, 1)
    for c in range(NC):
        vq.wait(("I", c))
        stamp(a, 4 + 2*c)
        a("s_barrier")
        stamp(a, 5 + 2*c)
        issue_upto(min(c + R, c + 1 + LA))
    a(f"s_branch {end}")

def lds_addr_set(a, dst, nseg, extra_v):
    for k in range(nseg):
        if k == 0: a(f"v_mov_b32 v{dst}, v{extra_v}")
        else: a(f"v_add_u32 v{dst+k}, {k*65536}, v{extra_v}")
def seg(dst, off): return (dst + off // 65536, off % 65536)
```

```python
from asmlib import *
from layout import *

P_X, P_WQKV, P_WO, P_BX, P_WG, P_WU, P_WD, P_C = 16, 18, 20, 22, 24, 26, 28, 30
P_WMOD, P_OUT, P_DBG, P_WS = 32, 34, 36, 38
S_WAVE, S_NONCE, S_DEAD = 40, 41, 42
SRD_FLAG = 96
LOG2E = 1.4426950408889634
SC = " sc1"

def f32bits(x):
    import struct
    return struct.unpack("<I", struct.pack("<f", x))[0]
def fl(x): return hex(f32bits(x))

class Ctx:
    def __init__(self, persistent, instrument):
        self.persistent, self.instrument = persistent, instrument
        self.stamp_base = 0

CTX = Ctx(False, False)

def stamp(a, idx):
    if not CTX.instrument: return
    a("s_memtime s[12:13]")
    a("s_waitcnt lgkmcnt(0)")
    a(f"v_writelane_b32 v255, s12, {idx}")

def prologue(a, nwg, end_label):
    a(f"s_cmp_ge_u32 s2, {nwg}")
    a(f"s_cbranch_scc1 {end_label}")
    a("s_load_dwordx16 s[16:31], s[0:1], 0")
    a("s_load_dwordx8 s[32:39], s[0:1], 64")
    a("v_lshrrev_b32 v1, 6, v0")
    a("v_and_b32 v0, 63, v0")
    a(f"v_readfirstlane_b32 s{S_WAVE}, v1")
    a("s_waitcnt lgkmcnt(0)")

def srd(a, d, ptr, off, size):
    if off:
        a(f"s_add_u32 s{d}, s{ptr}, {hex(off)}")
        a(f"s_addc_u32 s{d+1}, s{ptr+1}, 0")
    else:
        a(f"s_mov_b32 s{d}, s{ptr}")
        a(f"s_mov_b32 s{d+1}, s{ptr+1}")
    a(f"s_mov_b32 s{d+2}, {hex(size)}")
    a(f"s_mov_b32 s{d+3}, 0x20000")

def divmod_const(a, q, r, x, c):
    m = -(-(1 << 32) // c)
    a(f"s_mul_hi_u32 s{q}, s{x}, {hex(m)}")
    if r is not None:
        a(f"s_mul_i32 s{r}, s{q}, {c}")
        a(f"s_sub_u32 s{r}, s{x}, s{r}")

def vdiv_small(a, q, x, c, tmp=None):
    sh = 20
    m = -(-(1 << sh) // c)
    assert all((v*m) >> sh == v // c for v in range(4096)) and m < (1 << 24)
    a(f"v_mul_u32_u24 v{q}, {m}, v{x}")
    a(f"v_lshrrev_b32 v{q}, {sh}, v{q}")

def exec_lo32(a):
    a("s_mov_b32 exec_lo, -1")
    a("s_mov_b32 exec_hi, 0")
def exec_all(a): a("s_mov_b64 exec, -1")

def lane_consts(a):
    a("v_lshlrev_b32 v1, 4, v0")
    a("v_and_b32 v2, 31, v0")
    a("v_lshrrev_b32 v3, 5, v0")

class VmQ:
    def __init__(self, a): self.a, self.q = a, []
    def issue(self, tag, n=1): self.q += [tag]*n
    def wait(self, tag):
        idx = [i for i, t in enumerate(self.q) if t == tag]
        if not idx: return
        n = len(self.q) - 1 - idx[-1]
        assert n <= 63, n
        self.a(f"s_waitcnt vmcnt({n})")
        self.q = self.q[idx[-1]+1:]
    def drain(self):
        self.a("s_waitcnt vmcnt(0)")
        self.q = []

def flag_off(phase, idx): return 64*(1 + phase*256 + idx)

def barrier_if_persistent(a):
    if CTX.persistent: a("s_barrier")

def signal(a, phase, s_idx):
    if not CTX.persistent: return
    L = a.uid("sig")
    a(f"s_cmp_lg_u32 s{S_WAVE}, 0")
    a(f"s_cbranch_scc1 {L}")
    a(f"s_lshl_b32 s94, s{s_idx}, 6")
    a(f"s_add_u32 s94, s94, {flag_off(phase, 0)}")
    a(f"v_mov_b32 v250, s{S_NONCE}")
    a("v_mov_b32 v251, 0")
    a("s_mov_b64 exec, 1")
    a(f"buffer_store_dword v250, v251, s[{SRD_FLAG}:{SRD_FLAG+3}], s94 offen sc1")
    a("s_mov_b64 exec, -1")
    a.label(L)

def wait_flags(a, idx_vregs, phase):
    if not CTX.persistent: return
    L, Lp, Ld = a.uid("wf"), a.uid("wf_poll"), a.uid("wf_done")
    a(f"s_cmp_lg_u32 s{S_WAVE}, 0")
    a(f"s_cbranch_scc1 {L}")
    a(f"s_cmp_lg_u32 s{S_DEAD}, 0")
    a(f"s_cbranch_scc1 {L}")
    for r in idx_vregs:
        a(f"v_lshlrev_b32 v{r}, 6, v{r}")
        a(f"v_add_u32 v{r}, {flag_off(phase, 0)}, v{r}")
    a("s_mov_b32 s94, 30000")
    a.label(Lp)
    for i, r in enumerate(idx_vregs):
        a(f"buffer_load_dword v{250+i}, v{r}, s[{SRD_FLAG}:{SRD_FLAG+3}], 0 offen sc1")
    a("s_waitcnt vmcnt(0)")
    a(f"v_cmp_ne_u32 vcc, s{S_NONCE}, v250")
    for i in range(1, len(idx_vregs)):
        a(f"v_cmp_ne_u32 s[92:93], s{S_NONCE}, v{250+i}")
        a("s_nop 1")
        a("s_or_b64 vcc, vcc, s[92:93]")
    a("s_sub_u32 s94, s94, 1")
    a("s_cmp_eq_u32 s94, 0")
    a(f"s_cbranch_scc1 {Ld}")
    a(f"s_cbranch_vccnz {Lp}")
    a(f"s_branch {L}")
    a.label(Ld)
    a(f"s_mov_b32 s{S_DEAD}, 1")
    a.label(L)
```

```python
from common import *

def compute_loop(a, KS, CK, NU, P, acc, sh_regs, pv_regs, sh_reads, pv_reads, swap):
    M = KS*NU
    NSH = len(sh_regs)
    q = []
    def issue_for(m):
        s, t = divmod(m, NU)
        if t == 0:
            for ins in sh_reads(s, sh_regs[s % NSH]): a(ins); q.append(("sh", s))
        for ins in pv_reads(s, t, pv_regs[m % P]): a(ins); q.append(("pv", m))
        assert len(q) <= 15, len(q)
    def wait_for(m):
        s, t = divmod(m, NU)
        need = [i for i, x in enumerate(q) if x == ("pv", m) or x == ("sh", s)]
        if need:
            n = len(q) - 1 - max(need)
            a(f"s_waitcnt lgkmcnt({n})")
            del q[:max(need)+1]
    chunk = lambda m: (m // NU) // CK
    stamp(a, 1)
    a("s_barrier")
    stamp(a, 2)
    nxt = 0
    while nxt < min(P, M):
        issue_for(nxt); nxt += 1
    for m in range(M):
        s, t = divmod(m, NU)
        wait_for(m)
        A, B = (pv_regs[m % P], sh_regs[s % NSH])
        if swap: A, B = B, A
        c = "0" if s == 0 else f"v[{acc(t)}:{acc(t)+15}]"
        a(f"v_mfma_f32_32x32x16_bf16 v[{acc(t)}:{acc(t)+15}], v[{A}:{A+3}], v[{B}:{B+3}], {c}")
        while nxt < M and nxt <= m + P:
            if nxt % (NU*CK) == 0:
                if nxt == m + P and m + 1 < M and P > 1:
                    break
                a("s_waitcnt lgkmcnt(0)"); q.clear()
                stamp(a, 4 + 2*chunk(nxt))
                a("s_barrier")
                stamp(a, 5 + 2*chunk(nxt))
            issue_for(nxt); nxt += 1
    stamp(a, 50)

def b128(reg, vaddr, off):
    assert 0 <= off < 65536, off
    return [f"ds_read_b128 v[{reg}:{reg+3}], v{vaddr} offset:{off}"]
def tr2(reg, vaddr, off0, off1):
    assert 0 <= off0 < 65536 and 0 <= off1 < 65536, (off0, off1)
    return [f"ds_read_b64_tr_b16 v[{reg}:{reg+1}], v{vaddr} offset:{off0}",
            f"ds_read_b64_tr_b16 v[{reg+2}:{reg+3}], v{vaddr} offset:{off1}"]

def round_bf16_4(a, dst, src):
    a(f"v_cvt_pk_bf16_f32 v{src}, v{src}, v{src+1}")
    a(f"v_cvt_pk_bf16_f32 v{src+2}, v{src+2}, v{src+3}")
    a(f"v_and_b32 v{dst+1}, 0xffff0000, v{src}")
    a(f"v_and_b32 v{dst+3}, 0xffff0000, v{src+2}")
    a(f"v_lshlrev_b32 v{dst}, 16, v{src}")
    a(f"v_lshlrev_b32 v{dst+2}, 16, v{src+2}")

SRD_A, SRD_B, SRD_M, SRD_E0, SRD_E1, SRD_E2 = 44, 48, 52, 56, 60, 64
SRD_A2 = 64
S_RB, S_CG, S_J = 68, 69, 70

def tr_lane_parts(a, r, nh, c):
    a(f"v_bfe_u32 v{r}, v0, 2, 2")
    a(f"v_bfe_u32 v{nh}, v0, 4, 1")
    a(f"v_and_b32 v{c}, 3, v0")

def modulated_loader(a, *, NC, a_ops, RA, lds_B, lds_tab, vec_shift, vec_scale, korder, ln2, pre_deps,
                     qscale_sgpr=None, lds_stat=None):
    vq = VmQ(a)
    CK = 4
    RAW = 128
    def emit(op, tag):
        for x in op: a(x)
        vq.issue(tag)
    def b_ops(c):
        ops = []
        for tb in range(4):
            r = RAW + (c % 3)*16 + tb*4
            ops.append([f"s_add_u32 s75, s74, {tb*40960 + c*CK*1024}",
                        f"buffer_load_dwordx4 v[{r}:{r+3}], v7, s[{SRD_B}:{SRD_B+3}], s75 offen{SC}"])
        return ops
    a(f"s_lshl_b32 s72, s{S_J}, 10")
    a("v_add_u32 v7, s72, v1")
    a(f"s_lshl_b32 s74, s{S_RB}, 2")
    a("s_mul_i32 s74, s74, 40960")
    NA0 = 3
    for c in range(NA0):
        for op in a_ops(c): emit(op, ("A", c))
    stamp(a, 57)
    pre_deps()
    stamp(a, 56)
    a(f"s_lshl_b32 s71, s{S_J}, 6")
    a("v_add_u32 v4, s71, v0")
    a("v_lshlrev_b32 v5, 4, v4")
    a("v_min_u32 v5, 0x9f0, v5")
    a(f"s_mov_b32 s75, {vec_shift*2560}")
    a(f"buffer_load_dwordx4 v[8:11], v5, s[{SRD_M}:{SRD_M+3}], s75 offen{SC}")
    vq.issue("T")
    a(f"s_mov_b32 s75, {vec_scale*2560}")
    a(f"buffer_load_dwordx4 v[12:15], v5, s[{SRD_M}:{SRD_M+3}], s75 offen{SC}"); vq.issue("T")
    if ln2:
        a(f"s_lshl_b32 s75, s{S_RB}, 2")
        a(f"s_add_u32 s75, s75, s{S_J}")
        a("s_lshl_b32 s75, s75, 11")
        a("v_lshlrev_b32 v6, 6, v2")
        a("v_lshl_add_u32 v6, v3, 5, v6")
        a(f"buffer_load_dwordx4 v[96:99], v6, s[{SRD_E0}:{SRD_E0+3}], s75 offen{SC}"); vq.issue("T")
        a(f"buffer_load_dwordx4 v[100:103], v6, s[{SRD_E0}:{SRD_E0+3}], s75 offen offset:16{SC}"); vq.issue("T")
    for c in range(2):
        for op in b_ops(c): emit(op, ("B", c))
    stamp(a, 55)
    vq.wait("T")
    for j in range(4): a(f"v_add_f32 v{80+j}, 1.0, v{12+j}")
    round_bf16_4(a, 12, 80)
    if qscale_sgpr is not None:
        for j in range(8): a(f"v_mul_f32 v{8+j}, s{qscale_sgpr}, v{8+j}")
    a(f"v_add_u32 v6, {lds_tab}, v5")
    a("ds_write_b128 v6, v[12:15]")
    a("ds_write_b128 v6, v[8:11] offset:2560")
    if ln2:
        a("v_add_f32 v96, v96, v98"); a("v_add_f32 v97, v97, v99")
        a("v_add_f32 v100, v100, v102"); a("v_add_f32 v101, v101, v103")
        a("v_add_f32 v96, v96, v100"); a("v_add_f32 v97, v97, v101")
        for x in (96, 97):
            a(f"v_mov_b32 v98, v{x}")
            a("s_nop 1")
            a(f"v_permlane32_swap_b32 v{x}, v98")
            a("s_nop 1")
            a(f"v_add_f32 v{x}, v{x}, v98")
        a(f"v_mul_f32 v96, {fl(1.0/640)}, v96")
        a(f"v_mul_f32 v97, {fl(1.0/640)}, v97")
        a("v_fma_f32 v97, -v96, v96, v97")
        a("v_max_f32 v97, 0, v97")
        a(f"v_add_f32 v97, {fl(1e-5)}, v97")
        a("v_rsq_f32 v98, v97")
        a("s_nop 0")
        a("v_mul_f32 v99, v96, v98")
        a("v_sub_f32 v99, 0, v99")
        a(f"s_lshl_b32 s75, s{S_J}, 8")
        a(f"s_add_u32 s75, s75, {lds_stat}")
        a("v_lshl_add_u32 v6, v2, 3, s75")
        a("ds_write_b64 v6, v[98:99]")
    a("s_waitcnt lgkmcnt(0)")
    a("s_barrier")
    if ln2:
        a("v_lshlrev_b32 v6, 3, v2")
        a(f"v_add_u32 v6, {lds_stat}, v6")
        for tb in range(4): a(f"ds_read_b64 v[{100+2*tb}:{101+2*tb}], v6 offset:{256*tb}")
    hshift, second = (5, 16) if korder == "nat" else (4, 32)
    a(f"v_lshlrev_b32 v9, {hshift}, v3")
    a(f"s_lshl_b32 s75, s{S_J}, 6")
    a(f"s_add_u32 s75, s75, {lds_tab}")
    a("v_add_u32 v9, s75, v9")
    a(f"s_add_u32 s75, s72, {lds_B}")
    a("v_add_u32 v10, s75, v1")
    T, G, SH = 16, 32, 40
    for c in range(NC):
        toff = c*CK*64
        a(f"ds_read_b128 v[{G}:{G+3}], v9 offset:{toff}")
        a(f"ds_read_b128 v[{G+4}:{G+7}], v9 offset:{toff+second}")
        a(f"ds_read_b128 v[{SH}:{SH+3}], v9 offset:{toff+2560}")
        a(f"ds_read_b128 v[{SH+4}:{SH+7}], v9 offset:{toff+2560+second}")
        vq.wait(("B", c))
        a("s_waitcnt lgkmcnt(0)")
        stamp(a, 30 + c)
        pend = []
        if c + 2 < NC: pend += [(op, ("B", c+2)) for op in b_ops(c+2)]
        if c >= 1 and c + 2 < NC and c + 2 >= NA0: pend += [(op, ("A", c+2)) for op in a_ops(c+2)]
        valu = []
        for tb in range(4):
            r = RAW + (c % 3)*16 + tb*4
            t = T + 8*(tb % 2)
            o = 48 + 4*(tb % 2)
            for j in range(4):
                valu.append(f"v_lshlrev_b32 v{t+2*j}, 16, v{r+j}")
                valu.append(f"v_and_b32 v{t+2*j+1}, 0xffff0000, v{r+j}")
            if ln2:
                for j in range(8): valu.append(f"v_fma_f32 v{t+j}, v{t+j}, v{100+2*tb}, v{101+2*tb}")
            for j in range(8): valu.append(f"v_fma_f32 v{t+j}, v{t+j}, v{G+j}, v{SH+j}")
            for j in range(4): valu.append(f"v_cvt_pk_bf16_f32 v{o+j}, v{t+2*j}, v{t+2*j+1}")
            valu.append(f"ds_write_b128 v10, v[{o}:{o+3}] offset:{(c % 2)*16384 + tb*4096}")
        step = max(1, len(valu) // (len(pend) + 1)) if pend else 10**9
        k = 0
        for i, x in enumerate(valu):
            a(x)
            if (i + 1) % step == 0 and k < len(pend):
                emit(*pend[k]); k += 1
        while k < len(pend):
            emit(*pend[k]); k += 1
        vq.wait(("A", c))
        a("s_waitcnt lgkmcnt(0)")
        stamp(a, 4 + 2*c)
        a("s_barrier")
        stamp(a, 5 + 2*c)

def thin_loader(a, *, NC, KS, R, lds_res, pre_deps, extra_barriers):
    vq = VmQ(a)
    SLOT = 36864
    a(f"s_lshl_b32 s72, s{S_J}, 10")
    a("v_add_u32 v7, s72, v1")
    for p in range(5):
        a(f"v_add_u32 v8, {64*p}, v0")
        vdiv_small(a, 9, 8, 10)
        a("v_mul_u32_u24 v10, 10, v9")
        a("v_sub_u32 v10, v8, v10")
        a("v_mul_u32_u24 v9, 1280, v9")
        a(f"v_lshl_add_u32 v{16+p}, v10, 4, v9")
    a(f"s_mul_i32 s73, s{S_J}, {32*1280}")
    a(f"s_mul_i32 s76, s{S_CG}, 160")
    a("s_add_u32 s73, s73, s76")
    a(f"s_mul_i32 s77, s{S_J}, 5120")
    a(f"s_lshl_b32 s74, s{S_RB}, 1")
    a(f"s_mul_i32 s74, s74, {KS*1024}")
    def issue_a(c):
        for p in range(5):
            a(f"s_add_u32 m0, s77, {(c % R)*SLOT + p*1024}")
            a(f"s_add_u32 s75, s73, {c*128*1280}")
            a(f"buffer_load_dwordx4 v{16+p}, s[{SRD_A}:{SRD_A+3}], s75 offen lds")
            vq.issue(("A", c))
    def issue_b(c):
        for n in range(4):
            tb, hl = divmod(n, 2)
            a(f"s_add_u32 m0, s72, {(c % R)*SLOT + 20480 + n*4096}")
            a(f"s_add_u32 s75, s74, {tb*KS*1024 + c*8192 + hl*4096}")
            a(f"buffer_load_dwordx4 v7, s[{SRD_B}:{SRD_B+3}], s75 offen{SC} lds")
            vq.issue(("B", c))
    for c in range(2): issue_a(c)
    a(f"s_lshl_b32 s78, s{S_RB}, 1")
    a("s_mul_i32 s78, s78, 40960")
    a(f"s_mul_i32 s79, s{S_CG}, 5120")
    a("s_add_u32 s78, s78, s79")
    L = a.uid("res")
    for n in range(3):
        if n == 2:
            a(f"s_cmp_ge_u32 s{S_J}, 2")
            a(f"s_cbranch_scc1 {L}")
        a(f"s_add_u32 s79, s{S_J}, {4*n}")
        a("s_cmp_ge_u32 s79, 5")
        a("s_cselect_b32 s80, 35840, 0")
        a("s_lshl_b32 s79, s79, 10")
        a(f"s_add_u32 m0, s79, {lds_res}")
        a("s_add_u32 s79, s79, s80")
        a("s_add_u32 s79, s79, s78")
        a(f"buffer_load_dwordx4 v1, s[{SRD_E1}:{SRD_E1+3}], s79 offen{SC} lds")
    a.label(L)
    stamp(a, 57)
    pre_deps()
    stamp(a, 56)
    for c in range(2): issue_b(c)
    stamp(a, 1)
    for c in range(NC):
        vq.wait(("B", c))
        vq.wait(("A", c))
        stamp(a, 4 + 2*c)
        a("s_barrier")
        stamp(a, 5 + 2*c)
        if c + 2 < NC:
            issue_b(c + 2); issue_a(c + 2)
    for _ in range(extra_barriers): a("s_barrier")

def lds_addr_set(a, dst, nseg, extra_v):
    for k in range(nseg):
        if k == 0: a(f"v_mov_b32 v{dst}, v{extra_v}")
        else: a(f"v_add_u32 v{dst+k}, {k*65536}, v{extra_v}")
def seg(dst, off): return (dst + off // 65536, off % 65536)
```

```python
import numpy as np
S, D, H, DH, F = 2048, 640, 32, 20, 1536

WS_FLAG = 0x0000000; SZ_FLAG = 0x20000
WS_MODF = 0x0080000; SZ_MODF = 3840*4
WS_XH   = 0x0100000; SZ_XH   = 64*40*1024
WS_XR   = 0x0400000; SZ_XR   = 64*40*1024
WS_Q    = 0x0800000; QT = 1280;  SZ_Q  = 32*64*QT
WS_KV   = 0x0C00000; KVT = 2560; SZ_KV = 32*64*KVT
WS_O    = 0x1400000; SZ_O    = 64*40*1024
WS_X1   = 0x1A00000; SZ_X1   = 64*40*1024
WS_STAT = 0x1D00000; SZ_STAT = 2048*64
WS_HH   = 0x2400000; SZ_HH   = 64*96*1024
WS_TS   = 0x3000000; SZ_TS = 8*2048*256
WS_END  = 0x3500000

def k_nat(s, h, i): return 16*s + 8*h + i
def k_d(s, h, i):   return 16*s + 8*(i//4) + 4*h + (i % 4)

def act_unfrag(Fr, korder):
    nb, ns = Fr.shape[:2]
    X = np.zeros((nb*32, ns*16), Fr.dtype)
    for h in range(2):
        for i in range(8):
            ks = np.array([korder(s, h, i) for s in range(ns)])
            X[:, ks] = Fr[:, :, h*32:(h+1)*32, i].transpose(0, 2, 1).reshape(nb*32, ns)
    return X
```

```python
from asmlib import *
from layout import *

P_X, P_WQKV, P_WO, P_BX, P_WG, P_WU, P_WD, P_C = 16, 18, 20, 22, 24, 26, 28, 30
P_WMOD, P_OUT, P_DBG, P_WS = 32, 34, 36, 38
S_WAVE, S_NONCE, S_DEAD = 40, 41, 42
SRD_FLAG = 96
LOG2E = 1.4426950408889634
SC = " sc1"

def f32bits(x):
    import struct
    return struct.unpack("<I", struct.pack("<f", x))[0]
def fl(x): return hex(f32bits(x))

class Ctx:
    def __init__(self, persistent, instrument):
        self.persistent, self.instrument = persistent, instrument
        self.stamp_base = 0

CTX = Ctx(True, False)

def stamp(a, idx):
    if not CTX.instrument: return
    a("s_memtime s[12:13]")
    a("s_waitcnt lgkmcnt(0)")
    a(f"v_writelane_b32 v255, s12, {idx}")

def prologue(a, nwg, end_label):
    a(f"s_cmp_ge_u32 s2, {nwg}")
    a(f"s_cbranch_scc1 {end_label}")
    a("s_load_dwordx16 s[16:31], s[0:1], 0")
    a("s_load_dwordx8 s[32:39], s[0:1], 64")
    a("v_lshrrev_b32 v1, 6, v0")
    a("v_and_b32 v0, 63, v0")
    a(f"v_readfirstlane_b32 s{S_WAVE}, v1")
    a("s_waitcnt lgkmcnt(0)")

def srd(a, d, ptr, off, size):
    if off:
        a(f"s_add_u32 s{d}, s{ptr}, {hex(off)}")
        a(f"s_addc_u32 s{d+1}, s{ptr+1}, 0")
    else:
        a(f"s_mov_b32 s{d}, s{ptr}")
        a(f"s_mov_b32 s{d+1}, s{ptr+1}")
    a(f"s_mov_b32 s{d+2}, {hex(size)}")
    a(f"s_mov_b32 s{d+3}, 0x20000")

def divmod_const(a, q, r, x, c):
    m = -(-(1 << 32) // c)
    a(f"s_mul_hi_u32 s{q}, s{x}, {hex(m)}")
    if r is not None:
        a(f"s_mul_i32 s{r}, s{q}, {c}")
        a(f"s_sub_u32 s{r}, s{x}, s{r}")

def vdiv_small(a, q, x, c, tmp=None):
    sh = 20
    m = -(-(1 << sh) // c)
    assert all((v*m) >> sh == v // c for v in range(4096)) and m < (1 << 24)
    a(f"v_mul_u32_u24 v{q}, {m}, v{x}")
    a(f"v_lshrrev_b32 v{q}, {sh}, v{q}")

def exec_lo32(a):
    a("s_mov_b32 exec_lo, -1")
    a("s_mov_b32 exec_hi, 0")
def exec_all(a): a("s_mov_b64 exec, -1")

def lane_consts(a):
    a("v_lshlrev_b32 v1, 4, v0")
    a("v_and_b32 v2, 31, v0")
    a("v_lshrrev_b32 v3, 5, v0")

class VmQ:
    def __init__(self, a): self.a, self.q = a, []
    def issue(self, tag, n=1): self.q += [tag]*n
    def wait(self, tag):
        idx = [i for i, t in enumerate(self.q) if t == tag]
        if not idx: return
        n = len(self.q) - 1 - idx[-1]
        assert n <= 63, n
        self.a(f"s_waitcnt vmcnt({n})")
        self.q = self.q[idx[-1]+1:]
    def drain(self):
        self.a("s_waitcnt vmcnt(0)")
        self.q = []

def flag_off(phase, idx): return 64*(1 + phase*256 + idx)

def barrier_if_persistent(a):
    if CTX.persistent: a("s_barrier")

def signal(a, phase, s_idx):
    if not CTX.persistent: return
    L = a.uid("sig")
    a(f"s_cmp_lg_u32 s{S_WAVE}, 0")
    a(f"s_cbranch_scc1 {L}")
    a(f"s_lshl_b32 s94, s{s_idx}, 6")
    a(f"s_add_u32 s94, s94, {flag_off(phase, 0)}")
    a(f"v_mov_b32 v250, s{S_NONCE}")
    a("v_mov_b32 v251, 0")
    a("s_mov_b64 exec, 1")
    a(f"buffer_store_dword v250, v251, s[{SRD_FLAG}:{SRD_FLAG+3}], s94 offen sc1")
    a("s_mov_b64 exec, -1")
    a.label(L)

def wait_flags(a, idx_vregs, phase, wave=0):
    if not CTX.persistent: return
    L, Lp, Ld = a.uid("wf"), a.uid("wf_poll"), a.uid("wf_done")
    a(f"s_cmp_lg_u32 s{S_WAVE}, {wave}")
    a(f"s_cbranch_scc1 {L}")
    a(f"s_cmp_lg_u32 s{S_DEAD}, 0")
    a(f"s_cbranch_scc1 {L}")
    for r in idx_vregs:
        a(f"v_lshlrev_b32 v{r}, 6, v{r}")
        a(f"v_add_u32 v{r}, {flag_off(phase, 0)}, v{r}")
    a("s_mov_b32 s94, 30000")
    a.label(Lp)
    for i, r in enumerate(idx_vregs):
        a(f"buffer_load_dword v{250+i}, v{r}, s[{SRD_FLAG}:{SRD_FLAG+3}], 0 offen sc1")
    a("s_waitcnt vmcnt(0)")
    a(f"v_cmp_ne_u32 vcc, s{S_NONCE}, v250")
    for i in range(1, len(idx_vregs)):
        a(f"v_cmp_ne_u32 s[92:93], s{S_NONCE}, v{250+i}")
        a("s_nop 1")
        a("s_or_b64 vcc, vcc, s[92:93]")
    a("s_sub_u32 s94, s94, 1")
    a("s_cmp_eq_u32 s94, 0")
    a(f"s_cbranch_scc1 {Ld}")
    a(f"s_cbranch_vccnz {Lp}")
    a(f"s_branch {L}")
    a.label(Ld)
    a(f"s_mov_b32 s{S_DEAD}, 1")
    a.label(L)

def poll_granules(a, loads, tagregs, label_base, trips=30000, sleep=2):
    Lp, Ld, L = a.uid(label_base + "_poll"), a.uid(label_base + "_dead"), a.uid(label_base + "_ok")
    a(f"s_mov_b32 s94, {trips}")
    a(f"s_cmp_lg_u32 s{S_DEAD}, 0")
    a(f"s_cselect_b32 s94, 1, s94")
    a.label(Lp)
    for x in loads: a(x)
    a("s_waitcnt vmcnt(0)")
    a(f"v_cmp_ne_u32 vcc, s{S_NONCE}, v{tagregs[0]}")
    for r in tagregs[1:]:
        a(f"v_cmp_ne_u32 s[92:93], s{S_NONCE}, v{r}")
        a("s_nop 1")
        a("s_or_b64 vcc, vcc, s[92:93]")
    a("s_nop 1")
    a(f"s_cbranch_vccz {L}")
    a(f"s_sleep {sleep}")
    a("s_sub_u32 s94, s94, 1")
    a("s_cmp_lg_u32 s94, 0")
    a(f"s_cbranch_scc1 {Lp}")
    a(f"s_mov_b32 s{S_DEAD}, 1")
    a.label(L)

def kernel_setup(a):
    srd(a, SRD_FLAG, P_WS, WS_FLAG, SZ_FLAG)
    a("v_mov_b32 v250, 0")
    a(f"buffer_load_dword v251, v250, s[{SRD_FLAG}:{SRD_FLAG+3}], 0 offen sc1")
    a(f"s_mov_b32 s{S_DEAD}, 0")
def kernel_nonce(a):
    a("v_add_u32 v251, 1, v251")
    a("v_max_u32 v251, 1, v251")
    a("s_nop 0")
    a(f"v_readfirstlane_b32 s{S_NONCE}, v251")
def kernel_publish_nonce(a):
    L = a.uid("pubn")
    a("s_cmp_lg_u32 s2, 0")
    a(f"s_cbranch_scc1 {L}")
    a(f"s_cmp_lg_u32 s{S_WAVE}, 0")
    a(f"s_cbranch_scc1 {L}")
    a(f"v_mov_b32 v250, s{S_NONCE}")
    a("v_mov_b32 v251, 0")
    a("s_mov_b64 exec, 1")
    a(f"buffer_store_dword v250, v251, s[{SRD_FLAG}:{SRD_FLAG+3}], 0 offen sc1")
    a("s_mov_b64 exec, -1")
    a.label(L)
```

```python
from common import *

def compute_loop(a, KS, CK, NU, P, acc, sh_regs, pv_regs, sh_reads, pv_reads, swap, sb=0):
    M = KS*NU
    NSH = len(sh_regs)
    q = []
    def issue_for(m):
        s, t = divmod(m, NU)
        if t == 0:
            for ins in sh_reads(s, sh_regs[s % NSH]): a(ins); q.append(("sh", s))
        for ins in pv_reads(s, t, pv_regs[m % P]): a(ins); q.append(("pv", m))
        assert len(q) <= 15, len(q)
    def wait_for(m):
        s, t = divmod(m, NU)
        need = [i for i, x in enumerate(q) if x == ("pv", m) or x == ("sh", s)]
        if need:
            n = len(q) - 1 - max(need)
            a(f"s_waitcnt lgkmcnt({n})")
            del q[:max(need)+1]
    chunk = lambda m: (m // NU) // CK
    stamp(a, sb+1)
    a("s_barrier")
    stamp(a, sb+2)
    nxt = 0
    while nxt < min(P, M):
        issue_for(nxt); nxt += 1
    for m in range(M):
        s, t = divmod(m, NU)
        wait_for(m)
        A, B = (pv_regs[m % P], sh_regs[s % NSH])
        if swap: A, B = B, A
        c = "0" if s == 0 else f"v[{acc(t)}:{acc(t)+15}]"
        a(f"v_mfma_f32_32x32x16_bf16 v[{acc(t)}:{acc(t)+15}], v[{A}:{A+3}], v[{B}:{B+3}], {c}")
        while nxt < M and nxt <= m + P:
            if nxt % (NU*CK) == 0:
                if nxt == m + P and m + 1 < M and P > 1:
                    break
                a("s_waitcnt lgkmcnt(0)"); q.clear()
                a("s_barrier")
            issue_for(nxt); nxt += 1
    stamp(a, sb+3)

def b128(reg, vaddr, off):
    assert 0 <= off < 65536, off
    return [f"ds_read_b128 v[{reg}:{reg+3}], v{vaddr} offset:{off}"]
def two64(reg, v0, o0, v1, o1, tr):
    assert 0 <= o0 < 65536 and 0 <= o1 < 65536, (o0, o1)
    op = "ds_read_b64_tr_b16" if tr else "ds_read_b64"
    return [f"{op} v[{reg}:{reg+1}], v{v0} offset:{o0}", f"{op} v[{reg+2}:{reg+3}], v{v1} offset:{o1}"]

SRD_A, SRD_B, SRD_M, SRD_E0, SRD_E1, SRD_E2 = 44, 48, 52, 56, 60, 64
S_RB, S_CG, S_J = 68, 69, 70

def tr_lane_parts(a, r, nh, c):
    a(f"v_bfe_u32 v{r}, v0, 2, 2")
    a(f"v_bfe_u32 v{nh}, v0, 4, 1")
    a(f"v_and_b32 v{c}, 3, v0")

def dma(a, lds_sgpr, lds_off, vaddr, srd_, s_base, g_off, sc):
    a(f"s_add_u32 m0, s{lds_sgpr}, {lds_off}")
    a(f"s_add_u32 s75, s{s_base}, {g_off}")
    a(f"buffer_load_dwordx4 v{vaddr}, s[{srd_}:{srd_+3}], s75 offen{SC if sc else ''} lds")

def plain_loader(a, *, NC, a_issue, b_issue, n_pre_a, after_pre, deps, extra_barriers=0, sb=0, tail=None):
    vq = VmQ(a)
    for c in range(n_pre_a): vq.issue(("A", c), a_issue(c))
    after_pre(vq)
    stamp(a, sb+1)
    deps()
    stamp(a, sb+2)
    for c in range(2): vq.issue(("B", c), b_issue(c))
    for c in range(NC):
        vq.wait(("B", c))
        vq.wait(("A", c))
        a("s_barrier")
        if c == 0: stamp(a, sb+3)
        if c + 2 < NC: vq.issue(("B", c+2), b_issue(c+2))
        if c + n_pre_a < NC: vq.issue(("A", c+n_pre_a), a_issue(c+n_pre_a))
    stamp(a, sb+4)
    if tail: tail()
    for _ in range(extra_barriers): a("s_barrier")

def lds_addr_set(a, dst, nseg, extra_v):
    for k in range(nseg):
        if k == 0: a(f"v_mov_b32 v{dst}, v{extra_v}")
        else: a(f"v_add_u32 v{dst+k}, {k*65536}, v{extra_v}")
def seg(dst, off): return (dst + off // 65536, off % 65536)

def unpack4(a, dst, src):
    a(f"v_lshlrev_b32 v{dst}, 16, v{src}")
    a(f"v_and_b32 v{dst+1}, 0xffff0000, v{src}")
    a(f"v_lshlrev_b32 v{dst+2}, 16, v{src+1}")
    a(f"v_and_b32 v{dst+3}, 0xffff0000, v{src+1}")
def one_plus_round(a, r):
    for j in range(4): a(f"v_add_f32 v{r+j}, 1.0, v{r+j}")
    a(f"v_cvt_pk_bf16_f32 v{r}, v{r}, v{r+1}")
    a(f"v_cvt_pk_bf16_f32 v{r+2}, v{r+2}, v{r+3}")
    a(f"v_and_b32 v{r+1}, 0xffff0000, v{r}")
    a(f"v_and_b32 v{r+3}, 0xffff0000, v{r+2}")
    a(f"v_lshlrev_b32 v{r}, 16, v{r}")
    a(f"v_lshlrev_b32 v{r+2}, 16, v{r+2}")
```

```python
import numpy as np
S, D, H, DH, F = 2048, 640, 32, 20, 1536

WS_FLAG = 0x0000000; SZ_FLAG = 0x20000
WS_MODG = 0x0080000; MODG_REP = 16384; SZ_MODG = 8*16384
WS_HF   = 0x0100000; SZ_HF   = 64*40*1024
WS_XR   = 0x0400000; SZ_XR   = 64*40*1024
WS_Q    = 0x0800000; QT = 1280;  SZ_Q  = 32*64*QT
WS_KV   = 0x0C00000; KVT = 2560; SZ_KV = 32*64*KVT
WS_O    = 0x1400000; SZ_O    = 64*40*1024
WS_WO   = 0x1800000; SZ_WO   = 8*640*160
WS_X1   = 0x1A00000; SZ_X1   = 64*40*1024
WS_STAT = 0x1D00000; SZ_STAT = 32*8*64*16
WS_H2   = 0x1E00000; SZ_H2   = 64*40*1024
WS_WGU  = 0x2100000; SZ_WGU  = 16*10*24576
WS_HH   = 0x2500000; SZ_HH   = 64*96*1024
WS_WD   = 0x2C00000; SZ_WD   = 8*1536*160
WS_TS   = 0x3000000; SZ_TS = 8*2048*256
WS_END  = 0x3500000

def k_nat(s, h, i): return 16*s + 8*h + i
def k_d(s, h, i):   return 16*s + 8*(i//4) + 4*h + (i % 4)

def act_unfrag(Fr, korder):
    nb, ns = Fr.shape[:2]
    X = np.zeros((nb*32, ns*16), Fr.dtype)
    for h in range(2):
        for i in range(8):
            ks = np.array([korder(s, h, i) for s in range(ns)])
            X[:, ks] = Fr[:, :, h*32:(h+1)*32, i].transpose(0, 2, 1).reshape(nb*32, ns)
    return X
```

```python
from gemm import *
QSCALE = (20 ** -0.5) * LOG2E
P0_RED, P0_TAB, P0_STG = 131072, 139264, 144384
P1_RB = 65536

def reduce_swap(a, op, x, t):
    a(f"v_mov_b32 v{t}, v{x}")
    a("s_nop 1")
    a(f"{op} v{x}, v{t}")
    a("s_nop 1")
    a(f"v_add_f32 v{x}, v{x}, v{t}")

def map_p1(a):
    a("s_and_b32 s71, s2, 7")
    a("s_lshr_b32 s72, s2, 3")
    a("s_lshr_b32 s73, s71, 1")
    a("s_lshl_b32 s73, s73, 2")
    a("s_and_b32 s74, s72, 3")
    a(f"s_add_u32 s{S_RB}, s73, s74")
    a("s_and_b32 s73, s71, 1")
    a("s_lshl_b32 s73, s73, 3")
    a("s_lshr_b32 s74, s72, 2")
    a(f"s_add_u32 s{S_CG}, s73, s74")

def staged_store(a, pieces, srd_, tag_sc=True):
    for i, n in enumerate(pieces): a(f"ds_read_b128 v[{84+4*i}:{87+4*i}], v80 offset:{n*1024}")
    for i, n in enumerate(pieces):
        a(f"s_waitcnt lgkmcnt({len(pieces)-1-i})")
        a(f"s_add_u32 s83, s82, {n*4096}")
        a(f"buffer_store_dwordx4 v[{84+4*i}:{87+4*i}], v81, s[{srd_}:{srd_+3}], s83 offen{SC}")

def staged_addr(a):
    a("v_lshlrev_b32 v80, 4, v0")
    a(f"v_add_u32 v80, {P0_STG}, v80")
    a("v_lshrrev_b32 v81, 4, v0")
    a("v_lshlrev_b32 v81, 10, v81")
    a("v_bfe_u32 v82, v0, 3, 1")
    a("v_lshl_add_u32 v81, v82, 9, v81")
    a("v_and_b32 v82, 7, v0")
    a("v_lshl_add_u32 v81, v82, 4, v81")
    a("s_lshr_b32 s82, s2, 2")
    a("s_mul_i32 s82, s82, 40960")
    a("s_and_b32 s83, s2, 3")
    a("s_lshl_b32 s83, s83, 7")
    a("s_add_u32 s82, s82, s83")

def p1_a_setup(a):
    a(f"s_sub_u32 s{S_J}, s{S_WAVE}, 4")
    a("v_lshrrev_b32 v8, 4, v0")
    a("v_bfe_u32 v9, v0, 2, 2")
    a("v_xor_b32 v9, v9, v8")
    a("v_and_b32 v10, 3, v0")
    a("v_mul_u32_u24 v56, 3840, v8")
    a("v_lshl_add_u32 v56, v9, 6, v56")
    a("v_lshl_add_u32 v56, v10, 4, v56")
    a(f"s_mul_i32 s73, s{S_J}, {16*3840}")
    a(f"s_lshl_b32 s77, s{S_CG}, 8")
    a("s_add_u32 s73, s73, s77")
    a(f"s_lshl_b32 s77, s{S_J}, 12")
def p1_a_issue(a, c):
    for n in range(4): dma(a, 77, (c % 4)*16384 + n*1024, 56, SRD_A, 73, (c*64 + 4*n)*3840, False)
    return 4

def gen_p01(a):
    L_ln, L_A = a.uid("P0_ln"), a.uid("P0_A")
    kernel_setup(a)
    map_p1(a)
    srd(a, SRD_A, P_WQKV, 0, 640*1920*2)
    a(f"s_cmp_ge_u32 s{S_WAVE}, 4")
    a(f"s_cbranch_scc1 {L_ln}")
    L_nomod = a.uid("P0_nomod")
    srd(a, 56, P_WMOD, 0, 640*3840*2)
    srd(a, 60, P_C, 0, 640*2)
    a("s_and_b32 s84, s2, 7")
    a("s_lshr_b32 s85, s2, 3")
    a("s_mul_i32 s86, s84, 10")
    a("s_add_u32 s86, s86, s85")
    a("s_mul_i32 s87, s84, 20")
    a("s_add_u32 s87, s87, s85")
    a("s_add_u32 s87, s87, 70")
    a("s_cmp_lt_u32 s85, 10")
    a("s_cselect_b32 s86, s86, s87")
    a("s_cmp_ge_u32 s2, 240")
    a(f"s_cbranch_scc1 {L_nomod}")
    a("v_lshrrev_b32 v2, 1, v0")
    a("v_and_b32 v3, 1, v0")
    a(f"s_mul_i32 s87, s{S_WAVE}, 160")
    a("v_add_u32 v4, s87, v2")
    a("v_lshlrev_b32 v5, 1, v4")
    a("s_movk_i32 s87, 7680")
    a("v_mul_lo_u32 v6, v4, s87")
    a("s_lshl_b32 s88, s86, 5")
    a("v_lshl_add_u32 v6, v3, 4, v6")
    a("v_add_u32 v6, s88, v6")
    for m in range(5): a(f"buffer_load_ushort v{8+m}, v5, s[60:63], 0 offen offset:{64*m}")
    for m in range(5):
        a(f"s_mov_b32 s87, {m*32*7680}")
        a(f"buffer_load_dwordx4 v[{16+4*m}:{19+4*m}], v6, s[56:59], s87 offen")
    a("s_waitcnt vmcnt(5)")
    kernel_nonce(a)
    for m in range(5): a(f"v_lshlrev_b32 v{8+m}, 16, v{8+m}")
    for m in range(5): a(f"v_mul_f32 v{40+m}, {fl(-LOG2E)}, v{8+m}")
    for m in range(5): a(f"v_exp_f32 v{40+m}, v{40+m}")
    a("s_nop 0")
    for m in range(5): a(f"v_add_f32 v{40+m}, 1.0, v{40+m}")
    for m in range(5): a(f"v_rcp_f32 v{40+m}, v{40+m}")
    a("s_nop 0")
    for m in range(5): a(f"v_mul_f32 v{8+m}, v{8+m}, v{40+m}")
    for m in range(5): a(f"v_cvt_pk_bf16_f32 v{8+m}, v{8+m}, v{8+m}")
    for m in range(5): a(f"v_and_b32 v{8+m}, 0xffff0000, v{8+m}")
    for m in range(5):
        a(f"s_waitcnt vmcnt({4-m})")
        for j in range(4):
            a(f"v_lshlrev_b32 v46, 16, v{16+4*m+j}")
            a(f"v_and_b32 v47, 0xffff0000, v{16+4*m+j}")
            op = "v_mul_f32" if m == 0 else "v_fmac_f32"
            a(f"{op} v{48+2*j}, v{8+m}, v46")
            a(f"{op} v{49+2*j}, v{8+m}, v47")
    a(f"s_lshl_b32 s87, s{S_WAVE}, 11")
    a(f"s_add_u32 s87, s87, {P0_RED}")
    a("v_lshlrev_b32 v7, 5, v0")
    a("v_add_u32 v7, s87, v7")
    a("ds_write_b128 v7, v[48:51]")
    a("ds_write_b128 v7, v[52:55] offset:16")
    a("s_waitcnt lgkmcnt(0)")
    a(f"s_branch {L_A}")
    a.label(L_nomod)
    a("s_waitcnt vmcnt(0)")
    kernel_nonce(a)
    a(f"s_branch {L_A}")

    a.label(L_ln)
    srd(a, 56, P_X, 0, S*D*2)
    a(f"s_sub_u32 s84, s{S_WAVE}, 4")
    a("s_lshl_b32 s85, s2, 3")
    a("s_lshl_b32 s86, s84, 1")
    a("s_add_u32 s85, s85, s86")
    a("v_lshrrev_b32 v2, 5, v0")
    a("v_and_b32 v3, 31, v0")
    a("v_add_u32 v4, s85, v2")
    a("s_movk_i32 s87, 1280")
    a("v_mul_lo_u32 v5, v4, s87")
    a("v_lshl_add_u32 v5, v3, 3, v5")
    for m in range(5): a(f"buffer_load_dwordx2 v[{8+2*m}:{9+2*m}], v5, s[56:59], 0 offen offset:{256*m}")
    a("v_add_u32 v44, s86, v2")
    a("v_lshlrev_b32 v44, 4, v44")
    a("v_lshrrev_b32 v45, 2, v3")
    a("v_lshl_add_u32 v44, v45, 8, v44")
    a(f"v_add_u32 v44, {P0_STG}, v44")
    a("v_and_b32 v46, 1, v3")
    a("v_bfe_u32 v47, v3, 1, 1")
    a("v_lshl_add_u32 v45, v47, 7, v44")
    a("v_lshl_add_u32 v45, v46, 3, v45")
    a("v_lshl_add_u32 v44, v46, 7, v44")
    a("v_lshl_add_u32 v44, v47, 3, v44")
    a("s_waitcnt vmcnt(0)")
    kernel_nonce(a)
    for m in range(5): a(f"ds_write_b64 v44, v[{8+2*m}:{9+2*m}] offset:{m*2048}")
    for m in range(5):
        for j in range(2):
            a(f"v_lshlrev_b32 v{20+4*m+2*j}, 16, v{8+2*m+j}")
            a(f"v_and_b32 v{21+4*m+2*j}, 0xffff0000, v{8+2*m+j}")
    def tree_sum(dst, src0, n, tmp):
        a(f"v_add_f32 v{tmp}, v{src0}, v{src0+1}")
        a(f"v_add_f32 v{tmp+1}, v{src0+2}, v{src0+3}")
        for r in range(4, n, 2):
            a(f"v_add_f32 v{tmp}, v{tmp}, v{src0+r}")
            a(f"v_add_f32 v{tmp+1}, v{tmp+1}, v{src0+r+1}")
        a(f"v_add_f32 v{dst}, v{tmp}, v{tmp+1}")
    def reduce32(x, t):
        for sh in (8, 4, 2, 1):
            a("s_nop 1")
            a(f"v_add_f32_dpp v{x}, v{x}, v{x} row_ror:{sh} row_mask:0xf bank_mask:0xf")
        reduce_swap(a, "v_permlane16_swap_b32", x, t)
    tree_sum(40, 20, 20, 42)
    reduce32(40, 41)
    a(f"v_mul_f32 v40, {fl(1.0/640)}, v40")
    for r in range(20): a(f"v_sub_f32 v{20+r}, v{20+r}, v40")
    a("v_mul_f32 v42, v20, v20")
    a("v_mul_f32 v43, v21, v21")
    for r in range(2, 20, 2):
        a(f"v_fmac_f32 v42, v{20+r}, v{20+r}")
        a(f"v_fmac_f32 v43, v{21+r}, v{21+r}")
    a("v_add_f32 v41, v42, v43")
    reduce32(41, 42)
    a(f"v_mov_b32 v42, {fl(1e-5)}")
    a(f"v_fmac_f32 v42, {fl(1.0/640)}, v41")
    a("v_rsq_f32 v42, v42")
    a("s_nop 0")
    for r in range(20): a(f"v_mul_f32 v{20+r}, v{20+r}, v42")
    a("s_waitcnt lgkmcnt(0)")

    a.label(L_A)
    stamp(a, 1)
    a("s_barrier")
    L_w0, L_w1, L_w23, L_B = a.uid("P0_w0"), a.uid("P0_w1"), a.uid("P0_w23"), a.uid("P0_B")
    a(f"s_cmp_eq_u32 s{S_WAVE}, 0")
    a(f"s_cbranch_scc1 {L_w0}")
    a(f"s_cmp_eq_u32 s{S_WAVE}, 1")
    a(f"s_cbranch_scc1 {L_w1}")
    a(f"s_cmp_lt_u32 s{S_WAVE}, 4")
    a(f"s_cbranch_scc1 {L_w23}")
    a(f"s_cmp_ge_u32 s{S_CG}, 15")
    a(f"s_cbranch_scc1 {L_B}")
    p1_a_setup(a)
    for c in range(3): p1_a_issue(a, c)
    a(f"s_branch {L_B}")
    a.label(L_w0)
    a("s_cmp_ge_u32 s2, 240")
    a(f"s_cbranch_scc1 {L_B}")
    srd(a, 56, P_WS, WS_MODG, SZ_MODG)
    a("v_and_b32 v3, 15, v0")
    a("v_lshrrev_b32 v2, 4, v0")
    a("v_lshlrev_b32 v7, 11, v2")
    a("v_lshl_add_u32 v7, v3, 2, v7")
    a(f"v_add_u32 v7, {P0_RED}, v7")
    for half in range(2):
        for r in range(16): a(f"ds_read_b32 v{64+16*half+r}, v7 offset:{(16*half+r)*64}")
        if half == 0: a("s_waitcnt lgkmcnt(0)")
    a("s_waitcnt lgkmcnt(0)")
    n = 32
    while n > 1:
        n //= 2
        for r in range(n): a(f"v_add_f32 v{64+r}, v{64+r}, v{64+n+r}")
    reduce_swap(a, "v_permlane16_swap_b32", 64, 65)
    reduce_swap(a, "v_permlane32_swap_b32", 64, 65)
    a("v_cvt_pk_bf16_f32 v64, v64, v64")
    a("v_and_b32 v64, 0xffff, v64")
    a("s_nop 1")
    for q in range(4): a(f"v_mov_b32_dpp v{66+q}, v64 quad_perm:[{q},{q},{q},{q}] row_mask:0xf bank_mask:0xf")
    a("v_lshl_or_b32 v72, v67, 16, v66")
    a("v_lshl_or_b32 v73, v69, 16, v68")
    a(f"v_mov_b32 v74, s{S_NONCE}")
    a("v_mov_b32 v75, 0")
    a("v_lshrrev_b32 v7, 2, v3")
    a("v_lshlrev_b32 v7, 4, v7")
    a("s_lshl_b32 s87, s86, 6")
    a("s_mov_b64 exec, 0x1111")
    a(f"buffer_store_dwordx4 v[72:75], v7, s[56:59], s87 offen{SC}")
    a("s_mov_b64 exec, -1")
    a(f"s_branch {L_B}")
    a.label(L_w1)
    srd(a, 56, P_WS, WS_MODG, SZ_MODG)
    a("v_lshlrev_b32 v7, 4, v0")
    loads = [f"buffer_load_dwordx4 v[{16+4*n}:{19+4*n}], v7, s[56:59], 0 offen offset:{1024*n if n < 4 else 0}{SC}" for n in range(4)]
    loads += ["s_movk_i32 s87, 4096", f"buffer_load_dwordx4 v[32:35], v7, s[56:59], s87 offen{SC}"]
    poll_granules(a, loads, [18+4*n for n in range(5)], "P0_mod")
    stamp(a, 2)
    for n in range(5):
        unpack4(a, 40, 16+4*n)
        for j in range(4): a(f"v_mov_b32 v{44+j}, v{40+j}")
        one_plus_round(a, 44)
        a(f"v_add_u32 v8, {64*n}, v0")
        a("v_cmp_le_u32 vcc, 160, v8")
        a(f"v_lshlrev_b32 v8, 4, v8")
        a(f"v_add_u32 v9, {P0_TAB+2560}, v8")
        a(f"v_add_u32 v8, {P0_TAB-2560}, v8")
        for j in range(4): a(f"v_cndmask_b32 v{40+j}, v{40+j}, v{44+j}, vcc")
        a("v_cndmask_b32 v8, v9, v8, vcc")
        a("ds_write_b128 v8, v[40:43]")
    a("s_waitcnt lgkmcnt(0)")
    a(f"s_branch {L_B}")
    a.label(L_w23)
    srd(a, 56, P_WS, WS_XR, SZ_XR)
    staged_addr(a)
    a(f"s_sub_u32 s84, s{S_WAVE}, 2")
    a("s_mul_i32 s85, s84, 5120")
    a("v_add_u32 v80, s85, v80")
    a("s_mul_i32 s85, s84, 20480")
    a("s_add_u32 s82, s82, s85")
    staged_store(a, range(5), 56)
    a.label(L_B)
    a("s_barrier")
    stamp(a, 3)
    L_C = a.uid("P0_C")
    a(f"s_cmp_lt_u32 s{S_WAVE}, 4")
    a(f"s_cbranch_scc1 {L_C}")
    a("v_lshlrev_b32 v6, 4, v3")
    a(f"v_add_u32 v6, {P0_TAB}, v6")
    for m in range(5):
        a(f"ds_read_b128 v[{60+8*m}:{63+8*m}], v6 offset:{512*m}")
        a(f"ds_read_b128 v[{64+8*m}:{67+8*m}], v6 offset:{2560+512*m}")
    for m in range(5):
        a(f"s_waitcnt lgkmcnt({8-2*m})")
        for j in range(4): a(f"v_fma_f32 v{20+4*m+j}, v{20+4*m+j}, v{60+8*m+j}, v{64+8*m+j}")
        a(f"v_cvt_pk_bf16_f32 v{8+2*m}, v{20+4*m}, v{21+4*m}")
        a(f"v_cvt_pk_bf16_f32 v{9+2*m}, v{22+4*m}, v{23+4*m}")
    for m in range(5): a(f"ds_write_b64 v45, v[{8+2*m}:{9+2*m}] offset:{m*2048}")
    a("s_waitcnt lgkmcnt(0)")
    a.label(L_C)
    a("s_barrier")
    L_D = a.uid("P0_D")
    a(f"s_cmp_ge_u32 s{S_WAVE}, 4")
    a(f"s_cbranch_scc1 {L_D}")
    srd(a, 56, P_WS, WS_HF, SZ_HF)
    staged_addr(a)
    a(f"s_lshl_b32 s85, s{S_WAVE}, 10")
    a("v_add_u32 v80, s85, v80")
    a(f"s_lshl_b32 s85, s{S_WAVE}, 12")
    a("s_add_u32 s82, s82, s85")
    L2 = a.uid("P0_two")
    staged_store(a, [0, 4], 56)
    a(f"s_cmp_ge_u32 s{S_WAVE}, 2")
    a(f"s_cbranch_scc1 {L2}")
    staged_store(a, [8], 56)
    a.label(L2)
    a("s_waitcnt vmcnt(0)")
    a.label(L_D)
    a("s_barrier")
    signal(a, 0, 2)
    stamp(a, 4)

    L_end = a.uid("P1_end")
    a(f"s_cmp_ge_u32 s{S_CG}, 15")
    a(f"s_cbranch_scc1 {L_end}")
    lane_consts(a)
    L_comp, L_fin = a.uid("P1_comp"), a.uid("P1_fin")
    a(f"s_cmp_lt_u32 s{S_WAVE}, 4")
    a(f"s_cbranch_scc1 {L_comp}")
    p1_a_setup(a)
    srd(a, SRD_B, P_WS, WS_HF, SZ_HF)
    a(f"s_lshl_b32 s72, s{S_J}, 10")
    a("v_add_u32 v7, s72, v1")
    a(f"s_lshl_b32 s74, s{S_RB}, 2")
    a("s_mul_i32 s74, s74, 40960")
    pre = {"n": 0}
    def a_issue(c):
        if c < 3: return 4
        return p1_a_issue(a, c)
    def b_issue(c):
        for tb in range(4): dma(a, 72, P1_RB + (c % 3)*16384 + tb*4096, 7, SRD_B, 74, tb*40960 + c*4096, True)
        return 4
    plain_loader(a, NC=10, a_issue=a_issue, b_issue=b_issue, n_pre_a=3, after_pre=lambda vq: None,
                 deps=lambda: a("s_barrier"), sb=8)
    a(f"s_branch {L_fin}")
    a.label(L_comp)
    a(f"s_lshl_b32 s71, s{S_WAVE}, 12")
    a(f"s_add_u32 s71, s71, {P1_RB}")
    a("v_add_u32 v4, s71, v1")
    tr_lane_parts(a, 8, 9, 10)
    a("v_lshl_add_u32 v11, v3, 3, v8")
    a("v_lshlrev_b32 v11, 8, v11")
    a("v_lshl_add_u32 v11, v9, 5, v11")
    a("v_lshl_add_u32 v11, v10, 3, v11")
    for T in range(4):
        a(f"v_xor_b32 v12, {T}, v8")
        a(f"v_lshl_add_u32 v{40+T}, v12, 6, v11")
    a(f"s_lshl_b32 s72, s{S_RB}, 2")
    a(f"s_add_u32 s72, s72, s{S_WAVE}")
    ACC = 64
    def pv_reads(s, t, reg):
        o = ((s//4) % 4)*16384 + (s % 4)*4096
        return two64(reg, 40+t, o, 40+t, o + 1024, True)
    args = dict(KS=40, CK=4, NU=4, P=4, acc=lambda t: ACC+16*t, sh_regs=[32, 36], pv_regs=[16, 20, 24, 28],
                sh_reads=lambda s, reg: b128(reg, 4, ((s//4) % 3)*16384 + (s % 4)*1024), pv_reads=pv_reads, sb=8)
    def deps():
        a(f"s_lshl_b32 s71, s{S_RB}, 4")
        a("v_and_b32 v240, 15, v0")
        a("v_add_u32 v240, s71, v240")
        wait_flags(a, [240], 0)
        a("s_barrier")
    L_v = a.uid("P1_v")
    a(f"s_cmp_ge_u32 s{S_CG}, 10")
    a(f"s_cbranch_scc1 {L_v}")
    a(f"s_mov_b32 s73, {KVT}")
    a(f"s_mov_b32 s74, {WS_KV}")
    a(f"s_cmp_lt_u32 s{S_CG}, 5")
    a(f"s_cselect_b32 s73, {QT}, s73")
    a(f"s_cselect_b32 s74, {WS_Q}, s74")
    a(f"s_cselect_b32 s76, {fl(QSCALE)}, 1.0")
    a("s_cselect_b32 s75, 0, 5")
    a(f"s_sub_u32 s75, s{S_CG}, s75")
    a(f"s_add_u32 s{SRD_E0}, s{P_WS}, s74")
    a(f"s_addc_u32 s{SRD_E0+1}, s{P_WS+1}, 0")
    a(f"s_mov_b32 s{SRD_E0+2}, {hex(SZ_KV)}")
    a(f"s_mov_b32 s{SRD_E0+3}, 0x20000")
    a("s_mul_i32 s78, s72, s73")
    a("s_lshl_b32 s79, s73, 6")
    a("s_lshl_b32 s80, s75, 5")
    a("v_add_u32 v5, s80, v3")
    a("v_lshlrev_b32 v6, 3, v2")
    for T in range(4):
        for g in range(4):
            o = 128 + 4*T + g
            a(f"v_add_u32 v8, {8*T+2*g}, v5")
            a("v_mul_u32_u24 v9, 0xcccd, v8")
            a("v_lshrrev_b32 v9, 18, v9")
            a("v_mul_u32_u24 v10, 5, v9")
            a("v_sub_u32 v10, v8, v10")
            a(f"v_mul_lo_u32 v{o}, v9, s79")
            a("v_lshl_add_u32 v10, v10, 8, v6")
            a(f"v_add_u32 v{o}, v{o}, v10")
    deps()
    compute_loop(a, swap=False, **args)
    a.nop(12)
    for T in range(4):
        for g in range(4):
            r = ACC + 16*T + 4*g
            p = 16 + 2*((4*T+g) % 8)
            for j in range(4): a(f"v_mul_f32 v{r+j}, s76, v{r+j}")
            a(f"v_cvt_pk_bf16_f32 v{p}, v{r}, v{r+1}")
            a(f"v_cvt_pk_bf16_f32 v{p+1}, v{r+2}, v{r+3}")
            a(f"buffer_store_dwordx2 v[{p}:{p+1}], v{128+4*T+g}, s[{SRD_E0}:{SRD_E0+3}], s78 offen{SC}")
    a(f"s_branch {L_fin}")
    a.label(L_v)
    srd(a, SRD_E0, P_WS, WS_KV, SZ_KV)
    a(f"s_mul_i32 s78, s72, {KVT}")
    a(f"s_sub_u32 s75, s{S_CG}, 10")
    a("s_lshl_b32 s80, s75, 7")
    a("v_add_u32 v5, s80, v2")
    a("v_mul_u32_u24 v6, 320, v3")
    a(f"s_mov_b32 s79, {64*KVT}")
    for T in range(4):
        a(f"v_add_u32 v8, {32*T}, v5")
        a("v_mul_u32_u24 v9, 0xcccd, v8")
        a("v_lshrrev_b32 v9, 20, v9")
        a("v_mul_u32_u24 v10, 20, v9")
        a("v_sub_u32 v10, v8, v10")
        a(f"v_mul_lo_u32 v{128+T}, v9, s79")
        a(f"v_lshl_add_u32 v{128+T}, v10, 4, v{128+T}")
        a(f"v_add_u32 v{128+T}, v{128+T}, v6")
    deps()
    compute_loop(a, swap=True, **args)
    a.nop(12)
    for T in range(4):
        for tp in range(2):
            r = ACC + 16*T + 8*tp
            p = 16 + 4*((2*T+tp) % 4)
            for j in range(4): a(f"v_cvt_pk_bf16_f32 v{p+j}, v{r+2*j}, v{r+2*j+1}")
            a(f"buffer_store_dwordx4 v[{p}:{p+3}], v{128+T}, s[{SRD_E0}:{SRD_E0+3}], s78 offen offset:{1280+640*tp}{SC}")
    a.label(L_fin)
    stamp(a, 14)
    a("s_waitcnt vmcnt(0)")
    a("s_barrier")
    a(f"s_lshl_b32 s71, s{S_CG}, 4")
    a(f"s_add_u32 s71, s71, s{S_RB}")
    signal(a, 1, 71)
    a.label(L_end)
    stamp(a, 15)
```

```python
from gemm import *

CH = 40960
ONES = 3*CH
LDS_P2 = 4*CH
Q1, Q2, CM, SA, SB, OA = 8, 12, 16, 32, 48, 64
P0, P1 = 80, 84
KB = [(88, 92), (96, 100)]
VB = [(104, 108), (112, 116)]
AK1, AK2, AV = 120, 123, 126
SRD_Q, SRD_KV, SRD_O = 44, 48, 52
S_HEAD, S_TQ = 68, 69
OPT = {"prio": 0, "sched": 1}

def exps(S): return [f"v_exp_f32 v{S+i}, v{S+i}" for i in range(16)]
def cvt(S, i): return f"v_cvt_pk_bf16_f32 v{(P0 if i < 8 else P1) + (i//2) % 4}, v{S+i}, v{S+i+1}"
def qk1(a, S, kb):  a(f"v_mfma_f32_32x32x16_bf16 v[{S}:{S+15}], v[{kb[0]}:{kb[0]+3}], v[{Q1}:{Q1+3}], v[{CM}:{CM+15}]")
def qk2(a, S, kb):  a(f"v_mfma_f32_32x32x8bf16_1k v[{S}:{S+15}], v[{kb[1]}:{kb[1]+1}], v[{Q2}:{Q2+1}], v[{S}:{S+15}]")
def pv(a, vreg, P, first=False):
    c = "0" if first else f"v[{OA}:{OA+15}]"
    a(f"v_mfma_f32_32x32x16_bf16 v[{OA}:{OA+15}], v[{vreg}:{vreg+3}], v[{P}:{P+3}], {c}")
def rdK(a, t):
    c, tl = divmod(t, 16); kb = KB[t % 2]
    a(f"ds_read_b64 v[{kb[0]}:{kb[0]+1}], v{AK1 + c % 3} offset:{tl*KVT}")
    a(f"ds_read_b64 v[{kb[0]+2}:{kb[0]+3}], v{AK1 + c % 3} offset:{tl*KVT + 512}")
    a(f"ds_read_b64 v[{kb[1]}:{kb[1]+1}], v{AK2 + c % 3} offset:{tl*KVT}")
def rdV(a, t, tp):
    c, tl = divmod(t, 16); vb = VB[t % 2]
    a(f"ds_read_b128 v[{vb[tp]}:{vb[tp]+3}], v{AV + c % 3} offset:{tl*KVT + 1280 + 640*tp}")

def deps_p2(a):
    a(f"s_mul_i32 s71, s{S_HEAD}, 20")
    a("s_lshr_b32 s72, s71, 7")
    a("s_add_u32 s71, s71, 19")
    a("s_lshr_b32 s71, s71, 7")
    a("v_min_u32 v242, 47, v0")
    a("v_lshrrev_b32 v243, 4, v242")
    a("v_mul_u32_u24 v243, 80, v243")
    a("v_and_b32 v242, 15, v242")
    a("v_add_u32 v242, v242, v243")
    a("s_lshl_b32 s72, s72, 4")
    a("s_lshl_b32 s71, s71, 4")
    a("v_add_u32 v240, s72, v242")
    a("v_add_u32 v241, s71, v242")
    wait_flags(a, [240, 241], 1)

def gen_p2(a):
    a("s_and_b32 s71, s2, 7")
    a("s_lshr_b32 s72, s2, 3")
    a("s_and_b32 s72, s72, 3")
    a("s_lshl_b32 s72, s72, 3")
    a(f"s_add_u32 s{S_HEAD}, s71, s72")
    a("s_lshr_b32 s72, s2, 5")
    a("s_lshl_b32 s72, s72, 3")
    a(f"s_add_u32 s{S_TQ}, s72, s{S_WAVE}")
    srd(a, SRD_Q, P_WS, WS_Q, SZ_Q)
    srd(a, SRD_KV, P_WS, WS_KV, SZ_KV)
    srd(a, SRD_O, P_WS, WS_O, SZ_O)
    lane_consts(a)
    vq = VmQ(a)
    for j in range(4): a(f"v_mov_b32 v{SA+j}, 0x3f803f80")
    a("v_lshrrev_b32 v6, 4, v0")
    a(f"s_lshl_b32 s74, s{S_WAVE}, 2")
    a("v_add_u32 v6, s74, v6")
    a("v_lshrrev_b32 v7, 1, v6")
    a(f"v_mul_u32_u24 v7, {KVT}, v7")
    a("v_and_b32 v6, 1, v6")
    a("v_mul_u32_u24 v6, 640, v6")
    a("v_add_u32 v7, v7, v6")
    a("v_and_b32 v6, 15, v0")
    a("v_lshl_add_u32 v7, v6, 4, v7")
    a(f"v_add_u32 v7, {ONES+1280}, v7")
    a(f"ds_write_b128 v7, v[{SA}:{SA+3}]")
    a("v_lshlrev_b32 v4, 3, v2")
    a("v_add_u32 v4, 1024, v4")
    a("v_mul_u32_u24 v6, 320, v3")
    a("v_lshl_add_u32 v6, v2, 4, v6")
    a("v_cmp_gt_u32 vcc, 28, v2")
    a("v_mov_b32 v7, 192")
    a("v_mov_b32 v14, 64")
    a("v_cndmask_b32 v7, v7, v14, vcc")
    a("v_lshlrev_b32 v14, 6, v3")
    a("v_add_u32 v7, v7, v14")
    a("v_and_b32 v7, 255, v7")
    a(f"v_add_u32 v7, {ONES}, v7")
    a("v_cmp_gt_u32 vcc, 20, v2")
    a("v_lshlrev_b32 v129, 3, v2")
    a("v_lshl_add_u32 v129, v3, 8, v129")
    for sl in range(3):
        a(f"v_add_u32 v{AK1+sl}, {sl*CH}, v129")
        a(f"v_add_u32 v{AK2+sl}, {sl*CH}, v4")
        a(f"v_add_u32 v14, {sl*CH}, v6")
        a(f"v_cndmask_b32 v{AV+sl}, v7, v14, vcc")
    a(f"s_lshl_b32 s71, s{S_HEAD}, 6")
    a(f"s_add_u32 s71, s71, s{S_TQ}")
    a(f"s_mul_i32 s76, s71, {QT}")
    a(f"s_mul_i32 s77, s{S_HEAD}, {64*KVT}")
    a(f"s_lshl_b32 s73, s{S_WAVE}, 10")
    a("v_add_u32 v5, s73, v1")
    a(f"v_mov_b32 v{Q2}, 0")
    a(f"v_mov_b32 v{Q2+1}, 0")
    deps_p2(a); a("s_barrier")
    stamp(a, 16)
    def ld_qk(r1, r2, srd_, soff, mask2):
        a(f"buffer_load_dwordx2 v[{r1}:{r1+1}], v129, s[{srd_}:{srd_+3}], s{soff} offen{SC}")
        a(f"buffer_load_dwordx2 v[{r1+2}:{r1+3}], v129, s[{srd_}:{srd_+3}], s{soff} offen offset:512{SC}")
        if mask2: exec_lo32(a)
        a(f"buffer_load_dwordx2 v[{r2}:{r2+1}], v4, s[{srd_}:{srd_+3}], s{soff} offen{SC}")
        if mask2: exec_all(a)
    ld_qk(Q1, Q2, SRD_Q, 76, True); vq.issue("Q", 3)
    ld_qk(KB[0][0], KB[0][1], SRD_KV, 77, False); vq.issue("Q", 3)
    def dmac(c, lo=0, hi=5):
        for n in range(lo, hi):
            a(f"s_add_u32 m0, s73, {(c % 3)*CH + n*8192}")
            a(f"s_add_u32 s74, s77, {c*CH + n*8192}")
            a(f"buffer_load_dwordx4 v5, s[{SRD_KV}:{SRD_KV+3}], s74 offen{SC} lds")
            vq.issue(("C", c, n))
    dmac(0)
    def max16(dst, S, init=True):
        if init: a(f"v_max3_f32 v{dst}, v{S}, v{S+1}, v{S+2}")
        else:
            a(f"v_max3_f32 v{dst}, v{dst}, v{S}, v{S+1}")
            a(f"v_max_f32 v{dst}, v{dst}, v{S+2}")
        for i in range(3, 15, 2): a(f"v_max3_f32 v{dst}, v{dst}, v{S+i}, v{S+i+1}")
        a(f"v_max_f32 v{dst}, v{dst}, v{S+15}")
    def set_cm(m):
        a(f"v_mov_b32 v14, v{m}")
        a("s_nop 1")
        a(f"v_permlane32_swap_b32 v{m}, v14")
        a("s_nop 1")
        a(f"v_max_f32 v{m}, v{m}, v14")
        for i in range(16): a(f"v_sub_f32 v{CM+i}, 0, v{m}")
    vq.wait("Q")
    stamp(a, 17)
    a(f"v_mfma_f32_32x32x16_bf16 v[{SA}:{SA+15}], v[{KB[0][0]}:{KB[0][0]+3}], v[{Q1}:{Q1+3}], 0")
    qk2(a, SA, KB[0])
    dmac(1)
    a.nop(2)
    max16(15, SA)
    set_cm(15)
    stamp(a, 18)
    vq.wait(("C", 0, 4))
    a("s_waitcnt lgkmcnt(0)")
    a("s_barrier")
    stamp(a, 19)
    if OPT["prio"]:
        L = a.uid("prio")
        a(f"s_cmp_lt_u32 s{S_WAVE}, 4")
        a(f"s_cbranch_scc1 {L}")
        a("s_setprio 1")
        a.label(L)
    rdK(a, 0); rdK(a, 1); rdV(a, 0, 0); rdV(a, 0, 1)
    dmac(2)
    a("s_waitcnt lgkmcnt(5)")
    qk1(a, SA, KB[0]); qk2(a, SA, KB[0])
    a.nop(8)
    NT = 64
    for t in range(NT):
        S = SA if t % 2 == 0 else SB
        SN = SB if t % 2 == 0 else SA
        nxt = t + 1 < NT
        if t % 16 == 14 and t + 2 < NT:
            c1 = t // 16 + 1
            if c1 == 1: vq.wait(("C", 1, 4))
            else: vq.drain()
            a("s_barrier")
            if c1 == 1: retile_loads(a)
            if c1 == 2:
                dmac(3)
                retile_stores(a)
        e = exps(S); c = {i: cvt(S, i) for i in range(0, 16, 2)}
        a("s_waitcnt lgkmcnt(2)")
        if nxt: qk1(a, SN, KB[(t+1) % 2])
        if t + 2 < NT: rdK(a, t+2)
        elif nxt: a("s_nop 1")
        else: a.nop(2)
        for x in [e[0], e[1], e[2], c[0], e[3], e[4]]: a(x)
        if t > 0: pv(a, VB[(t-1) % 2][1], P1, first=False)
        if nxt: rdV(a, t+1, 0); rdV(a, t+1, 1)
        for x in [c[2], e[5], e[6], c[4], e[7], e[8]]: a(x)
        if nxt: qk2(a, SN, KB[(t+1) % 2])
        for x in [c[6], e[9], e[10], c[8], e[11], e[12]]: a(x)
        n_out = (3 if t + 2 < NT else 0) + (2 if nxt else 0) + 1
        a(f"s_waitcnt lgkmcnt({n_out})")
        pv(a, VB[t % 2][0], P0, first=(t == 0))
        for x in [c[10], e[13], e[14], e[15], c[12], c[14]]: a(x)
    a("s_waitcnt lgkmcnt(0)")
    a("s_nop 0")
    pv(a, VB[(NT-1) % 2][1], P1)
    a.nop(12)
    stamp(a, 25)
    if OPT["prio"]: a("s_setprio 0")
    L_slow, L_epi, L_fin = a.uid("P2_slow"), a.uid("P2_epi"), a.uid("P2_fin")
    a(f"v_max3_f32 v14, abs(v{OA}), abs(v{OA+1}), abs(v{OA+2})")
    for i in range(3, 11, 2): a(f"v_max3_f32 v14, v14, abs(v{OA+i}), abs(v{OA+i+1})")
    a(f"v_max_f32 v14, v14, abs(v{OA+11})")
    a(f"v_mov_b32 v15, {fl(2.0**60)}")
    a(f"v_cmp_nlt_f32 vcc, v{OA+12}, v15")
    a(f"v_mov_b32 v15, {fl(2.0**120)}")
    a("v_cmp_nlt_f32 s[80:81], v14, v15")
    a("s_nop 1")
    a("s_or_b64 vcc, vcc, s[80:81]")
    a(f"s_cbranch_vccnz {L_slow}")
    a.label(L_epi)
    a(f"v_rcp_f32 v14, v{OA+12}")
    a(f"s_mul_i32 s74, s{S_TQ}, 40960")
    a(f"s_mul_i32 s75, s{S_HEAD}, 5")
    for i in range(12): a(f"v_mul_f32 v{OA+i}, v{OA+i}, v14")
    for g in range(3):
        a(f"v_cvt_pk_bf16_f32 v{P0+2*g}, v{OA+4*g}, v{OA+4*g+1}")
        a(f"v_cvt_pk_bf16_f32 v{P0+2*g+1}, v{OA+4*g+2}, v{OA+4*g+3}")
    a("v_add_u32 v6, s75, v3")
    a("v_lshlrev_b32 v6, 8, v6")
    a("v_lshl_add_u32 v6, v2, 3, v6")
    for g in range(3):
        if g == 2: exec_lo32(a)
        a(f"buffer_store_dwordx2 v[{P0+2*g}:{P0+2*g+1}], v6, s[{SRD_O}:{SRD_O+3}], s74 offen offset:{512*g}{SC}")
    exec_all(a)
    a(f"s_branch {L_fin}")
    a.label(L_slow)
    kb, vb = KB[0], VB[0]
    a("v_mov_b32 v15, 0xff800000")
    a("s_mov_b32 s78, 0")
    L1, L2 = a.uid("P2_max"), a.uid("P2_pv")
    a.label(L1)
    a("s_add_u32 s79, s77, s78")
    ld_qk(kb[0], kb[1], SRD_KV, 79, False)
    a("s_waitcnt vmcnt(0)")
    a(f"v_mfma_f32_32x32x16_bf16 v[{SA}:{SA+15}], v[{kb[0]}:{kb[0]+3}], v[{Q1}:{Q1+3}], 0")
    qk2(a, SA, kb)
    a.nop(12)
    max16(15, SA, init=False)
    a(f"s_add_u32 s78, s78, {KVT}")
    a(f"s_cmp_lt_u32 s78, {64*KVT}")
    a(f"s_cbranch_scc1 {L1}")
    set_cm(15)
    for i in range(16): a(f"v_mov_b32 v{OA+i}, 0")
    a("v_mul_u32_u24 v6, 320, v3")
    a("v_lshl_add_u32 v6, v2, 4, v6")
    for j in range(4):
        a(f"v_mov_b32 v{vb[0]+j}, 0x3f803f80")
        a(f"v_mov_b32 v{vb[1]+j}, 0x3f803f80")
    a("v_cmp_gt_u32 s[82:83], 20, v2")
    a("s_mov_b32 s78, 0")
    a.label(L2)
    a("s_add_u32 s79, s77, s78")
    ld_qk(kb[0], kb[1], SRD_KV, 79, False)
    a("s_mov_b64 exec, s[82:83]")
    a(f"buffer_load_dwordx4 v[{vb[0]}:{vb[0]+3}], v6, s[{SRD_KV}:{SRD_KV+3}], s79 offen offset:1280{SC}")
    a(f"buffer_load_dwordx4 v[{vb[1]}:{vb[1]+3}], v6, s[{SRD_KV}:{SRD_KV+3}], s79 offen offset:1920{SC}")
    a("s_mov_b64 exec, -1")
    a("s_waitcnt vmcnt(0)")
    qk1(a, SA, kb); qk2(a, SA, kb)
    a.nop(12)
    for x in exps(SA): a(x)
    a("s_nop 0")
    for i in range(0, 16, 2): a(cvt(SA, i))
    a("s_nop 1")
    pv(a, vb[0], P0); pv(a, vb[1], P1)
    a(f"s_add_u32 s78, s78, {KVT}")
    a(f"s_cmp_lt_u32 s78, {64*KVT}")
    a(f"s_cbranch_scc1 {L2}")
    a.nop(12)
    a(f"s_branch {L_epi}")
    a.label(L_fin)
    stamp(a, 26)
    a("s_waitcnt vmcnt(0)")
    a("s_barrier")
    a("s_lshr_b32 s71, s2, 5")
    a("s_lshl_b32 s71, s71, 5")
    a(f"s_add_u32 s71, s71, s{S_HEAD}")
    signal(a, 2, 71)
    stamp(a, 27)

RT, RTP = 136, 160
def retile_role(a, Lgu, Ld, Lnone):
    a(f"s_lshl_b32 s84, s{S_WAVE}, 8")
    a("s_add_u32 s84, s84, s2")
    a("s_cmp_lt_u32 s84, 1280")
    a(f"s_cbranch_scc1 {Lgu}")
    a("s_cmp_lt_u32 s84, 1664")
    a(f"s_cbranch_scc1 {Ld}")
    a(f"s_branch {Lnone}")
def patterns(a, n, lanes, pitch):
    for p in range(n):
        a(f"v_add_u32 v{RT}, {64*p}, v0")
        vdiv_small(a, RT+1, RT, lanes)
        a(f"v_mul_u32_u24 v{RT+2}, {lanes}, v{RT+1}")
        a(f"v_sub_u32 v{RT+2}, v{RT}, v{RT+2}")
        a(f"v_mul_u32_u24 v{RT+1}, {pitch}, v{RT+1}")
        a(f"v_lshl_add_u32 v{RTP+p}, v{RT+2}, 4, v{RT+1}")
def retile_loads(a):
    Lgu, Ld, Ln = a.uid("rt_gu"), a.uid("rt_d"), a.uid("rt_n")
    retile_role(a, Lgu, Ld, Ln)
    a.label(Lgu)
    patterns(a, 3, 12, 3072)
    a("s_and_b32 s85, s84, 1")
    a("s_lshr_b32 s86, s84, 1")
    divmod_const(a, 87, 88, 86, 40)
    a("s_cmp_eq_u32 s85, 0")
    a(f"s_cselect_b32 s56, s{P_WG}, s{P_WU}")
    a(f"s_cselect_b32 s57, s{P_WG+1}, s{P_WU+1}")
    a(f"s_mov_b32 s58, {hex(640*1536*2)}")
    a("s_mov_b32 s59, 0x20000")
    a("s_mul_i32 s89, s88, 49152")
    a("s_mul_i32 s90, s87, 192")
    a("s_add_u32 s89, s89, s90")
    for p in range(3): a(f"buffer_load_dwordx4 v[{RT+4*p}:{RT+4*p+3}], v{RTP+p}, s[56:59], s89 offen")
    a("s_mul_i32 s90, s87, 245760")
    a("s_lshr_b32 s91, s88, 2")
    a("s_mul_i32 s91, s91, 24576")
    a("s_add_u32 s90, s90, s91")
    a("s_mul_i32 s91, s85, 12288")
    a("s_add_u32 s90, s90, s91")
    a("s_and_b32 s91, s88, 3")
    a("s_mul_i32 s91, s91, 3072")
    a("s_add_u32 s85, s90, s91")
    a(f"s_branch {Ln}")
    a.label(Ld)
    patterns(a, 5, 10, 1280)
    a("s_sub_u32 s86, s84, 1280")
    divmod_const(a, 87, 88, 86, 48)
    srd(a, 56, P_WD, 0, 1536*640*2)
    a("s_mul_i32 s89, s88, 40960")
    a("s_mul_i32 s90, s87, 160")
    a("s_add_u32 s89, s89, s90")
    for p in range(5): a(f"buffer_load_dwordx4 v[{RT+4*p}:{RT+4*p+3}], v{RTP+p}, s[56:59], s89 offen")
    a("s_mul_i32 s90, s87, 245760")
    a("s_mul_i32 s91, s88, 5120")
    a("s_add_u32 s85, s90, s91")
    a.label(Ln)
def retile_stores(a):
    Lgu, Ld, Ln = a.uid("rs_gu"), a.uid("rs_d"), a.uid("rs_n")
    retile_role(a, Lgu, Ld, Ln)
    a.label(Lgu)
    srd(a, 56, P_WS, WS_WGU, SZ_WGU)
    for p in range(3): a(f"buffer_store_dwordx4 v[{RT+4*p}:{RT+4*p+3}], v1, s[56:59], s85 offen offset:{1024*p}{SC}")
    a(f"s_branch {Ln}")
    a.label(Ld)
    srd(a, 56, P_WS, WS_WD, SZ_WD)
    for p in range(5):
        if p < 4: a(f"buffer_store_dwordx4 v[{RT+4*p}:{RT+4*p+3}], v1, s[56:59], s85 offen offset:{1024*p}{SC}")
        else:
            a("s_add_u32 s85, s85, 4096")
            a(f"buffer_store_dwordx4 v[{RT+4*p}:{RT+4*p+3}], v1, s[56:59], s85 offen{SC}")
    a.label(Ln)
```

```python
from gemm import *

def map_thin(a):
    a("s_and_b32 s71, s2, 7")
    a("s_lshr_b32 s72, s2, 3")
    a("s_and_b32 s73, s71, 3")
    a("s_lshl_b32 s73, s73, 3")
    a("s_and_b32 s74, s72, 7")
    a(f"s_add_u32 s{S_RB}, s73, s74")
    a("s_lshr_b32 s73, s71, 2")
    a("s_lshl_b32 s73, s73, 2")
    a("s_lshr_b32 s74, s72, 3")
    a(f"s_add_u32 s{S_CG}, s73, s74")

TA, TB = 20480, 16384
T_RB = 4*TA
T_RES = T_RB + 3*TB
T_TAB = T_RES + 10240
T_RED = T_TAB + 1024
T_ST = T_RED + 3072
ACC0 = 64

def thin_compute_setup(a):
    tr_lane_parts(a, 11, 12, 13)
    a("v_lshl_add_u32 v11, v3, 2, v11")
    a("v_mul_u32_u24 v11, 160, v11")
    a(f"s_cmp_eq_u32 s{S_WAVE}, 2")
    a("s_cselect_b32 s71, 0, 32")
    a("v_mul_u32_u24 v12, s71, v12")
    a("v_add_u32 v11, v11, v12")
    a("v_lshl_add_u32 v11, v13, 3, v11")
    a(f"s_lshl_b32 s71, s{S_WAVE}, 6")
    a("v_add_u32 v11, s71, v11")
    lds_addr_set(a, 4, 2, 11)

def thin_loop(a, KS, grouped_b, sb):
    if grouped_b:
        a("v_lshlrev_b32 v12, 3, v2")
        a("v_lshl_add_u32 v12, v3, 8, v12")
        a(f"v_add_u32 v12, {T_RB}, v12")
    else:
        a(f"v_add_u32 v12, {T_RB}, v1")
    lds_addr_set(a, 8, 2, 12)
    def sh(s, reg):
        o = ((s//8) % 4)*TA + (s % 8)*2560
        v0, o0 = seg(4, o); v1, o1 = seg(4, o + 1280)
        return two64(reg, v0, o0, v1, o1, True)
    def pvv(s, t, reg):
        o = ((s//8) % 3)*TB + t*8192 + (s % 8)*1024
        if grouped_b: return two64(reg, 8, o, 8, o + 512, False)
        return b128(reg, 8, o)
    compute_loop(a, KS=KS, CK=8, NU=2, P=4, acc=lambda t: ACC0+16*t, sh_regs=[32, 36, 40], pv_regs=[16, 20, 24, 28],
                 sh_reads=sh, pv_reads=pvv, swap=True, sb=sb)

def thin_loader(a, *, NC, KS, raw_pitch, n_pre_a, extra_barriers, sb):
    a(f"s_lshl_b32 s72, s{S_J}, 10")
    a("v_add_u32 v7, s72, v1")
    a(f"s_mul_i32 s77, s{S_J}, 5120")
    if raw_pitch:
        for p in range(5):
            a(f"v_add_u32 v8, {64*p}, v0")
            vdiv_small(a, 9, 8, 10)
            a("v_mul_u32_u24 v10, 10, v9")
            a("v_sub_u32 v10, v8, v10")
            a(f"v_mul_u32_u24 v9, {raw_pitch}, v9")
            a(f"v_lshl_add_u32 v{16+p}, v10, 4, v9")
        a(f"s_mul_i32 s73, s{S_J}, {32*raw_pitch}")
        a(f"s_mul_i32 s76, s{S_CG}, 160")
        a("s_add_u32 s73, s73, s76")
    else:
        a(f"s_mul_i32 s73, s{S_CG}, {KS*16*160}")
        a("s_add_u32 s73, s73, s77")
    a(f"s_lshl_b32 s74, s{S_RB}, 1")
    a(f"s_mul_i32 s74, s74, {KS*1024}")
    def a_issue(c):
        for p in range(5):
            if raw_pitch: dma(a, 77, (c % 4)*TA + p*1024, 16+p, SRD_A, 73, c*128*raw_pitch, False)
            else: dma(a, 77, (c % 4)*TA + p*1024, 1, SRD_A, 73, c*TA + p*1024, True)
        return 5
    def b_issue(c):
        for n in range(4):
            tb, hl = divmod(n, 2)
            dma(a, 72, T_RB + (c % 3)*TB + n*4096, 7, SRD_B, 74, tb*KS*1024 + c*8192 + hl*4096, True)
        return 4
    def residual(vq):
        a(f"s_lshl_b32 s78, s{S_RB}, 1")
        a("s_mul_i32 s78, s78, 40960")
        a(f"s_mul_i32 s79, s{S_CG}, 5120")
        a("s_add_u32 s78, s78, s79")
        L = a.uid("res")
        for n in range(3):
            if n == 2:
                a(f"s_cmp_ge_u32 s{S_J}, 2")
                a(f"s_cbranch_scc1 {L}")
            a(f"s_add_u32 s79, s{S_J}, {4*n}")
            a("s_cmp_ge_u32 s79, 5")
            a("s_cselect_b32 s80, 35840, 0")
            a("s_lshl_b32 s79, s79, 10")
            a(f"s_add_u32 m0, s79, {T_RES}")
            a("s_add_u32 s79, s79, s80")
            a("s_add_u32 s79, s79, s78")
            a(f"buffer_load_dwordx4 v1, s[{SRD_E1}:{SRD_E1+3}], s79 offen{SC} lds")
        a.label(L)
    plain_loader(a, NC=NC, a_issue=a_issue, b_issue=b_issue, n_pre_a=n_pre_a, after_pre=residual,
                 deps=lambda: a("s_barrier"), extra_barriers=extra_barriers, sb=sb)

def table_wave(a, vecs, plus_one):
    n = len(vecs)
    a(f"v_min_u32 v4, {20*n-1}, v0")
    vdiv_small(a, 5, 4, 20)
    a("v_mul_u32_u24 v6, 20, v5")
    a("v_sub_u32 v6, v4, v6")
    a(f"v_add_u32 v7, {vecs[0]}, v5")
    a("v_mul_u32_u24 v7, 160, v7")
    a("v_add_u32 v7, v7, v6")
    a(f"s_mul_i32 s71, s{S_CG}, 20")
    a("v_add_u32 v7, s71, v7")
    a("v_lshlrev_b32 v7, 4, v7")
    a(f"buffer_load_dwordx4 v[8:11], v7, s[{SRD_M}:{SRD_M+3}], 0 offen{SC}")
    a("v_mul_u32_u24 v7, 320, v5")
    a("v_lshl_add_u32 v7, v6, 4, v7")
    a(f"v_add_u32 v7, {T_TAB}, v7")
    a("s_barrier")
    a("s_barrier")
    a("s_waitcnt vmcnt(0)")
    unpack4(a, 12, 8)
    if plus_one is not None:
        for j in range(4): a(f"v_mov_b32 v{16+j}, v{12+j}")
        a(f"v_cmp_eq_u32 vcc, {plus_one}, v5")
        one_plus_round(a, 16)
        for j in range(4): a(f"v_cndmask_b32 v{12+j}, v{12+j}, v{16+j}, vcc")
    a("ds_write_b128 v7, v[12:15]")
    a("s_waitcnt lgkmcnt(0)")

def read_table(a, dst, k):
    for g in range(4): a(f"ds_read_b128 v[{dst+4*g}:{dst+4*g+3}], v13 offset:{320*k + 32*g}")
def epi_setup(a):
    a(f"s_lshl_b32 s71, s{S_WAVE}, 7")
    a(f"s_add_u32 s71, s71, {T_TAB}")
    a("v_lshl_add_u32 v13, v3, 4, s71")
    a(f"s_lshl_b32 s71, s{S_WAVE}, 11")
    a(f"s_add_u32 s71, s71, {T_RES}")
    a("v_add_u32 v14, s71, v1")
def read_residual(a, XR):
    for u in range(2):
        for tp in range(2):
            a(f"ds_read_b128 v[{XR+8*u+4*tp}:{XR+8*u+4*tp+3}], v14 offset:{u*5120 + tp*1024}")

def gen_p3(a):
    map_thin(a)
    srd(a, SRD_A, P_WO, 0, 640*640*2)
    srd(a, SRD_B, P_WS, WS_O, SZ_O)
    srd(a, SRD_M, P_WS, WS_MODG, SZ_MODG)
    srd(a, SRD_E1, P_WS, WS_XR, SZ_XR)
    lane_consts(a)
    L_comp, L_w3, L_fin = a.uid("P3_comp"), a.uid("P3_w3"), a.uid("P3_fin")
    a(f"s_cmp_lt_u32 s{S_WAVE}, 4")
    a(f"s_cbranch_scc1 {L_comp}")
    a(f"s_sub_u32 s{S_J}, s{S_WAVE}, 4")
    thin_loader(a, NC=5, KS=40, raw_pitch=1280, n_pre_a=3, extra_barriers=2, sb=28)
    a(f"s_branch {L_fin}")
    a.label(L_comp)
    a(f"s_cmp_eq_u32 s{S_WAVE}, 3")
    a(f"s_cbranch_scc1 {L_w3}")
    srd(a, SRD_E0, P_WS, WS_X1, SZ_X1)
    srd(a, SRD_E2, P_WS, WS_H2, SZ_H2)
    thin_compute_setup(a)
    a(f"s_lshr_b32 s71, s{S_RB}, 2")
    a("s_lshl_b32 s71, s71, 5")
    a("v_add_u32 v240, s71, v2")
    wait_flags(a, [240], 2)
    a("s_barrier")
    thin_loop(a, 40, True, 28)
    GA, XR, G2, S2 = 112, 96, 128, 144
    epi_setup(a)
    read_table(a, GA, 0); read_residual(a, XR)
    a(f"s_mul_i32 s73, s{S_CG}, 5")
    a(f"s_lshl_b32 s74, s{S_WAVE}, 1")
    a("s_add_u32 s73, s73, s74")
    a("s_lshl_b32 s73, s73, 10")
    a(f"s_lshl_b32 s74, s{S_RB}, 1")
    a("s_mul_i32 s74, s74, 40960")
    a("s_add_u32 s73, s73, s74")
    a("s_waitcnt lgkmcnt(0)")
    a.nop(2)
    def per_half(u, body):
        L = a.uid("P3_e")
        for tp in range(2):
            if tp == 1:
                a(f"s_cmp_eq_u32 s{S_WAVE}, 2")
                a(f"s_cbranch_scc1 {L}")
            body(tp)
        a.label(L)
    for u in range(2):
        acc = ACC0 + 16*u
        sm, sq = 44 + 2*u, 45 + 2*u
        a(f"v_mov_b32 v{sm}, 0")
        a(f"v_mov_b32 v{sq}, 0")
        a(f"s_add_u32 s75, s73, {u*40960}")
        def body(tp):
            for gg in range(2):
                g = 2*tp + gg
                for jj in range(2):
                    x = XR + 8*u + 2*g + jj
                    a(f"v_lshlrev_b32 v48, 16, v{x}")
                    a(f"v_and_b32 v49, 0xffff0000, v{x}")
                    r = acc + 4*g + 2*jj
                    a(f"v_fma_f32 v{r}, v{GA+4*g+2*jj}, v{r}, v48")
                    a(f"v_fma_f32 v{r+1}, v{GA+4*g+2*jj+1}, v{r+1}, v49")
            p = 16 + 4*(2*u + tp)
            for j in range(4): a(f"v_cvt_pk_bf16_f32 v{p+j}, v{acc+8*tp+2*j}, v{acc+8*tp+2*j+1}")
            a(f"buffer_store_dwordx4 v[{p}:{p+3}], v1, s[{SRD_E0}:{SRD_E0+3}], s75 offen offset:{1024*tp}{SC}")
            for j in range(4):
                a(f"v_lshlrev_b32 v{acc+8*tp+2*j}, 16, v{p+j}")
                a(f"v_and_b32 v{acc+8*tp+2*j+1}, 0xffff0000, v{p+j}")
            for i in range(8):
                a(f"v_add_f32 v{sm}, v{sm}, v{acc+8*tp+i}")
                a(f"v_fmac_f32 v{sq}, v{acc+8*tp+i}, v{acc+8*tp+i}")
        per_half(u, body)
    a(f"s_lshl_b32 s75, s{S_WAVE}, 9")
    a(f"s_add_u32 s75, s75, {T_RED}")
    a("v_lshl_add_u32 v15, v0, 3, s75")
    a("ds_write_b64 v15, v[44:45]")
    a("ds_write_b64 v15, v[46:47] offset:1536")
    read_table(a, S2, 1); read_table(a, G2, 2)
    a("s_waitcnt lgkmcnt(0)")
    stamp(a, 32)
    a("s_barrier")
    a("s_barrier")
    stamp(a, 33)
    a("v_lshlrev_b32 v15, 3, v2")
    a(f"v_add_u32 v15, {T_ST}, v15")
    a("ds_read_b64 v[44:45], v15")
    a("ds_read_b64 v[46:47], v15 offset:256")
    a("s_waitcnt lgkmcnt(0)")
    for u in range(2):
        acc = ACC0 + 16*u
        a(f"s_add_u32 s75, s73, {u*40960}")
        def body(tp):
            for i in range(8):
                r = acc + 8*tp + i
                a(f"v_fma_f32 v{r}, v{r}, v{44+2*u}, v{45+2*u}")
            for i in range(8):
                r = acc + 8*tp + i
                a(f"v_fma_f32 v{r}, v{r}, v{G2+8*tp+i}, v{S2+8*tp+i}")
            p = 16 + 4*(2*u + tp)
            for j in range(4): a(f"v_cvt_pk_bf16_f32 v{p+j}, v{acc+8*tp+2*j}, v{acc+8*tp+2*j+1}")
            a(f"buffer_store_dwordx4 v[{p}:{p+3}], v1, s[{SRD_E2}:{SRD_E2+3}], s75 offen offset:{1024*tp}{SC}")
        per_half(u, body)
    a(f"s_branch {L_fin}")
    a.label(L_w3)
    table_wave(a, [2, 3, 4], 2)
    for _ in range(4): a("s_barrier")
    a("s_barrier")
    srd(a, SRD_E0, P_WS, WS_STAT, SZ_STAT)
    a("v_mul_u32_u24 v13, 1536, v3")
    a("v_lshl_add_u32 v13, v2, 3, v13")
    a(f"v_add_u32 v13, {T_RED}, v13")
    for T in range(3):
        for h in range(2):
            r = 48 + 2*(2*T+h)
            a(f"ds_read_b64 v[{r}:{r+1}], v13 offset:{T*512 + h*256}")
    a("s_waitcnt lgkmcnt(0)")
    for i in range(1, 6):
        a(f"v_add_f32 v48, v48, v{48+2*i}")
        a(f"v_add_f32 v49, v49, v{49+2*i}")
    a(f"v_mov_b32 v50, s{S_NONCE}")
    a("v_mov_b32 v51, 0")
    a(f"s_lshl_b32 s75, s{S_RB}, 13")
    a(f"s_lshl_b32 s76, s{S_CG}, 10")
    a("s_add_u32 s76, s76, s75")
    a(f"buffer_store_dwordx4 v[48:51], v1, s[{SRD_E0}:{SRD_E0+3}], s76 offen{SC}")
    loads = []
    for c in range(8):
        if c % 4 == 0: loads.append(f"s_add_u32 s76, s75, {c*1024}")
        loads.append(f"buffer_load_dwordx4 v[{64+4*c}:{67+4*c}], v1, s[{SRD_E0}:{SRD_E0+3}], s76 offen offset:{1024*(c % 4)}{SC}")
    poll_granules(a, loads, [66+4*c for c in range(8)], "P3_stat")
    for c in range(1, 8):
        a(f"v_add_f32 v64, v64, v{64+4*c}")
        a(f"v_add_f32 v65, v65, v{65+4*c}")
    a(f"v_mul_f32 v64, {fl(1.0/640)}, v64")
    a(f"v_mul_f32 v65, {fl(1.0/640)}, v65")
    a("v_fma_f32 v65, -v64, v64, v65")
    a("v_max_f32 v65, 0, v65")
    a(f"v_add_f32 v65, {fl(1e-5)}, v65")
    a("v_rsq_f32 v66, v65")
    a("s_nop 0")
    a("v_mul_f32 v67, v64, v66")
    a("v_sub_f32 v67, 0, v67")
    a("v_lshlrev_b32 v13, 3, v0")
    a(f"v_add_u32 v13, {T_ST}, v13")
    a("ds_write_b64 v13, v[66:67]")
    a("s_waitcnt lgkmcnt(0)")
    a("s_barrier")
    for n in range(4): a(f"v_add_u32 v{240+n}, {64*n}, v0")
    wait_flags(a, [240, 241, 242, 243], 2, wave=3)
    a.label(L_fin)
    stamp(a, 34)
    a("s_waitcnt vmcnt(0)")
    a("s_barrier")
    a(f"s_lshl_b32 s71, s{S_RB}, 3")
    a(f"s_add_u32 s71, s71, s{S_CG}")
    signal(a, 3, 71)
    stamp(a, 35)

def gen_p5(a):
    map_thin(a)
    srd(a, SRD_A, P_WS, WS_WD, SZ_WD)
    srd(a, SRD_B, P_WS, WS_HH, SZ_HH)
    srd(a, SRD_M, P_WS, WS_MODG, SZ_MODG)
    srd(a, SRD_E1, P_WS, WS_X1, SZ_X1)
    lane_consts(a)
    L_comp, L_w3, L_fin = a.uid("P5_comp"), a.uid("P5_w3"), a.uid("P5_fin")
    a(f"s_cmp_lt_u32 s{S_WAVE}, 4")
    a(f"s_cbranch_scc1 {L_comp}")
    a(f"s_sub_u32 s{S_J}, s{S_WAVE}, 4")
    thin_loader(a, NC=12, KS=96, raw_pitch=0, n_pre_a=3, extra_barriers=0, sb=44)
    a(f"s_branch {L_fin}")
    a.label(L_comp)
    a(f"s_cmp_eq_u32 s{S_WAVE}, 3")
    a(f"s_cbranch_scc1 {L_w3}")
    srd(a, SRD_E0, P_OUT, 0, S*D*2)
    thin_compute_setup(a)
    a(f"s_lshr_b32 s71, s{S_RB}, 1")
    a("s_lshl_b32 s71, s71, 4")
    a("v_and_b32 v240, 15, v0")
    a("v_add_u32 v240, s71, v240")
    wait_flags(a, [240], 4)
    a("s_barrier")
    thin_loop(a, 96, False, 44)
    GB, XR = 112, 96
    epi_setup(a)
    read_table(a, GB, 0); read_residual(a, XR)
    a("v_mul_u32_u24 v14, 1280, v2")
    a("v_lshl_add_u32 v14, v3, 3, v14")
    a(f"s_mul_i32 s72, s{S_CG}, 160")
    a(f"s_lshl_b32 s73, s{S_WAVE}, 6")
    a("s_add_u32 s72, s72, s73")
    a(f"s_mul_i32 s73, s{S_RB}, {64*1280}")
    a("s_add_u32 s72, s72, s73")
    a("s_waitcnt lgkmcnt(0)")
    a.nop(2)
    for u in range(2):
        acc = ACC0 + 16*u
        L = a.uid("P5_e")
        a(f"s_add_u32 s74, s72, {u*32*1280}")
        for g in range(4):
            if g == 2:
                a(f"s_cmp_eq_u32 s{S_WAVE}, 2")
                a(f"s_cbranch_scc1 {L}")
            for jj in range(2):
                x = XR + 8*u + 2*g + jj
                a(f"v_lshlrev_b32 v48, 16, v{x}")
                a(f"v_and_b32 v49, 0xffff0000, v{x}")
                r = acc + 4*g + 2*jj
                a(f"v_fma_f32 v{r}, v{GB+4*g+2*jj}, v{r}, v48")
                a(f"v_fma_f32 v{r+1}, v{GB+4*g+2*jj+1}, v{r+1}, v49")
            p = 16 + 2*((4*u+g) % 8)
            a(f"v_cvt_pk_bf16_f32 v{p}, v{acc+4*g}, v{acc+4*g+1}")
            a(f"v_cvt_pk_bf16_f32 v{p+1}, v{acc+4*g+2}, v{acc+4*g+3}")
            a(f"buffer_store_dwordx2 v[{p}:{p+1}], v14, s[{SRD_E0}:{SRD_E0+3}], s74 offen offset:{16*g}")
        a.label(L)
    a(f"s_branch {L_fin}")
    a.label(L_w3)
    table_wave(a, [5], None)
    for _ in range(11): a("s_barrier")
    a.label(L_fin)
    stamp(a, 48)

SLOT4 = 24640
P4_RB = 4*SLOT4
def gen_p4(a):
    a("s_and_b32 s71, s2, 7")
    a("s_lshr_b32 s72, s2, 3")
    a("s_and_b32 s73, s71, 1")
    a("s_lshl_b32 s73, s73, 3")
    a("s_and_b32 s74, s72, 7")
    a(f"s_add_u32 s{S_RB}, s73, s74")
    a("s_lshr_b32 s73, s71, 1")
    a("s_lshl_b32 s73, s73, 2")
    a("s_lshr_b32 s74, s72, 3")
    a(f"s_add_u32 s{S_CG}, s73, s74")
    srd(a, SRD_A, P_WS, WS_WGU, SZ_WGU)
    srd(a, SRD_B, P_WS, WS_H2, SZ_H2)
    lane_consts(a)
    L_comp, L_fin = a.uid("P4_comp"), a.uid("P4_fin")
    a(f"s_cmp_lt_u32 s{S_WAVE}, 4")
    a(f"s_cbranch_scc1 {L_comp}")
    a(f"s_sub_u32 s{S_J}, s{S_WAVE}, 4")
    a(f"s_lshl_b32 s72, s{S_J}, 10")
    a("v_add_u32 v7, s72, v1")
    a(f"s_mul_i32 s77, s{S_J}, 3072")
    a(f"s_mul_i32 s73, s{S_CG}, 245760")
    a("s_add_u32 s73, s73, s77")
    a(f"s_lshl_b32 s74, s{S_RB}, 2")
    a("s_mul_i32 s74, s74, 40960")
    def a_issue(c):
        for m in range(2):
            for p in range(3): dma(a, 77, (c % 4)*SLOT4 + m*12320 + p*1024, 1, SRD_A, 73, c*24576 + m*12288 + p*1024, True)
        return 6
    def b_issue(c):
        for tb in range(4): dma(a, 72, P4_RB + (c % 3)*16384 + tb*4096, 7, SRD_B, 74, tb*40960 + c*4096, True)
        return 4
    plain_loader(a, NC=10, a_issue=a_issue, b_issue=b_issue, n_pre_a=3, after_pre=lambda vq: None,
                 deps=lambda: a("s_barrier"), sb=36)
    a(f"s_branch {L_fin}")
    a.label(L_comp)
    srd(a, SRD_E1, P_WS, WS_HH, SZ_HH)
    tr_lane_parts(a, 8, 9, 10)
    a("v_lshl_add_u32 v8, v3, 2, v8")
    a("v_mul_u32_u24 v8, 192, v8")
    a("v_mul_u32_u24 v9, 12320, v9")
    a("v_add_u32 v8, v8, v9")
    a("v_lshl_add_u32 v8, v10, 3, v8")
    lds_addr_set(a, 4, 2, 8)
    a(f"s_lshl_b32 s71, s{S_WAVE}, 12")
    a(f"s_add_u32 s71, s71, {P4_RB}")
    a("v_add_u32 v6, s71, v1")
    ACC = 64
    def pv_reads(s, t, reg):
        o = ((s//4) % 4)*SLOT4 + (s % 4)*3072 + t*32
        v0, o0 = seg(4, o); v1, o1 = seg(4, o + 1536)
        return two64(reg, v0, o0, v1, o1, True)
    a(f"s_lshl_b32 s71, s{S_RB}, 4")
    a("v_and_b32 v240, 15, v0")
    a("v_add_u32 v240, s71, v240")
    wait_flags(a, [240], 3)
    a("s_barrier")
    compute_loop(a, KS=40, CK=4, NU=6, P=6, acc=lambda t: ACC+16*t, sh_regs=[40, 44], pv_regs=[16, 20, 24, 28, 32, 36],
                 sh_reads=lambda s, reg: b128(reg, 6, ((s//4) % 3)*16384 + (s % 4)*1024), pv_reads=pv_reads, swap=False, sb=36)
    a(f"s_lshl_b32 s72, s{S_RB}, 2")
    a(f"s_add_u32 s72, s72, s{S_WAVE}")
    a("s_mul_i32 s72, s72, 98304")
    a(f"s_mul_i32 s73, s{S_CG}, 6144")
    a("s_add_u32 s72, s72, s73")
    a.nop(8)
    for T in range(6):
        g = ACC + 16*T; u = g + 8
        for i in range(8): a(f"v_mul_f32 v{g+i}, {fl(-LOG2E)}, v{g+i}")
        for i in range(8): a(f"v_exp_f32 v{g+i}, v{g+i}")
        for i in range(8): a(f"v_add_f32 v{g+i}, 1.0, v{g+i}")
        for i in range(8): a(f"v_rcp_f32 v{g+i}, v{g+i}")
        for i in range(8): a(f"v_mul_f32 v{g+i}, v{g+i}, v{u+i}")
        p = 16 + 4*(T % 4)
        for j in range(4): a(f"v_cvt_pk_bf16_f32 v{p+j}, v{g+2*j}, v{g+2*j+1}")
        a(f"s_add_u32 s73, s72, {T*1024}")
        a(f"buffer_store_dwordx4 v[{p}:{p+3}], v1, s[{SRD_E1}:{SRD_E1+3}], s73 offen{SC}")
    a.label(L_fin)
    stamp(a, 41)
    a("s_waitcnt vmcnt(0)")
    a("s_barrier")
    a(f"s_lshl_b32 s71, s{S_RB}, 4")
    a(f"s_add_u32 s71, s71, s{S_CG}")
    signal(a, 4, 71)
    stamp(a, 42)
```

```python
import sys
from common import *
import p01, p2, p345

NAME = "adaLN_cond__mha_block__glu_gated_glu__prompt"
REF = open(f"cdna_kernels/{NAME}.s.ref").read()
HEADER = REF.split("; Override launch geometry")[0]
KNAME = NAME + "_kernel"

def ts_setup(a):
    srd(a, 4, P_WS, WS_TS, SZ_TS)
    a("s_lshl_b32 s8, s2, 3")
    a(f"s_add_u32 s8, s8, s{S_WAVE}")
    a("s_lshl_b32 s8, s8, 8")
    a("v_mov_b32 v255, 0")
    a("s_nop 0")
    a("v_writelane_b32 v255, s10, 62")
    a("v_writelane_b32 v255, s14, 0")
    stamp(a, 58)
def ts_end(a):
    stamp(a, 60)
    a("s_waitcnt vmcnt(0)")
    stamp(a, 61)
    a("s_memrealtime s[10:11]")
    a("s_waitcnt lgkmcnt(0)")
    a("s_mov_b64 exec, -1")
    a("v_writelane_b32 v255, s10, 63")
    a("v_mbcnt_lo_u32_b32 v4, -1, 0")
    a("v_mbcnt_hi_u32_b32 v4, -1, v4")
    a("v_lshlrev_b32 v4, 2, v4")
    a("buffer_store_dword v255, v4, s[4:7], s8 offen")

def build(instrument=False):
    CTX.persistent, CTX.instrument = True, instrument
    a = Asm()
    fin = "L_fin"
    if instrument:
        a("s_memrealtime s[10:11]")
        a("s_memtime s[14:15]")
    prologue(a, 256, fin)
    if instrument: ts_setup(a)
    p01.gen_p01(a)
    p2.gen_p2(a)
    p345.gen_p3(a)
    p345.gen_p4(a)
    p345.gen_p5(a)
    kernel_publish_nonce(a)
    if instrument: ts_end(a)
    a.label(fin)
    a("s_endpgm")
    problems = check_hazards(a.lines, KNAME)
    s = HEADER + "; @launch grid=(256,1,1) block=(512,1,1) lds=163840\n" + '.amdgcn_target "amdgcn-amd-amdhsa--gfx950"\n.text\n'
    s += kernel_text(KNAME, a) + '.section .rodata,"a"\n' + descriptor(KNAME)
    return s, problems

if __name__ == "__main__":
    s, problems = build(instrument="-ts" in sys.argv)
    for p in problems: print("HAZARD", p)
    out = sys.argv[1] if len(sys.argv) > 1 and not sys.argv[1].startswith("-") else "pers.s"
    open(out, "w").write(s)
    print("wrote", out, len(s), "bytes;", len(problems), "hazards")
```

```python
from gemm import *
QSCALE = (20 ** -0.5) * LOG2E
P0_RED, P0_TAB, P0_STG, P0_STX = 131072, 139264, 144384, 114688
P1_RB = 65536

def reduce_swap(a, op, x, t):
    a(f"v_mov_b32 v{t}, v{x}")
    a("s_nop 1")
    a(f"{op} v{x}, v{t}")
    a("s_nop 1")
    a(f"v_add_f32 v{x}, v{x}, v{t}")

def map_p1(a):
    a("s_and_b32 s71, s2, 7")
    a("s_lshr_b32 s72, s2, 3")
    a("s_lshr_b32 s73, s71, 1")
    a("s_lshl_b32 s73, s73, 2")
    a("s_and_b32 s74, s72, 3")
    a(f"s_add_u32 s{S_RB}, s73, s74")
    a("s_and_b32 s73, s71, 1")
    a("s_lshl_b32 s73, s73, 3")
    a("s_lshr_b32 s74, s72, 2")
    a(f"s_add_u32 s{S_CG}, s73, s74")

def staged_store(a, pieces, srd_, tag_sc=True):
    for i, n in enumerate(pieces): a(f"ds_read_b128 v[{84+4*i}:{87+4*i}], v80 offset:{n*1024}")
    for i, n in enumerate(pieces):
        a(f"s_waitcnt lgkmcnt({len(pieces)-1-i})")
        a(f"s_add_u32 s83, s82, {n*4096}")
        a(f"buffer_store_dwordx4 v[{84+4*i}:{87+4*i}], v81, s[{srd_}:{srd_+3}], s83 offen{SC}")

def staged_addr(a, base):
    a("v_lshlrev_b32 v80, 4, v0")
    a(f"v_add_u32 v80, {base}, v80")
    a("v_lshrrev_b32 v81, 4, v0")
    a("v_lshlrev_b32 v81, 10, v81")
    a("v_bfe_u32 v82, v0, 3, 1")
    a("v_lshl_add_u32 v81, v82, 9, v81")
    a("v_and_b32 v82, 7, v0")
    a("v_lshl_add_u32 v81, v82, 4, v81")
    a("s_lshr_b32 s82, s2, 2")
    a("s_mul_i32 s82, s82, 40960")
    a("s_and_b32 s83, s2, 3")
    a("s_lshl_b32 s83, s83, 7")
    a("s_add_u32 s82, s82, s83")

def p1_a_setup(a):
    a(f"s_sub_u32 s{S_J}, s{S_WAVE}, 4")
    a("v_lshrrev_b32 v8, 4, v0")
    a("v_bfe_u32 v9, v0, 2, 2")
    a("v_xor_b32 v9, v9, v8")
    a("v_and_b32 v10, 3, v0")
    a("v_mul_u32_u24 v56, 3840, v8")
    a("v_lshl_add_u32 v56, v9, 6, v56")
    a("v_lshl_add_u32 v56, v10, 4, v56")
    a(f"s_mul_i32 s73, s{S_J}, {16*3840}")
    a(f"s_lshl_b32 s77, s{S_CG}, 8")
    a("s_add_u32 s73, s73, s77")
    a(f"s_lshl_b32 s77, s{S_J}, 12")
def p1_a_issue(a, c):
    for n in range(4): dma(a, 77, (c % 4)*16384 + n*1024, 56, SRD_A, 73, (c*64 + 4*n)*3840, False)
    return 4

def gen_p01(a):
    L_ln, L_A = a.uid("P0_ln"), a.uid("P0_A")
    kernel_setup(a)
    map_p1(a)
    srd(a, SRD_A, P_WQKV, 0, 640*1920*2)
    a(f"s_cmp_ge_u32 s{S_WAVE}, 4")
    a(f"s_cbranch_scc1 {L_ln}")
    L_nomod = a.uid("P0_nomod")
    srd(a, 56, P_WMOD, 0, 640*3840*2)
    srd(a, 60, P_C, 0, 640*2)
    a("s_and_b32 s84, s2, 7")
    a("s_lshr_b32 s85, s2, 3")
    a("s_mul_i32 s86, s84, 10")
    a("s_add_u32 s86, s86, s85")
    a("s_mul_i32 s87, s84, 20")
    a("s_add_u32 s87, s87, s85")
    a("s_add_u32 s87, s87, 70")
    a("s_cmp_lt_u32 s85, 10")
    a("s_cselect_b32 s86, s86, s87")
    a("s_cmp_ge_u32 s2, 240")
    a(f"s_cbranch_scc1 {L_nomod}")
    a("v_lshrrev_b32 v2, 1, v0")
    a("v_and_b32 v3, 1, v0")
    a(f"s_mul_i32 s87, s{S_WAVE}, 160")
    a("v_add_u32 v4, s87, v2")
    a("v_lshlrev_b32 v5, 1, v4")
    a("s_movk_i32 s87, 7680")
    a("v_mul_lo_u32 v6, v4, s87")
    a("s_lshl_b32 s88, s86, 5")
    a("v_lshl_add_u32 v6, v3, 4, v6")
    a("v_add_u32 v6, s88, v6")
    for m in range(5): a(f"buffer_load_ushort v{8+m}, v5, s[60:63], 0 offen offset:{64*m}")
    for m in range(5):
        a(f"s_mov_b32 s87, {m*32*7680}")
        a(f"buffer_load_dwordx4 v[{16+4*m}:{19+4*m}], v6, s[56:59], s87 offen")
    a("s_waitcnt vmcnt(5)")
    kernel_nonce(a)
    for m in range(5): a(f"v_lshlrev_b32 v{8+m}, 16, v{8+m}")
    for m in range(5): a(f"v_mul_f32 v{40+m}, {fl(-LOG2E)}, v{8+m}")
    for m in range(5): a(f"v_exp_f32 v{40+m}, v{40+m}")
    a("s_nop 0")
    for m in range(5): a(f"v_add_f32 v{40+m}, 1.0, v{40+m}")
    for m in range(5): a(f"v_rcp_f32 v{40+m}, v{40+m}")
    a("s_nop 0")
    for m in range(5): a(f"v_mul_f32 v{8+m}, v{8+m}, v{40+m}")
    for m in range(5): a(f"v_cvt_pk_bf16_f32 v{8+m}, v{8+m}, v{8+m}")
    for m in range(5): a(f"v_and_b32 v{8+m}, 0xffff0000, v{8+m}")
    for m in range(5):
        a(f"s_waitcnt vmcnt({4-m})")
        for j in range(4):
            a(f"v_lshlrev_b32 v46, 16, v{16+4*m+j}")
            a(f"v_and_b32 v47, 0xffff0000, v{16+4*m+j}")
            op = "v_mul_f32" if m == 0 else "v_fmac_f32"
            a(f"{op} v{48+2*j}, v{8+m}, v46")
            a(f"{op} v{49+2*j}, v{8+m}, v47")
    a(f"s_lshl_b32 s87, s{S_WAVE}, 11")
    a(f"s_add_u32 s87, s87, {P0_RED}")
    a("v_lshlrev_b32 v7, 5, v0")
    a("v_add_u32 v7, s87, v7")
    a("ds_write_b128 v7, v[48:51]")
    a("ds_write_b128 v7, v[52:55] offset:16")
    a("s_waitcnt lgkmcnt(0)")
    a(f"s_branch {L_A}")
    a.label(L_nomod)
    a("s_waitcnt vmcnt(0)")
    kernel_nonce(a)
    a(f"s_branch {L_A}")

    a.label(L_ln)
    srd(a, 56, P_X, 0, S*D*2)
    a(f"s_sub_u32 s84, s{S_WAVE}, 4")
    a("s_lshl_b32 s85, s2, 3")
    a("s_lshl_b32 s86, s84, 1")
    a("s_add_u32 s85, s85, s86")
    a("v_lshrrev_b32 v2, 5, v0")
    a("v_and_b32 v3, 31, v0")
    a("v_add_u32 v4, s85, v2")
    a("s_movk_i32 s87, 1280")
    a("v_mul_lo_u32 v5, v4, s87")
    a("v_lshl_add_u32 v5, v3, 3, v5")
    for m in range(5): a(f"buffer_load_dwordx2 v[{8+2*m}:{9+2*m}], v5, s[56:59], 0 offen offset:{256*m}")
    a("v_add_u32 v44, s86, v2")
    a("v_lshlrev_b32 v44, 4, v44")
    a("v_lshrrev_b32 v45, 2, v3")
    a("v_lshl_add_u32 v44, v45, 8, v44")
    a("v_and_b32 v46, 1, v3")
    a("v_bfe_u32 v47, v3, 1, 1")
    a("v_lshl_add_u32 v45, v47, 7, v44")
    a("v_lshl_add_u32 v45, v46, 3, v45")
    a(f"v_add_u32 v45, {P0_STG}, v45")
    a("v_lshl_add_u32 v44, v46, 7, v44")
    a("v_lshl_add_u32 v44, v47, 3, v44")
    a(f"v_add_u32 v44, {P0_STX}, v44")
    a("s_barrier")
    a("s_waitcnt vmcnt(0)")
    kernel_nonce(a)
    for m in range(5): a(f"ds_write_b64 v44, v[{8+2*m}:{9+2*m}] offset:{m*2048}")
    for m in range(5):
        for j in range(2):
            a(f"v_lshlrev_b32 v{20+4*m+2*j}, 16, v{8+2*m+j}")
            a(f"v_and_b32 v{21+4*m+2*j}, 0xffff0000, v{8+2*m+j}")
    def tree_sum(dst, src0, n, tmp):
        a(f"v_add_f32 v{tmp}, v{src0}, v{src0+1}")
        a(f"v_add_f32 v{tmp+1}, v{src0+2}, v{src0+3}")
        for r in range(4, n, 2):
            a(f"v_add_f32 v{tmp}, v{tmp}, v{src0+r}")
            a(f"v_add_f32 v{tmp+1}, v{tmp+1}, v{src0+r+1}")
        a(f"v_add_f32 v{dst}, v{tmp}, v{tmp+1}")
    def reduce32(x, t):
        for sh in (8, 4, 2, 1):
            a("s_nop 1")
            a(f"v_add_f32_dpp v{x}, v{x}, v{x} row_ror:{sh} row_mask:0xf bank_mask:0xf")
        reduce_swap(a, "v_permlane16_swap_b32", x, t)
    tree_sum(40, 20, 20, 42)
    reduce32(40, 41)
    a(f"v_mul_f32 v40, {fl(1.0/640)}, v40")
    for r in range(20): a(f"v_sub_f32 v{20+r}, v{20+r}, v40")
    a("v_mul_f32 v42, v20, v20")
    a("v_mul_f32 v43, v21, v21")
    for r in range(2, 20, 2):
        a(f"v_fmac_f32 v42, v{20+r}, v{20+r}")
        a(f"v_fmac_f32 v43, v{21+r}, v{21+r}")
    a("v_add_f32 v41, v42, v43")
    reduce32(41, 42)
    a(f"v_mov_b32 v42, {fl(1e-5)}")
    a(f"v_fmac_f32 v42, {fl(1.0/640)}, v41")
    a("v_rsq_f32 v42, v42")
    a("s_nop 0")
    for r in range(20): a(f"v_mul_f32 v{20+r}, v{20+r}, v42")
    a("s_waitcnt lgkmcnt(0)")
    stamp(a, 1)
    L_B = a.uid("P0_B")
    a(f"s_cmp_ge_u32 s{S_CG}, 15")
    a(f"s_cbranch_scc1 {L_B}")
    p1_a_setup(a)
    for c in range(3): p1_a_issue(a, c)
    a(f"s_and_b32 s84, s{S_RB}, 3")
    a("s_mul_i32 s84, s84, 112")
    a(f"s_mul_i32 s85, s{S_J}, 28")
    a("s_add_u32 s84, s84, s85")
    a("s_add_u32 s84, s84, 192")
    a("s_mul_i32 s84, s84, 3840")
    a(f"s_lshl_b32 s85, s{S_CG}, 8")
    a("s_add_u32 s84, s84, s85")
    a("v_lshrrev_b32 v100, 1, v0")
    a("v_min_u32 v100, 27, v100")
    a("v_mul_u32_u24 v100, 3840, v100")
    a("v_and_b32 v101, 1, v0")
    a("v_lshl_add_u32 v100, v101, 7, v100")
    a(f"buffer_load_dword v102, v100, s[{SRD_A}:{SRD_A+3}], s84 offen")
    a(f"s_branch {L_B}")

    a.label(L_A)
    stamp(a, 1)
    a("s_barrier")
    L_w0, L_w12, L_w3 = a.uid("P0_w0"), a.uid("P0_w1"), a.uid("P0_w23")
    a(f"s_cmp_eq_u32 s{S_WAVE}, 0")
    a(f"s_cbranch_scc1 {L_w0}")
    a(f"s_cmp_eq_u32 s{S_WAVE}, 3")
    a(f"s_cbranch_scc1 {L_B}")
    a(f"s_branch {L_w12}")
    a.label(L_w0)
    a("s_cmp_ge_u32 s2, 240")
    a(f"s_cbranch_scc1 {L_B}")
    srd(a, 56, P_WS, WS_MODG, SZ_MODG)
    a("v_and_b32 v3, 15, v0")
    a("v_lshrrev_b32 v2, 4, v0")
    a("v_lshlrev_b32 v7, 11, v2")
    a("v_lshl_add_u32 v7, v3, 2, v7")
    a(f"v_add_u32 v7, {P0_RED}, v7")
    for half in range(2):
        for r in range(16): a(f"ds_read_b32 v{64+16*half+r}, v7 offset:{(16*half+r)*64}")
        if half == 0: a("s_waitcnt lgkmcnt(0)")
    a("s_waitcnt lgkmcnt(0)")
    n = 32
    while n > 1:
        n //= 2
        for r in range(n): a(f"v_add_f32 v{64+r}, v{64+r}, v{64+n+r}")
    reduce_swap(a, "v_permlane16_swap_b32", 64, 65)
    reduce_swap(a, "v_permlane32_swap_b32", 64, 65)
    a("v_cvt_pk_bf16_f32 v64, v64, v64")
    a("v_and_b32 v64, 0xffff, v64")
    a("s_nop 1")
    for q in range(4): a(f"v_mov_b32_dpp v{66+q}, v64 quad_perm:[{q},{q},{q},{q}] row_mask:0xf bank_mask:0xf")
    a("v_lshl_or_b32 v72, v67, 16, v66")
    a("v_lshl_or_b32 v73, v69, 16, v68")
    a(f"v_mov_b32 v74, s{S_NONCE}")
    a("v_mov_b32 v75, 0")
    a("v_and_b32 v7, 3, v0")
    a("v_lshlrev_b32 v76, 4, v7")
    a("ds_bpermute_b32 v72, v76, v72")
    a("ds_bpermute_b32 v73, v76, v73")
    a("v_lshlrev_b32 v7, 4, v7")
    a("v_lshrrev_b32 v76, 2, v0")
    a(f"v_mul_u32_u24 v76, {MODG_REP}, v76")
    a("v_add_u32 v7, v7, v76")
    a("s_lshl_b32 s87, s86, 6")
    a("s_waitcnt lgkmcnt(0)")
    exec_lo32(a)
    a(f"buffer_store_dwordx4 v[72:75], v7, s[56:59], s87 offen{SC}")
    exec_all(a)
    a(f"s_branch {L_B}")
    a.label(L_w12)
    srd(a, 56, P_WS, WS_MODG, SZ_MODG)
    a("s_and_b32 s84, s2, 7")
    a(f"s_mul_i32 s84, s84, {MODG_REP}")
    a(f"s_sub_u32 s85, s{S_WAVE}, 1")
    a("s_mul_i32 s86, s85, 160")
    a("s_lshl_b32 s87, s86, 4")
    a("s_add_u32 s84, s84, s87")
    a("v_lshlrev_b32 v7, 4, v0")
    a("v_add_u32 v8, 128, v0")
    a("v_min_u32 v8, 159, v8")
    a("v_lshlrev_b32 v8, 4, v8")
    loads = [f"buffer_load_dwordx4 v[16:19], v7, s[56:59], s84 offen{SC}",
             f"buffer_load_dwordx4 v[20:23], v7, s[56:59], s84 offen offset:1024{SC}",
             f"buffer_load_dwordx4 v[24:27], v8, s[56:59], s84 offen{SC}"]
    poll_granules(a, loads, [18, 22, 26], "P0_mod", sleep=4)
    stamp(a, 2)
    a("s_cmp_eq_u32 s85, 0")
    a(f"s_mov_b32 s86, {P0_TAB}")
    a(f"s_cselect_b32 s86, {P0_TAB+2560}, s86")
    a("v_add_u32 v7, s86, v7")
    a("v_add_u32 v8, s86, v8")
    L_plain = a.uid("P0_plain")
    for n in range(3): unpack4(a, 40+4*n, 16+4*n)
    a("s_cmp_eq_u32 s85, 0")
    a(f"s_cbranch_scc1 {L_plain}")
    for n in range(3): one_plus_round(a, 40+4*n)
    a.label(L_plain)
    a("ds_write_b128 v7, v[40:43]")
    a("ds_write_b128 v7, v[44:47] offset:1024")
    a("ds_write_b128 v8, v[48:51]")
    a("s_waitcnt lgkmcnt(0)")
    a.label(L_B)
    a("s_barrier")
    stamp(a, 3)
    L_C, L_x = a.uid("P0_C"), a.uid("P0_x")
    a(f"s_cmp_lt_u32 s{S_WAVE}, 2")
    a(f"s_cbranch_scc1 {L_C}")
    a(f"s_cmp_lt_u32 s{S_WAVE}, 4")
    a(f"s_cbranch_scc1 {L_x}")
    a("v_lshlrev_b32 v6, 4, v3")
    a(f"v_add_u32 v6, {P0_TAB}, v6")
    for m in range(5):
        a(f"ds_read_b128 v[{60+8*m}:{63+8*m}], v6 offset:{512*m}")
        a(f"ds_read_b128 v[{64+8*m}:{67+8*m}], v6 offset:{2560+512*m}")
    for m in range(5):
        a(f"s_waitcnt lgkmcnt({8-2*m})")
        for j in range(4): a(f"v_fma_f32 v{20+4*m+j}, v{20+4*m+j}, v{60+8*m+j}, v{64+8*m+j}")
        a(f"v_cvt_pk_bf16_f32 v{8+2*m}, v{20+4*m}, v{21+4*m}")
        a(f"v_cvt_pk_bf16_f32 v{9+2*m}, v{22+4*m}, v{23+4*m}")
    for m in range(5): a(f"ds_write_b64 v45, v[{8+2*m}:{9+2*m}] offset:{m*2048}")
    a("s_waitcnt lgkmcnt(0)")
    a(f"s_branch {L_C}")
    a.label(L_x)
    srd(a, 56, P_WS, WS_XR, SZ_XR)
    staged_addr(a, P0_STX)
    a(f"s_sub_u32 s84, s{S_WAVE}, 2")
    a("s_mul_i32 s85, s84, 5120")
    a("v_add_u32 v80, s85, v80")
    a("s_mul_i32 s85, s84, 20480")
    a("s_add_u32 s82, s82, s85")
    staged_store(a, range(5), 56)
    a.label(L_C)
    a("s_barrier")
    L_D = a.uid("P0_D")
    a(f"s_cmp_ge_u32 s{S_WAVE}, 4")
    a(f"s_cbranch_scc1 {L_D}")
    srd(a, 56, P_WS, WS_HF, SZ_HF)
    staged_addr(a, P0_STG)
    a(f"s_lshl_b32 s85, s{S_WAVE}, 10")
    a("v_add_u32 v80, s85, v80")
    a(f"s_lshl_b32 s85, s{S_WAVE}, 12")
    a("s_add_u32 s82, s82, s85")
    L2 = a.uid("P0_two")
    staged_store(a, [0, 4], 56)
    a(f"s_cmp_ge_u32 s{S_WAVE}, 2")
    a(f"s_cbranch_scc1 {L2}")
    staged_store(a, [8], 56)
    a.label(L2)
    a("s_waitcnt vmcnt(0)")
    a.label(L_D)
    a("s_barrier")
    signal(a, 0, 2)
    stamp(a, 4)

    L_end = a.uid("P1_end")
    a(f"s_cmp_ge_u32 s{S_CG}, 15")
    a(f"s_cbranch_scc1 {L_end}")
    lane_consts(a)
    L_comp, L_fin = a.uid("P1_comp"), a.uid("P1_fin")
    a(f"s_cmp_lt_u32 s{S_WAVE}, 4")
    a(f"s_cbranch_scc1 {L_comp}")
    p1_a_setup(a)
    srd(a, SRD_B, P_WS, WS_HF, SZ_HF)
    a(f"s_lshl_b32 s72, s{S_J}, 10")
    a("v_add_u32 v7, s72, v1")
    a(f"s_lshl_b32 s74, s{S_RB}, 2")
    a("s_mul_i32 s74, s74, 40960")
    pre = {"n": 0}
    def a_issue(c):
        if c < 3: return 4 + (c == 2)
        return p1_a_issue(a, c)
    def b_issue(c):
        for tb in range(4): dma(a, 72, P1_RB + (c % 3)*16384 + tb*4096, 7, SRD_B, 74, tb*40960 + c*4096, True)
        return 4
    plain_loader(a, NC=10, a_issue=a_issue, b_issue=b_issue, n_pre_a=3, after_pre=lambda vq: None,
                 deps=lambda: a("s_barrier"), sb=8)
    a(f"s_branch {L_fin}")
    a.label(L_comp)
    a(f"s_lshl_b32 s71, s{S_WAVE}, 12")
    a(f"s_add_u32 s71, s71, {P1_RB}")
    a("v_add_u32 v4, s71, v1")
    tr_lane_parts(a, 8, 9, 10)
    a("v_lshl_add_u32 v11, v3, 3, v8")
    a("v_lshlrev_b32 v11, 8, v11")
    a("v_lshl_add_u32 v11, v9, 5, v11")
    a("v_lshl_add_u32 v11, v10, 3, v11")
    for T in range(4):
        a(f"v_xor_b32 v12, {T}, v8")
        a(f"v_lshl_add_u32 v{40+T}, v12, 6, v11")
    a(f"s_lshl_b32 s72, s{S_RB}, 2")
    a(f"s_add_u32 s72, s72, s{S_WAVE}")
    ACC = 64
    def pv_reads(s, t, reg):
        o = ((s//4) % 4)*16384 + (s % 4)*4096
        return two64(reg, 40+t, o, 40+t, o + 1024, True)
    args = dict(KS=40, CK=4, NU=4, P=4, acc=lambda t: ACC+16*t, sh_regs=[32, 36], pv_regs=[16, 20, 24, 28],
                sh_reads=lambda s, reg: b128(reg, 4, ((s//4) % 3)*16384 + (s % 4)*1024), pv_reads=pv_reads, sb=8)
    def deps():
        a(f"s_lshl_b32 s71, s{S_RB}, 4")
        a("v_and_b32 v240, 15, v0")
        a("v_add_u32 v240, s71, v240")
        wait_flags(a, [240], 0)
        a("s_barrier")
    L_v = a.uid("P1_v")
    a(f"s_cmp_ge_u32 s{S_CG}, 10")
    a(f"s_cbranch_scc1 {L_v}")
    a(f"s_mov_b32 s73, {KVT}")
    a(f"s_mov_b32 s74, {WS_KV}")
    a(f"s_cmp_lt_u32 s{S_CG}, 5")
    a(f"s_cselect_b32 s73, {QT}, s73")
    a(f"s_cselect_b32 s74, {WS_Q}, s74")
    a(f"s_cselect_b32 s76, {fl(QSCALE)}, 1.0")
    a("s_cselect_b32 s75, 0, 5")
    a(f"s_sub_u32 s75, s{S_CG}, s75")
    a(f"s_add_u32 s{SRD_E0}, s{P_WS}, s74")
    a(f"s_addc_u32 s{SRD_E0+1}, s{P_WS+1}, 0")
    a(f"s_mov_b32 s{SRD_E0+2}, {hex(SZ_KV)}")
    a(f"s_mov_b32 s{SRD_E0+3}, 0x20000")
    a("s_mul_i32 s78, s72, s73")
    a("s_lshl_b32 s79, s73, 6")
    a("s_lshl_b32 s80, s75, 5")
    a("v_add_u32 v5, s80, v3")
    a("v_lshlrev_b32 v6, 3, v2")
    for T in range(4):
        for g in range(4):
            o = 128 + 4*T + g
            a(f"v_add_u32 v8, {8*T+2*g}, v5")
            a("v_mul_u32_u24 v9, 0xcccd, v8")
            a("v_lshrrev_b32 v9, 18, v9")
            a("v_mul_u32_u24 v10, 5, v9")
            a("v_sub_u32 v10, v8, v10")
            a(f"v_mul_lo_u32 v{o}, v9, s79")
            a("v_lshl_add_u32 v10, v10, 8, v6")
            a(f"v_add_u32 v{o}, v{o}, v10")
    deps()
    compute_loop(a, swap=False, **args)
    a.nop(12)
    L_ns = a.uid("P1_noscale")
    a(f"s_cmp_ge_u32 s{S_CG}, 5")
    a(f"s_cbranch_scc1 {L_ns}")
    for r in range(64): a(f"v_mul_f32 v{ACC+r}, s76, v{ACC+r}")
    a.label(L_ns)
    for T in range(4):
        for g in range(4):
            r = ACC + 16*T + 4*g
            p = 16 + 2*((4*T+g) % 8)
            a(f"v_cvt_pk_bf16_f32 v{p}, v{r}, v{r+1}")
            a(f"v_cvt_pk_bf16_f32 v{p+1}, v{r+2}, v{r+3}")
            a(f"buffer_store_dwordx2 v[{p}:{p+1}], v{128+4*T+g}, s[{SRD_E0}:{SRD_E0+3}], s78 offen{SC}")
    a(f"s_branch {L_fin}")
    a.label(L_v)
    srd(a, SRD_E0, P_WS, WS_KV, SZ_KV)
    a(f"s_mul_i32 s78, s72, {KVT}")
    a(f"s_sub_u32 s75, s{S_CG}, 10")
    a("s_lshl_b32 s80, s75, 7")
    a("v_add_u32 v5, s80, v2")
    a("v_mul_u32_u24 v6, 320, v3")
    a(f"s_mov_b32 s79, {64*KVT}")
    for T in range(4):
        a(f"v_add_u32 v8, {32*T}, v5")
        a("v_mul_u32_u24 v9, 0xcccd, v8")
        a("v_lshrrev_b32 v9, 20, v9")
        a("v_mul_u32_u24 v10, 20, v9")
        a("v_sub_u32 v10, v8, v10")
        a(f"v_mul_lo_u32 v{128+T}, v9, s79")
        a(f"v_lshl_add_u32 v{128+T}, v10, 4, v{128+T}")
        a(f"v_add_u32 v{128+T}, v{128+T}, v6")
    deps()
    compute_loop(a, swap=True, **args)
    a.nop(12)
    for T in range(4):
        for tp in range(2):
            r = ACC + 16*T + 8*tp
            p = 16 + 4*((2*T+tp) % 4)
            for j in range(4): a(f"v_cvt_pk_bf16_f32 v{p+j}, v{r+2*j}, v{r+2*j+1}")
            a(f"buffer_store_dwordx4 v[{p}:{p+3}], v{128+T}, s[{SRD_E0}:{SRD_E0+3}], s78 offen offset:{1280+640*tp}{SC}")
    a.label(L_fin)
    stamp(a, 14)
    a("s_waitcnt vmcnt(0)")
    a("s_barrier")
    a(f"s_lshl_b32 s71, s{S_CG}, 4")
    a(f"s_add_u32 s71, s71, s{S_RB}")
    signal(a, 1, 71)
    a.label(L_end)
    stamp(a, 15)
```

```python
from gemm import *

def map_thin(a):
    a("s_and_b32 s71, s2, 7")
    a("s_lshr_b32 s72, s2, 3")
    a("s_and_b32 s73, s71, 3")
    a("s_lshl_b32 s73, s73, 3")
    a("s_and_b32 s74, s72, 7")
    a(f"s_add_u32 s{S_RB}, s73, s74")
    a("s_lshr_b32 s73, s71, 2")
    a("s_lshl_b32 s73, s73, 2")
    a("s_lshr_b32 s74, s72, 3")
    a(f"s_add_u32 s{S_CG}, s73, s74")

TA, TB = 20480, 16384
T_RB = 4*TA
T_RES = T_RB + 3*TB
T_TAB = T_RES + 10240
T_RED = T_TAB + 1024
T_ST = T_RED + 3072
ACC0 = 64

def thin_compute_setup(a):
    tr_lane_parts(a, 11, 12, 13)
    a("v_lshl_add_u32 v11, v3, 2, v11")
    a("v_mul_u32_u24 v11, 160, v11")
    a(f"s_cmp_eq_u32 s{S_WAVE}, 2")
    a("s_cselect_b32 s71, 0, 32")
    a("v_mul_u32_u24 v12, s71, v12")
    a("v_add_u32 v11, v11, v12")
    a("v_lshl_add_u32 v11, v13, 3, v11")
    a(f"s_lshl_b32 s71, s{S_WAVE}, 6")
    a("v_add_u32 v11, s71, v11")
    lds_addr_set(a, 4, 2, 11)

def thin_loop(a, KS, grouped_b, sb):
    if grouped_b:
        a("v_lshlrev_b32 v12, 3, v2")
        a("v_lshl_add_u32 v12, v3, 8, v12")
        a(f"v_add_u32 v12, {T_RB}, v12")
    else:
        a(f"v_add_u32 v12, {T_RB}, v1")
    lds_addr_set(a, 8, 2, 12)
    def sh(s, reg):
        o = ((s//8) % 4)*TA + (s % 8)*2560
        v0, o0 = seg(4, o); v1, o1 = seg(4, o + 1280)
        return two64(reg, v0, o0, v1, o1, True)
    def pvv(s, t, reg):
        o = ((s//8) % 3)*TB + t*8192 + (s % 8)*1024
        if grouped_b: return two64(reg, 8, o, 8, o + 512, False)
        return b128(reg, 8, o)
    compute_loop(a, KS=KS, CK=8, NU=2, P=4, acc=lambda t: ACC0+16*t, sh_regs=[32, 36, 40], pv_regs=[16, 20, 24, 28],
                 sh_reads=sh, pv_reads=pvv, swap=True, sb=sb)

def thin_loader(a, *, NC, KS, raw_pitch, n_pre_a, extra_barriers, sb):
    a(f"s_lshl_b32 s72, s{S_J}, 10")
    a("v_add_u32 v7, s72, v1")
    a(f"s_mul_i32 s77, s{S_J}, 5120")
    if raw_pitch:
        for p in range(5):
            a(f"v_add_u32 v8, {64*p}, v0")
            vdiv_small(a, 9, 8, 10)
            a("v_mul_u32_u24 v10, 10, v9")
            a("v_sub_u32 v10, v8, v10")
            a(f"v_mul_u32_u24 v9, {raw_pitch}, v9")
            a(f"v_lshl_add_u32 v{16+p}, v10, 4, v9")
        a(f"s_mul_i32 s73, s{S_J}, {32*raw_pitch}")
        a(f"s_mul_i32 s76, s{S_CG}, 160")
        a("s_add_u32 s73, s73, s76")
    else:
        a(f"s_mul_i32 s73, s{S_CG}, {KS*16*160}")
        a("s_add_u32 s73, s73, s77")
    a(f"s_lshl_b32 s74, s{S_RB}, 1")
    a(f"s_mul_i32 s74, s74, {KS*1024}")
    def a_issue(c):
        for p in range(5):
            if raw_pitch: dma(a, 77, (c % 4)*TA + p*1024, 16+p, SRD_A, 73, c*128*raw_pitch, False)
            else: dma(a, 77, (c % 4)*TA + p*1024, 1, SRD_A, 73, c*TA + p*1024, True)
        return 5
    def b_issue(c):
        for n in range(4):
            tb, hl = divmod(n, 2)
            dma(a, 72, T_RB + (c % 3)*TB + n*4096, 7, SRD_B, 74, tb*KS*1024 + c*8192 + hl*4096, True)
        return 4
    def residual(vq):
        a(f"s_lshl_b32 s78, s{S_RB}, 1")
        a("s_mul_i32 s78, s78, 40960")
        a(f"s_mul_i32 s79, s{S_CG}, 5120")
        a("s_add_u32 s78, s78, s79")
        L = a.uid("res")
        for n in range(3):
            if n == 2:
                a(f"s_cmp_ge_u32 s{S_J}, 2")
                a(f"s_cbranch_scc1 {L}")
            a(f"s_add_u32 s79, s{S_J}, {4*n}")
            a("s_cmp_ge_u32 s79, 5")
            a("s_cselect_b32 s80, 35840, 0")
            a("s_lshl_b32 s79, s79, 10")
            a(f"s_add_u32 m0, s79, {T_RES}")
            a("s_add_u32 s79, s79, s80")
            a("s_add_u32 s79, s79, s78")
            a(f"buffer_load_dwordx4 v1, s[{SRD_E1}:{SRD_E1+3}], s79 offen{SC} lds")
        a.label(L)
    plain_loader(a, NC=NC, a_issue=a_issue, b_issue=b_issue, n_pre_a=n_pre_a, after_pre=residual,
                 deps=lambda: a("s_barrier"), extra_barriers=extra_barriers, sb=sb)

def table_wave(a, vecs, plus_one):
    n = len(vecs)
    a(f"v_min_u32 v4, {20*n-1}, v0")
    vdiv_small(a, 5, 4, 20)
    a("v_mul_u32_u24 v6, 20, v5")
    a("v_sub_u32 v6, v4, v6")
    a(f"v_add_u32 v7, {vecs[0]}, v5")
    a("v_mul_u32_u24 v7, 160, v7")
    a("v_add_u32 v7, v7, v6")
    a(f"s_mul_i32 s71, s{S_CG}, 20")
    a("v_add_u32 v7, s71, v7")
    a("v_lshlrev_b32 v7, 4, v7")
    a(f"buffer_load_dwordx4 v[8:11], v7, s[{SRD_M}:{SRD_M+3}], 0 offen{SC}")
    a("v_mul_u32_u24 v7, 320, v5")
    a("v_lshl_add_u32 v7, v6, 4, v7")
    a(f"v_add_u32 v7, {T_TAB}, v7")
    a("s_barrier")
    a("s_barrier")
    a("s_waitcnt vmcnt(0)")
    unpack4(a, 12, 8)
    if plus_one is not None:
        for j in range(4): a(f"v_mov_b32 v{16+j}, v{12+j}")
        a(f"v_cmp_eq_u32 vcc, {plus_one}, v5")
        one_plus_round(a, 16)
        for j in range(4): a(f"v_cndmask_b32 v{12+j}, v{12+j}, v{16+j}, vcc")
    a("ds_write_b128 v7, v[12:15]")
    a("s_waitcnt lgkmcnt(0)")

def read_table(a, dst, k):
    for g in range(4): a(f"ds_read_b128 v[{dst+4*g}:{dst+4*g+3}], v13 offset:{320*k + 32*g}")
def epi_setup(a):
    a(f"s_lshl_b32 s71, s{S_WAVE}, 7")
    a(f"s_add_u32 s71, s71, {T_TAB}")
    a("v_lshl_add_u32 v13, v3, 4, s71")
    a(f"s_lshl_b32 s71, s{S_WAVE}, 11")
    a(f"s_add_u32 s71, s71, {T_RES}")
    a("v_add_u32 v14, s71, v1")
def read_residual(a, XR):
    for u in range(2):
        for tp in range(2):
            a(f"ds_read_b128 v[{XR+8*u+4*tp}:{XR+8*u+4*tp+3}], v14 offset:{u*5120 + tp*1024}")

def gen_p3(a):
    map_thin(a)
    srd(a, SRD_A, P_WO, 0, 640*640*2)
    srd(a, SRD_B, P_WS, WS_O, SZ_O)
    srd(a, SRD_M, P_WS, WS_MODG, SZ_MODG)
    srd(a, SRD_E1, P_WS, WS_XR, SZ_XR)
    lane_consts(a)
    L_comp, L_w3, L_fin = a.uid("P3_comp"), a.uid("P3_w3"), a.uid("P3_fin")
    a(f"s_cmp_lt_u32 s{S_WAVE}, 4")
    a(f"s_cbranch_scc1 {L_comp}")
    a(f"s_sub_u32 s{S_J}, s{S_WAVE}, 4")
    thin_loader(a, NC=5, KS=40, raw_pitch=1280, n_pre_a=3, extra_barriers=2, sb=28)
    a(f"s_branch {L_fin}")
    a.label(L_comp)
    a(f"s_cmp_eq_u32 s{S_WAVE}, 3")
    a(f"s_cbranch_scc1 {L_w3}")
    srd(a, SRD_E0, P_WS, WS_X1, SZ_X1)
    srd(a, SRD_E2, P_WS, WS_H2, SZ_H2)
    thin_compute_setup(a)
    a(f"s_lshr_b32 s71, s{S_RB}, 2")
    a("s_lshl_b32 s71, s71, 5")
    a("v_add_u32 v240, s71, v2")
    wait_flags(a, [240], 2)
    a("s_barrier")
    thin_loop(a, 40, True, 28)
    GA, XR, G2, S2 = 112, 96, 128, 144
    epi_setup(a)
    read_table(a, GA, 0); read_residual(a, XR)
    a(f"s_mul_i32 s73, s{S_CG}, 5")
    a(f"s_lshl_b32 s74, s{S_WAVE}, 1")
    a("s_add_u32 s73, s73, s74")
    a("s_lshl_b32 s73, s73, 10")
    a(f"s_lshl_b32 s74, s{S_RB}, 1")
    a("s_mul_i32 s74, s74, 40960")
    a("s_add_u32 s73, s73, s74")
    a("s_waitcnt lgkmcnt(0)")
    a.nop(2)
    def per_half(u, body):
        L = a.uid("P3_e")
        for tp in range(2):
            if tp == 1:
                a(f"s_cmp_eq_u32 s{S_WAVE}, 2")
                a(f"s_cbranch_scc1 {L}")
            body(tp)
        a.label(L)
    for u in range(2):
        acc = ACC0 + 16*u
        sm, sq = 44 + 2*u, 45 + 2*u
        a(f"v_mov_b32 v{sm}, 0")
        a(f"v_mov_b32 v{sq}, 0")
        a(f"s_add_u32 s75, s73, {u*40960}")
        def body(tp):
            for gg in range(2):
                g = 2*tp + gg
                for jj in range(2):
                    x = XR + 8*u + 2*g + jj
                    a(f"v_lshlrev_b32 v48, 16, v{x}")
                    a(f"v_and_b32 v49, 0xffff0000, v{x}")
                    r = acc + 4*g + 2*jj
                    a(f"v_fma_f32 v{r}, v{GA+4*g+2*jj}, v{r}, v48")
                    a(f"v_fma_f32 v{r+1}, v{GA+4*g+2*jj+1}, v{r+1}, v49")
            p = 16 + 4*(2*u + tp)
            for j in range(4): a(f"v_cvt_pk_bf16_f32 v{p+j}, v{acc+8*tp+2*j}, v{acc+8*tp+2*j+1}")
            a(f"buffer_store_dwordx4 v[{p}:{p+3}], v1, s[{SRD_E0}:{SRD_E0+3}], s75 offen offset:{1024*tp}{SC}")
            for j in range(4):
                a(f"v_lshlrev_b32 v{acc+8*tp+2*j}, 16, v{p+j}")
                a(f"v_and_b32 v{acc+8*tp+2*j+1}, 0xffff0000, v{p+j}")
            for i in range(8):
                a(f"v_add_f32 v{sm}, v{sm}, v{acc+8*tp+i}")
                a(f"v_fmac_f32 v{sq}, v{acc+8*tp+i}, v{acc+8*tp+i}")
        per_half(u, body)
    a(f"s_lshl_b32 s75, s{S_WAVE}, 9")
    a(f"s_add_u32 s75, s75, {T_RED}")
    a("v_lshl_add_u32 v15, v0, 3, s75")
    a("ds_write_b64 v15, v[44:45]")
    a("ds_write_b64 v15, v[46:47] offset:1536")
    read_table(a, S2, 1); read_table(a, G2, 2)
    a("s_waitcnt lgkmcnt(0)")
    stamp(a, 32)
    a("s_barrier")
    a("s_barrier")
    stamp(a, 33)
    a("v_lshlrev_b32 v15, 3, v2")
    a(f"v_add_u32 v15, {T_ST}, v15")
    a("ds_read_b64 v[44:45], v15")
    a("ds_read_b64 v[46:47], v15 offset:256")
    a("s_waitcnt lgkmcnt(0)")
    for u in range(2):
        acc = ACC0 + 16*u
        a(f"s_add_u32 s75, s73, {u*40960}")
        def body(tp):
            for i in range(8):
                r = acc + 8*tp + i
                a(f"v_fma_f32 v{r}, v{r}, v{44+2*u}, v{45+2*u}")
            for i in range(8):
                r = acc + 8*tp + i
                a(f"v_fma_f32 v{r}, v{r}, v{G2+8*tp+i}, v{S2+8*tp+i}")
            p = 16 + 4*(2*u + tp)
            for j in range(4): a(f"v_cvt_pk_bf16_f32 v{p+j}, v{acc+8*tp+2*j}, v{acc+8*tp+2*j+1}")
            a(f"buffer_store_dwordx4 v[{p}:{p+3}], v1, s[{SRD_E2}:{SRD_E2+3}], s75 offen offset:{1024*tp}{SC}")
        per_half(u, body)
    a(f"s_branch {L_fin}")
    a.label(L_w3)
    table_wave(a, [2, 3, 4], 2)
    for _ in range(4): a("s_barrier")
    a("s_barrier")
    srd(a, SRD_E0, P_WS, WS_STAT, SZ_STAT)
    a("v_mul_u32_u24 v13, 1536, v3")
    a("v_lshl_add_u32 v13, v2, 3, v13")
    a(f"v_add_u32 v13, {T_RED}, v13")
    for T in range(3):
        for h in range(2):
            r = 48 + 2*(2*T+h)
            a(f"ds_read_b64 v[{r}:{r+1}], v13 offset:{T*512 + h*256}")
    a("s_waitcnt lgkmcnt(0)")
    for i in range(1, 6):
        a(f"v_add_f32 v48, v48, v{48+2*i}")
        a(f"v_add_f32 v49, v49, v{49+2*i}")
    a(f"v_mov_b32 v50, s{S_NONCE}")
    a("v_mov_b32 v51, 0")
    a(f"s_lshl_b32 s75, s{S_RB}, 13")
    a(f"s_lshl_b32 s76, s{S_CG}, 10")
    a("s_add_u32 s76, s76, s75")
    a(f"buffer_store_dwordx4 v[48:51], v1, s[{SRD_E0}:{SRD_E0+3}], s76 offen{SC}")
    loads = []
    for c in range(8):
        if c % 4 == 0: loads.append(f"s_add_u32 s76, s75, {c*1024}")
        loads.append(f"buffer_load_dwordx4 v[{64+4*c}:{67+4*c}], v1, s[{SRD_E0}:{SRD_E0+3}], s76 offen offset:{1024*(c % 4)}{SC}")
    poll_granules(a, loads, [66+4*c for c in range(8)], "P3_stat")
    for c in range(1, 8):
        a(f"v_add_f32 v64, v64, v{64+4*c}")
        a(f"v_add_f32 v65, v65, v{65+4*c}")
    a(f"v_mul_f32 v64, {fl(1.0/640)}, v64")
    a(f"v_mul_f32 v65, {fl(1.0/640)}, v65")
    a("v_fma_f32 v65, -v64, v64, v65")
    a("v_max_f32 v65, 0, v65")
    a(f"v_add_f32 v65, {fl(1e-5)}, v65")
    a("v_rsq_f32 v66, v65")
    a("s_nop 0")
    a("v_mul_f32 v67, v64, v66")
    a("v_sub_f32 v67, 0, v67")
    a("v_lshlrev_b32 v13, 3, v0")
    a(f"v_add_u32 v13, {T_ST}, v13")
    a("ds_write_b64 v13, v[66:67]")
    a("s_waitcnt lgkmcnt(0)")
    a("s_barrier")
    a("s_and_b32 s71, s2, 7")
    a("s_lshr_b32 s71, s71, 1")
    a("s_lshl_b32 s71, s71, 2")
    a("s_lshr_b32 s72, s2, 6")
    a("s_add_u32 s71, s71, s72")
    a("s_mul_i32 s71, s71, 80")
    a(f"s_mul_i32 s72, s{S_CG}, 48")
    a("v_add_u32 v240, s71, v0")
    a("v_add_u32 v241, 64, v240")
    a("s_sub_u32 s72, s72, 16")
    a("v_add_u32 v242, s72, v0")
    a("v_cmp_gt_u32 vcc, 16, v0")
    a("v_and_b32 v240, 255, v240")
    a("s_nop 0")
    a("v_cndmask_b32 v241, v242, v241, vcc")
    a("v_and_b32 v241, 255, v241")
    wait_flags(a, [240, 241], 2, wave=3)
    a.label(L_fin)
    stamp(a, 34)
    a("s_waitcnt vmcnt(0)")
    a("s_barrier")
    a(f"s_lshl_b32 s71, s{S_RB}, 3")
    a(f"s_add_u32 s71, s71, s{S_CG}")
    signal(a, 3, 71)
    stamp(a, 35)

def gen_p5(a):
    map_thin(a)
    srd(a, SRD_A, P_WS, WS_WD, SZ_WD)
    srd(a, SRD_B, P_WS, WS_HH, SZ_HH)
    srd(a, SRD_M, P_WS, WS_MODG, SZ_MODG)
    srd(a, SRD_E1, P_WS, WS_X1, SZ_X1)
    lane_consts(a)
    L_comp, L_w3, L_fin = a.uid("P5_comp"), a.uid("P5_w3"), a.uid("P5_fin")
    a(f"s_cmp_lt_u32 s{S_WAVE}, 4")
    a(f"s_cbranch_scc1 {L_comp}")
    a(f"s_sub_u32 s{S_J}, s{S_WAVE}, 4")
    thin_loader(a, NC=12, KS=96, raw_pitch=0, n_pre_a=3, extra_barriers=0, sb=44)
    a(f"s_branch {L_fin}")
    a.label(L_comp)
    a(f"s_cmp_eq_u32 s{S_WAVE}, 3")
    a(f"s_cbranch_scc1 {L_w3}")
    srd(a, SRD_E0, P_OUT, 0, S*D*2)
    thin_compute_setup(a)
    a(f"s_lshr_b32 s71, s{S_RB}, 1")
    a("s_lshl_b32 s71, s71, 4")
    a("v_and_b32 v240, 15, v0")
    a("v_add_u32 v240, s71, v240")
    wait_flags(a, [240], 4)
    a("s_barrier")
    thin_loop(a, 96, False, 44)
    GB, XR = 112, 96
    epi_setup(a)
    read_table(a, GB, 0); read_residual(a, XR)
    a("v_mul_u32_u24 v14, 1280, v2")
    a("v_lshl_add_u32 v14, v3, 3, v14")
    a(f"s_mul_i32 s72, s{S_CG}, 160")
    a(f"s_lshl_b32 s73, s{S_WAVE}, 6")
    a("s_add_u32 s72, s72, s73")
    a(f"s_mul_i32 s73, s{S_RB}, {64*1280}")
    a("s_add_u32 s72, s72, s73")
    a("s_waitcnt lgkmcnt(0)")
    a.nop(2)
    for u in range(2):
        acc = ACC0 + 16*u
        L = a.uid("P5_e")
        a(f"s_add_u32 s74, s72, {u*32*1280}")
        for g in range(4):
            if g == 2:
                a(f"s_cmp_eq_u32 s{S_WAVE}, 2")
                a(f"s_cbranch_scc1 {L}")
            for jj in range(2):
                x = XR + 8*u + 2*g + jj
                a(f"v_lshlrev_b32 v48, 16, v{x}")
                a(f"v_and_b32 v49, 0xffff0000, v{x}")
                r = acc + 4*g + 2*jj
                a(f"v_fma_f32 v{r}, v{GB+4*g+2*jj}, v{r}, v48")
                a(f"v_fma_f32 v{r+1}, v{GB+4*g+2*jj+1}, v{r+1}, v49")
            p = 16 + 2*((4*u+g) % 8)
            a(f"v_cvt_pk_bf16_f32 v{p}, v{acc+4*g}, v{acc+4*g+1}")
            a(f"v_cvt_pk_bf16_f32 v{p+1}, v{acc+4*g+2}, v{acc+4*g+3}")
            a(f"buffer_store_dwordx2 v[{p}:{p+1}], v14, s[{SRD_E0}:{SRD_E0+3}], s74 offen offset:{16*g}")
        a.label(L)
    a(f"s_branch {L_fin}")
    a.label(L_w3)
    table_wave(a, [5], None)
    for _ in range(11): a("s_barrier")
    a.label(L_fin)
    stamp(a, 48)

SLOT4 = 24640
P4_RB = 4*SLOT4
def gen_p4(a):
    a("s_and_b32 s71, s2, 7")
    a("s_lshr_b32 s72, s2, 3")
    a("s_and_b32 s73, s71, 1")
    a("s_lshl_b32 s73, s73, 3")
    a("s_and_b32 s74, s72, 7")
    a(f"s_add_u32 s{S_RB}, s73, s74")
    a("s_lshr_b32 s73, s71, 1")
    a("s_lshl_b32 s73, s73, 2")
    a("s_lshr_b32 s74, s72, 3")
    a(f"s_add_u32 s{S_CG}, s73, s74")
    srd(a, SRD_A, P_WS, WS_WGU, SZ_WGU)
    srd(a, SRD_B, P_WS, WS_H2, SZ_H2)
    lane_consts(a)
    L_comp, L_fin = a.uid("P4_comp"), a.uid("P4_fin")
    a(f"s_cmp_lt_u32 s{S_WAVE}, 4")
    a(f"s_cbranch_scc1 {L_comp}")
    a(f"s_sub_u32 s{S_J}, s{S_WAVE}, 4")
    a(f"s_lshl_b32 s72, s{S_J}, 10")
    a("v_add_u32 v7, s72, v1")
    a(f"s_mul_i32 s77, s{S_J}, 3072")
    a(f"s_mul_i32 s73, s{S_CG}, 245760")
    a("s_add_u32 s73, s73, s77")
    a(f"s_lshl_b32 s74, s{S_RB}, 2")
    a("s_mul_i32 s74, s74, 40960")
    def a_issue(c):
        for m in range(2):
            for p in range(3): dma(a, 77, (c % 4)*SLOT4 + m*12320 + p*1024, 1, SRD_A, 73, c*24576 + m*12288 + p*1024, True)
        return 6
    def b_issue(c):
        for tb in range(4): dma(a, 72, P4_RB + (c % 3)*16384 + tb*4096, 7, SRD_B, 74, tb*40960 + c*4096, True)
        return 4
    plain_loader(a, NC=10, a_issue=a_issue, b_issue=b_issue, n_pre_a=3, after_pre=lambda vq: None,
                 deps=lambda: a("s_barrier"), sb=36)
    a(f"s_branch {L_fin}")
    a.label(L_comp)
    srd(a, SRD_E1, P_WS, WS_HH, SZ_HH)
    tr_lane_parts(a, 8, 9, 10)
    a("v_lshl_add_u32 v8, v3, 2, v8")
    a("v_mul_u32_u24 v8, 192, v8")
    a("v_mul_u32_u24 v9, 12320, v9")
    a("v_add_u32 v8, v8, v9")
    a("v_lshl_add_u32 v8, v10, 3, v8")
    lds_addr_set(a, 4, 2, 8)
    a(f"s_lshl_b32 s71, s{S_WAVE}, 12")
    a(f"s_add_u32 s71, s71, {P4_RB}")
    a("v_add_u32 v6, s71, v1")
    ACC = 64
    def pv_reads(s, t, reg):
        o = ((s//4) % 4)*SLOT4 + (s % 4)*3072 + t*32
        v0, o0 = seg(4, o); v1, o1 = seg(4, o + 1536)
        return two64(reg, v0, o0, v1, o1, True)
    a(f"s_lshl_b32 s71, s{S_RB}, 4")
    a("v_and_b32 v240, 15, v0")
    a("v_add_u32 v240, s71, v240")
    wait_flags(a, [240], 3)
    a("s_barrier")
    compute_loop(a, KS=40, CK=4, NU=6, P=6, acc=lambda t: ACC+16*t, sh_regs=[40, 44], pv_regs=[16, 20, 24, 28, 32, 36],
                 sh_reads=lambda s, reg: b128(reg, 6, ((s//4) % 3)*16384 + (s % 4)*1024), pv_reads=pv_reads, swap=False, sb=36)
    a(f"s_lshl_b32 s72, s{S_RB}, 2")
    a(f"s_add_u32 s72, s72, s{S_WAVE}")
    a("s_mul_i32 s72, s72, 98304")
    a(f"s_mul_i32 s73, s{S_CG}, 6144")
    a("s_add_u32 s72, s72, s73")
    a.nop(8)
    for T in range(6):
        g = ACC + 16*T; u = g + 8
        for i in range(8): a(f"v_mul_f32 v{g+i}, {fl(-LOG2E)}, v{g+i}")
        for i in range(8): a(f"v_exp_f32 v{g+i}, v{g+i}")
        for i in range(8): a(f"v_add_f32 v{g+i}, 1.0, v{g+i}")
        for i in range(8): a(f"v_rcp_f32 v{g+i}, v{g+i}")
        for i in range(8): a(f"v_mul_f32 v{g+i}, v{g+i}, v{u+i}")
        p = 16 + 4*(T % 4)
        for j in range(4): a(f"v_cvt_pk_bf16_f32 v{p+j}, v{g+2*j}, v{g+2*j+1}")
        a(f"s_add_u32 s73, s72, {T*1024}")
        a(f"buffer_store_dwordx4 v[{p}:{p+3}], v1, s[{SRD_E1}:{SRD_E1+3}], s73 offen{SC}")
    a.label(L_fin)
    stamp(a, 41)
    a("s_waitcnt vmcnt(0)")
    a("s_barrier")
    a(f"s_lshl_b32 s71, s{S_RB}, 4")
    a(f"s_add_u32 s71, s71, s{S_CG}")
    signal(a, 4, 71)
    stamp(a, 42)
```

```python
import sys
from common import *
import p01, p2, p345

NAME = "adaLN_cond__mha_block__glu_gated_glu__prompt"
REF = open(f"cdna_kernels/{NAME}.s.ref").read()
HEADER = REF.split("; Override launch geometry")[0]
KNAME = NAME + "_kernel"

def ts_setup(a):
    srd(a, 4, P_WS, WS_TS, SZ_TS)
    a("s_lshl_b32 s8, s2, 3")
    a(f"s_add_u32 s8, s8, s{S_WAVE}")
    a("s_lshl_b32 s8, s8, 8")
    a("v_mov_b32 v255, 0")
    a("s_nop 0")
    a("v_writelane_b32 v255, s10, 62")
    a("v_writelane_b32 v255, s14, 0")
    stamp(a, 58)
def ts_end(a):
    stamp(a, 60)
    a("s_waitcnt vmcnt(0)")
    stamp(a, 61)
    a("s_memrealtime s[10:11]")
    a("s_waitcnt lgkmcnt(0)")
    a("s_mov_b64 exec, -1")
    a("v_writelane_b32 v255, s10, 63")
    a("v_mbcnt_lo_u32_b32 v4, -1, 0")
    a("v_mbcnt_hi_u32_b32 v4, -1, v4")
    a("v_lshlrev_b32 v4, 2, v4")
    a("buffer_store_dword v255, v4, s[4:7], s8 offen")

def dbg_out(a):
    L = a.uid("dbg")
    a("s_cmp_lg_u32 s2, 37")
    a(f"s_cbranch_scc1 {L}")
    a(f"s_cmp_lg_u32 s{S_WAVE}, 0")
    a(f"s_cbranch_scc1 {L}")
    srd(a, 44, P_DBG, 0, 256)
    for k, idx in enumerate([1, 3, 4, 9, 10, 15, 16, 19, 27, 29, 35, 37, 42, 45, 60, 61]):
        a(f"v_readlane_b32 s46, v255, {idx}") if False else None
    a("v_readlane_b32 s48, v255, 0")
    a("v_mov_b32 v6, 0")
    for k, idx in enumerate([1, 3, 4, 9, 10, 15, 16, 19, 27, 29, 35, 37, 42, 45, 60, 61]):
        a(f"v_readlane_b32 s49, v255, {idx}")
        a("s_nop 3")
        a("s_sub_u32 s49, s49, s48")
        a(f"v_writelane_b32 v6, s49, {k}")
    a("v_mbcnt_lo_u32_b32 v4, -1, 0")
    a("v_mbcnt_hi_u32_b32 v4, -1, v4")
    a("v_lshlrev_b32 v4, 2, v4")
    a("buffer_store_dword v6, v4, s[44:47], 0 offen")
    a.label(L)

def build(instrument=False, dbg=False):
    CTX.persistent, CTX.instrument = True, instrument
    a = Asm()
    fin = "L_fin"
    if instrument:
        a("s_memrealtime s[10:11]")
        a("s_memtime s[14:15]")
    prologue(a, 256, fin)
    if instrument: ts_setup(a)
    p01.gen_p01(a)
    p2.gen_p2(a)
    p345.gen_p3(a)
    p345.gen_p4(a)
    p345.gen_p5(a)
    kernel_publish_nonce(a)
    if instrument: ts_end(a)
    if dbg: dbg_out(a)
    a.label(fin)
    a("s_endpgm")
    problems = check_hazards(a.lines, KNAME)
    s = HEADER + "; @launch grid=(256,1,1) block=(512,1,1) lds=163840\n" + '.amdgcn_target "amdgcn-amd-amdhsa--gfx950"\n.text\n'
    s += kernel_text(KNAME, a) + '.section .rodata,"a"\n' + descriptor(KNAME)
    return s, problems

if __name__ == "__main__":
    s, problems = build(instrument="-ts" in sys.argv, dbg="-dbg" in sys.argv)
    for p in problems: print("HAZARD", p)
    out = sys.argv[1] if len(sys.argv) > 1 and not sys.argv[1].startswith("-") else "pers.s"
    open(out, "w").write(s)
    print("wrote", out, len(s), "bytes;", len(problems), "hazards")
```

```python
import sys
from common import *
import p01, p2, p345

NAME = "adaLN_cond__mha_block__glu_gated_glu__prompt"
REF = open(f"cdna_kernels/{NAME}.s.ref").read()
HEADER = REF.split("; Override launch geometry")[0]
KNAME = NAME + "_kernel"

def ts_setup(a):
    srd(a, 4, P_WS, WS_TS, SZ_TS)
    a("s_lshl_b32 s8, s2, 3")
    a(f"s_add_u32 s8, s8, s{S_WAVE}")
    a("s_lshl_b32 s8, s8, 8")
    a("v_mov_b32 v255, 0")
    a("s_nop 0")
    a("v_writelane_b32 v255, s10, 62")
    a("v_writelane_b32 v255, s14, 0")
    stamp(a, 58)
def ts_end(a):
    stamp(a, 60)
    a("s_waitcnt vmcnt(0)")
    stamp(a, 61)
    a("s_memrealtime s[10:11]")
    a("s_waitcnt lgkmcnt(0)")
    a("s_mov_b64 exec, -1")
    a("v_writelane_b32 v255, s10, 63")
    a("v_mbcnt_lo_u32_b32 v4, -1, 0")
    a("v_mbcnt_hi_u32_b32 v4, -1, v4")
    a("v_lshlrev_b32 v4, 2, v4")
    a("buffer_store_dword v255, v4, s[4:7], s8 offen")

def dbg_out(a):
    L = a.uid("dbg")
    a("s_cmp_lg_u32 s2, 37")
    a(f"s_cbranch_scc1 {L}")
    a(f"s_cmp_lg_u32 s{S_WAVE}, 0")
    a(f"s_cbranch_scc1 {L}")
    srd(a, 44, P_DBG, 0, 256)
    for k, idx in enumerate([1, 3, 4, 9, 10, 15, 16, 19, 27, 29, 35, 37, 42, 45, 60, 61]):
        a(f"v_readlane_b32 s46, v255, {idx}") if False else None
    a("v_readlane_b32 s48, v255, 0")
    a("v_mov_b32 v6, 0")
    for k, idx in enumerate([1, 3, 4, 9, 10, 15, 16, 19, 27, 29, 35, 37, 42, 45, 60, 61]):
        a(f"v_readlane_b32 s49, v255, {idx}")
        a("s_nop 3")
        a("s_sub_u32 s49, s49, s48")
        a(f"v_writelane_b32 v6, s49, {k}")
    a("v_readlane_b32 s48, v255, 62")
    a("v_readlane_b32 s49, v255, 63")
    a("s_nop 3")
    a("s_sub_u32 s49, s49, s48")
    a("v_writelane_b32 v6, s49, 0")
    a("v_mbcnt_lo_u32_b32 v4, -1, 0")
    a("v_mbcnt_hi_u32_b32 v4, -1, v4")
    a("v_lshlrev_b32 v4, 2, v4")
    a("buffer_store_dword v6, v4, s[44:47], 0 offen")
    a.label(L)

def build(instrument=False, dbg=False):
    CTX.persistent, CTX.instrument = True, instrument
    a = Asm()
    fin = "L_fin"
    if instrument:
        a("s_memrealtime s[10:11]")
        a("s_memtime s[14:15]")
    prologue(a, 256, fin)
    if instrument: ts_setup(a)
    p01.gen_p01(a)
    p2.gen_p2(a)
    p345.gen_p3(a)
    p345.gen_p4(a)
    p345.gen_p5(a)
    kernel_publish_nonce(a)
    if instrument: ts_end(a)
    if dbg: dbg_out(a)
    a.label(fin)
    a("s_endpgm")
    problems = check_hazards(a.lines, KNAME)
    s = HEADER + "; @launch grid=(256,1,1) block=(512,1,1) lds=163840\n" + '.amdgcn_target "amdgcn-amd-amdhsa--gfx950"\n.text\n'
    s += kernel_text(KNAME, a) + '.section .rodata,"a"\n' + descriptor(KNAME)
    return s, problems

if __name__ == "__main__":
    s, problems = build(instrument="-ts" in sys.argv, dbg="-dbg" in sys.argv)
    for p in problems: print("HAZARD", p)
    out = sys.argv[1] if len(sys.argv) > 1 and not sys.argv[1].startswith("-") else "pers.s"
    open(out, "w").write(s)
    print("wrote", out, len(s), "bytes;", len(problems), "hazards")
```

```python
import re

class Asm:
    def __init__(self):
        self.lines = []
        self._uid = 0
    def __call__(self, text):
        for ln in text.strip("\n").split("\n"):
            ln = ln.strip()
            if ln:
                self.lines.append(ln)
    def label(self, name):
        self.lines.append(name + ":")
    def uid(self, base):
        self._uid += 1
        return f"{base}_{self._uid}"
    def nop(self, n):
        while n > 0:
            k = min(n, 16)
            self.lines.append(f"s_nop {k-1}")
            n -= k
    def text(self):
        out = []
        for ln in self.lines:
            if ln.endswith(":") or ln.startswith("."):
                out.append(ln)
            else:
                out.append("    " + ln)
        return "\n".join(out) + "\n"

def vr(a, n=1):
    return f"v{a}" if n == 1 else f"v[{a}:{a+n-1}]"
def sr(a, n=1):
    return f"s{a}" if n == 1 else f"s[{a}:{a+n-1}]"

_REG = re.compile(r"^(-?)(?:abs\()?([vsa])(?:(\d+)|\[(\d+):(\d+)\])\)?$")
def regs(op):
    op = op.strip()
    if op == "vcc": return {("s", "vcc")}
    if op in ("exec", "exec_lo", "exec_hi"): return {("s", "exec")}
    if op == "m0": return {("s", "m0")}
    m = _REG.match(op)
    if not m: return set()
    k = m.group(2)
    if m.group(3) is not None: return {(k, int(m.group(3)))}
    return {(k, i) for i in range(int(m.group(4)), int(m.group(5)) + 1)}

TRANS = ("v_exp_", "v_log_", "v_rcp_", "v_rsq_", "v_sqrt_", "v_sin_", "v_cos_")
class Ins:
    __slots__ = ("text", "mn", "ops", "wr", "rd", "kind", "passes", "nops", "target", "mods")
    def __init__(self, text):
        self.text = text
        t = text.split(";")[0].strip()
        p = t.split(None, 1)
        self.mn = p[0]
        rest = p[1] if len(p) > 1 else ""
        toks = [x.strip() for x in rest.split(",")] if rest else []
        mods = ""
        if toks:
            last = toks[-1].split(None, 1)
            toks[-1] = last[0]
            mods = last[1] if len(last) > 1 else ""
        self.ops, self.mods = toks, mods
        self.wr, self.rd = set(), set()
        self.kind, self.passes, self.nops, self.target = "other", 0, 1, None
        mn = self.mn
        R = [regs(o) for o in toks]
        if mn == "s_nop":
            self.nops = int(toks[0]) + 1; self.kind = "nop"
        elif mn.startswith("v_mfma"):
            self.kind = "mfma"; self.wr = R[0]; self.rd = R[1] | R[2] | R[3]
            self.passes = 8 if "32x32" in mn else 4
        elif mn.startswith("v_cmp"):
            self.kind = "valu"; self.wr = R[0]; self.rd = set().union(*R[1:])
            if mn.startswith("v_cmpx"): self.wr = self.wr | {("s", "exec")}
        elif mn.startswith("v_permlane") and "swap" in mn:
            self.kind = "permlane"; self.wr = R[0] | R[1]; self.rd = R[0] | R[1]
        elif mn.startswith("v_readfirstlane") or mn.startswith("v_readlane"):
            self.kind = "readlane"; self.wr = R[0]; self.rd = set().union(*R[1:])
        elif mn.startswith("v_"):
            self.kind = "valu"
            nd = 2 if ("_co_" in mn or mn.startswith("v_div_scale")) else 1
            self.wr = set().union(*R[:nd]); self.rd = set().union(*R[nd:]) if len(R) > nd else set()
            if mn.startswith(("v_fmac", "v_mac", "v_dot2c", "v_dot4c", "v_pk_fmac")) or "UNUSED_PRESERVE" in mods or "d16" in mn:
                self.rd |= R[0]
            if mn.startswith("v_cndmask") and len(toks) == 3: self.rd |= {("s", "vcc")}
            if mn.startswith(TRANS): self.kind = "trans"
        elif mn.startswith("ds_"):
            self.kind = "ds"
            if mn.startswith(("ds_read", "ds_bpermute", "ds_permute", "ds_swizzle")):
                self.wr = R[0]; self.rd = set().union(*R[1:])
            else:
                self.rd = set().union(*R)
        elif mn.startswith(("buffer_", "global_")):
            self.kind = "vmem"
            is_lds = " lds" in (" " + mods)
            if mn.startswith(("buffer_wbl2", "buffer_inv")):
                pass
            elif "load" in mn and not is_lds:
                self.wr = R[0]; self.rd = set().union(*R[1:])
                if "d16" in mn: self.rd |= R[0]
            elif "atomic" in mn:
                self.rd = set().union(*R)
                if "sc0" in mods: self.wr = R[0]
            else:
                self.rd = set().union(*R)
                if is_lds: self.rd |= {("s", "m0")}
        elif mn.startswith("s_cbranch") or mn == "s_branch":
            self.kind = "branch"; self.target = toks[0]
        elif mn in ("s_endpgm",):
            self.kind = "end"
        elif mn.startswith(("s_waitcnt", "s_barrier", "s_sleep", "s_setprio")):
            self.kind = "sync"
        elif mn.startswith("s_cmp") or mn.startswith("s_bitcmp"):
            self.kind = "salu"; self.rd = set().union(*R)
        elif mn.startswith("s_"):
            self.kind = "smem" if mn.startswith(("s_load", "s_memtime", "s_memrealtime", "s_buffer_load")) else "salu"
            if mn == "s_getpc_b64": R = R[:1]
            self.wr = R[0] if R else set(); self.rd = set().union(*R[1:]) if len(R) > 1 else set()
            if "saveexec" in mn: self.wr = self.wr | {("s", "exec")}
        self.mods = mods

def _isv(s): return {r for r in s if r[0] in ("v", "a")}
def _iss(s): return {r for r in s if r[0] == "s"}
VALU = ("valu", "trans", "permlane", "readlane")

def required(p, c):
    n = 0
    pw_v, pw_s = _isv(p.wr), _iss(p.wr)
    if p.kind in VALU:
        if c.kind == "mfma" and pw_v & c.rd: n = max(n, 2)
        if c.kind == "permlane" and pw_v & c.rd: n = max(n, 2)
        if c.kind == "readlane" and pw_v & c.rd: n = max(n, 1)
        if c.kind in VALU and "dpp" in c.text.lower().replace("_dpp", " dpp") and pw_v & c.rd: n = max(n, 2)
        if c.kind in VALU and any(k in c.mods for k in ("row_", "quad_perm", "wave_")) and pw_v & c.rd: n = max(n, 2)
        if c.kind == "vmem" and pw_s & c.rd: n = max(n, 5)
        if c.kind in VALU and pw_s & c.rd: n = max(n, 2)
        if c.kind == "readlane" and pw_s & c.rd: n = max(n, 4)
        if c.kind in ("salu", "branch") and pw_s & c.rd: n = max(n, 1)
        if ("s", "exec") in p.wr and c.kind == "mfma": n = max(n, 4)
        if ("s", "exec") in p.wr and c.kind in ("permlane", "readlane"): n = max(n, 4)
    if p.kind == "trans" and c.kind in VALU + ("mfma",) and c.kind != "trans" and pw_v & c.rd: n = max(n, 1)
    if p.kind in VALU and ("sdwa" in p.mn or "op_sel" in p.mods) and "pk_" not in p.mn and c.kind in VALU and pw_v & (c.rd | c.wr): n = max(n, 1)
    if p.kind == "mfma":
        far = 12 if p.passes == 8 else 8
        if c.kind == "mfma":
            srcc = regs(c.ops[3]); ab = regs(c.ops[1]) | regs(c.ops[2])
            if p.wr & ab: n = max(n, far)
            if p.wr & srcc:
                if not (srcc == p.wr and c.passes == p.passes): n = max(n, 10 if p.passes == 8 else 6)
            if p.wr & c.wr and not (c.wr == p.wr and srcc == p.wr) and not (p.wr & srcc):
                n = max(n, 10 if p.passes == 8 else 6)
        elif c.kind in VALU + ("ds", "vmem"):
            if p.wr & (c.rd | c.wr): n = max(n, far)
        srcc = regs(p.ops[3])
        if c.kind in VALU and srcc & _isv(c.wr): n = max(n, 7 if p.passes == 8 else 3)
        if c.kind in ("ds", "vmem") and srcc & _isv(c.wr): n = max(n, 7 if p.passes == 8 else 3)
    if p.kind == "vmem" and "store" in p.mn and ("x4" in p.mn or "x3" in p.mn):
        data = regs(p.ops[0])
        if c.kind in VALU + ("mfma",) and data & _isv(c.wr): n = max(n, 2)
        elif c.kind in ("ds", "vmem") and data & _isv(c.wr): n = max(n, 1)
    if p.kind == "salu" and ("s", "m0") in p.wr:
        if c.kind == "vmem" and ("s", "m0") in c.rd: n = max(n, 1)
    if p.kind == "salu" and ("s", "exec") in p.wr and False: pass
    return n

def check_hazards(lines, name=""):
    ins, labels = [], {}
    for ln in lines:
        if ln.endswith(":"): labels[ln[:-1]] = len(ins)
        elif ln.startswith(".") or ln.startswith(";"): continue
        else: ins.append(Ins(ln))
    def succ(i):
        x = ins[i]
        if x.kind == "end": return []
        if x.kind == "branch":
            t = [labels[x.target]] if x.target in labels else []
            if x.mn == "s_branch": return t
            return t + ([i + 1] if i + 1 < len(ins) else [])
        return [i + 1] if i + 1 < len(ins) else []
    problems = []
    MAXD = 12
    for i, p in enumerate(ins):
        if p.kind not in VALU + ("mfma", "vmem", "salu"): continue
        if not p.wr and p.kind != "vmem" and p.kind != "mfma": continue
        stack = [(j, 0) for j in succ(i)]
        seen = {}
        while stack:
            j, d = stack.pop()
            if d >= MAXD or seen.get(j, 99) <= d: continue
            seen[j] = d
            c = ins[j]
            need = required(p, c)
            if need > d:
                problems.append(f"{name}: need {need} have {d}: [{p.text}] -> [{c.text}]")
            for k in succ(j): stack.append((k, d + c.nops))
    return problems

def kernel_text(name, asm):
    return f".globl {name}\n.p2align 8\n.type {name},@function\n{name}:\n" + asm.text()

def descriptor(name, nvgpr=256, nsgpr=102):
    return f""".p2align 6
.amdhsa_kernel {name}
  .amdhsa_next_free_vgpr {nvgpr}
  .amdhsa_next_free_sgpr {nsgpr}
  .amdhsa_accum_offset {((nvgpr + 3)//4)*4}
  .amdhsa_group_segment_fixed_size 0
  .amdhsa_kernarg_size 96
  .amdhsa_user_sgpr_count 2
  .amdhsa_user_sgpr_kernarg_segment_ptr 1
  .amdhsa_system_sgpr_workgroup_id_x 1
  .amdhsa_float_denorm_mode_32 3
.end_amdhsa_kernel
"""
```

```python
from asmlib import *
from layout import *

P_X, P_WQKV, P_WO, P_BX, P_WG, P_WU, P_WD, P_C = 16, 18, 20, 22, 24, 26, 28, 30
P_WMOD, P_OUT, P_DBG, P_WS = 32, 34, 36, 38
S_WAVE, S_NONCE, S_DEAD = 40, 41, 42
SRD_FLAG = 96
LOG2E = 1.4426950408889634
SC = " sc1"

def f32bits(x):
    import struct
    return struct.unpack("<I", struct.pack("<f", x))[0]
def fl(x): return hex(f32bits(x))

class Ctx:
    def __init__(self, persistent, instrument):
        self.persistent, self.instrument = persistent, instrument
        self.stamp_base = 0

CTX = Ctx(True, False)

def stamp(a, idx):
    if not CTX.instrument: return
    if CTX.instrument == "light" and idx not in (58, 60, 61): return
    a("s_memtime s[12:13]")
    a("s_waitcnt lgkmcnt(0)")
    a(f"v_writelane_b32 v255, s12, {idx}")

def prologue(a, nwg, end_label, pre=None):
    a(f"s_cmp_ge_u32 s2, {nwg}")
    a(f"s_cbranch_scc1 {end_label}")
    a("s_load_dwordx16 s[16:31], s[0:1], 0")
    a("s_load_dwordx8 s[32:39], s[0:1], 64")
    a("v_lshrrev_b32 v1, 6, v0")
    a("s_nop 0")
    if pre: pre()
    a("v_and_b32 v0, 63, v0")
    a(f"v_readfirstlane_b32 s{S_WAVE}, v1")
    a("s_waitcnt lgkmcnt(0)")

def srd(a, d, ptr, off, size):
    if off:
        a(f"s_add_u32 s{d}, s{ptr}, {hex(off)}")
        a(f"s_addc_u32 s{d+1}, s{ptr+1}, 0")
    else:
        a(f"s_mov_b32 s{d}, s{ptr}")
        a(f"s_mov_b32 s{d+1}, s{ptr+1}")
    a(f"s_mov_b32 s{d+2}, {hex(size)}")
    a(f"s_mov_b32 s{d+3}, 0x20000")

def divmod_const(a, q, r, x, c):
    m = -(-(1 << 32) // c)
    a(f"s_mul_hi_u32 s{q}, s{x}, {hex(m)}")
    if r is not None:
        a(f"s_mul_i32 s{r}, s{q}, {c}")
        a(f"s_sub_u32 s{r}, s{x}, s{r}")

def vdiv_small(a, q, x, c, tmp=None):
    sh = 20
    m = -(-(1 << sh) // c)
    assert all((v*m) >> sh == v // c for v in range(4096)) and m < (1 << 24)
    a(f"v_mul_u32_u24 v{q}, {m}, v{x}")
    a(f"v_lshrrev_b32 v{q}, {sh}, v{q}")

def exec_lo32(a):
    a("s_mov_b32 exec_lo, -1")
    a("s_mov_b32 exec_hi, 0")
def exec_all(a): a("s_mov_b64 exec, -1")

def lane_consts(a):
    a("v_lshlrev_b32 v1, 4, v0")
    a("v_and_b32 v2, 31, v0")
    a("v_lshrrev_b32 v3, 5, v0")

class VmQ:
    def __init__(self, a): self.a, self.q = a, []
    def issue(self, tag, n=1): self.q += [tag]*n
    def wait(self, tag):
        idx = [i for i, t in enumerate(self.q) if t == tag]
        if not idx: return
        n = len(self.q) - 1 - idx[-1]
        assert n <= 63, n
        self.a(f"s_waitcnt vmcnt({n})")
        self.q = self.q[idx[-1]+1:]
    def drain(self):
        self.a("s_waitcnt vmcnt(0)")
        self.q = []

def flag_off(phase, idx): return 64*(1 + phase*256 + idx)

def barrier_if_persistent(a):
    if CTX.persistent: a("s_barrier")

def signal(a, phase, s_idx):
    if not CTX.persistent: return
    L = a.uid("sig")
    a(f"s_cmp_lg_u32 s{S_WAVE}, 0")
    a(f"s_cbranch_scc1 {L}")
    a(f"s_lshl_b32 s94, s{s_idx}, 6")
    a(f"s_add_u32 s94, s94, {flag_off(phase, 0)}")
    a(f"v_mov_b32 v250, s{S_NONCE}")
    a("v_mov_b32 v251, 0")
    a("s_mov_b64 exec, 1")
    a(f"buffer_store_dword v250, v251, s[{SRD_FLAG}:{SRD_FLAG+3}], s94 offen sc1")
    a("s_mov_b64 exec, -1")
    a.label(L)

def wait_flags(a, idx_vregs, phase, wave=0):
    if not CTX.persistent: return
    L, Lp, Ld = a.uid("wf"), a.uid("wf_poll"), a.uid("wf_done")
    a(f"s_cmp_lg_u32 s{S_WAVE}, {wave}")
    a(f"s_cbranch_scc1 {L}")
    a(f"s_cmp_lg_u32 s{S_DEAD}, 0")
    a(f"s_cbranch_scc1 {L}")
    for r in idx_vregs:
        a(f"v_lshlrev_b32 v{r}, 6, v{r}")
        a(f"v_add_u32 v{r}, {flag_off(phase, 0)}, v{r}")
    a("s_mov_b32 s94, 30000")
    a.label(Lp)
    for i, r in enumerate(idx_vregs):
        a(f"buffer_load_dword v{250+i}, v{r}, s[{SRD_FLAG}:{SRD_FLAG+3}], 0 offen sc1")
    a("s_waitcnt vmcnt(0)")
    a(f"v_cmp_ne_u32 vcc, s{S_NONCE}, v250")
    for i in range(1, len(idx_vregs)):
        a(f"v_cmp_ne_u32 s[92:93], s{S_NONCE}, v{250+i}")
        a("s_nop 1")
        a("s_or_b64 vcc, vcc, s[92:93]")
    a("s_nop 1")
    a(f"s_cbranch_vccz {L}")
    if OPTC["flag_sleep"]: a(f"s_sleep {OPTC['flag_sleep']}")
    a("s_sub_u32 s94, s94, 1")
    a("s_cmp_lg_u32 s94, 0")
    a(f"s_cbranch_scc1 {Lp}")
    a.label(Ld)
    a(f"s_mov_b32 s{S_DEAD}, 1")
    a.label(L)

def poll_granules(a, loads, tagregs, label_base, trips=30000, sleep=2):
    Lp, Ld, L = a.uid(label_base + "_poll"), a.uid(label_base + "_dead"), a.uid(label_base + "_ok")
    a(f"s_mov_b32 s94, {trips}")
    a(f"s_cmp_lg_u32 s{S_DEAD}, 0")
    a(f"s_cselect_b32 s94, 1, s94")
    a.label(Lp)
    for x in loads: a(x)
    a("s_waitcnt vmcnt(0)")
    a(f"v_cmp_ne_u32 vcc, s{S_NONCE}, v{tagregs[0]}")
    for r in tagregs[1:]:
        a(f"v_cmp_ne_u32 s[92:93], s{S_NONCE}, v{r}")
        a("s_nop 1")
        a("s_or_b64 vcc, vcc, s[92:93]")
    a("s_nop 1")
    a(f"s_cbranch_vccz {L}")
    a(f"s_sleep {sleep}")
    a("s_sub_u32 s94, s94, 1")
    a("s_cmp_lg_u32 s94, 0")
    a(f"s_cbranch_scc1 {Lp}")
    a(f"s_mov_b32 s{S_DEAD}, 1")
    a.label(L)

def kernel_setup(a):
    srd(a, SRD_FLAG, P_WS, WS_FLAG, SZ_FLAG)
    a("v_mov_b32 v250, 0")
    a(f"buffer_load_dword v251, v250, s[{SRD_FLAG}:{SRD_FLAG+3}], 0 offen sc1")
    a(f"s_mov_b32 s{S_DEAD}, 0")
def kernel_nonce(a):
    a("v_add_u32 v251, 1, v251")
    a("v_max_u32 v251, 1, v251")
    a("s_nop 0")
    a(f"v_readfirstlane_b32 s{S_NONCE}, v251")
def kernel_publish_nonce(a):
    L = a.uid("pubn")
    a("s_cmp_lg_u32 s2, 0")
    a(f"s_cbranch_scc1 {L}")
    a(f"s_cmp_lg_u32 s{S_WAVE}, 0")
    a(f"s_cbranch_scc1 {L}")
    a(f"v_mov_b32 v250, s{S_NONCE}")
    a("v_mov_b32 v251, 0")
    a("s_mov_b64 exec, 1")
    a(f"buffer_store_dword v250, v251, s[{SRD_FLAG}:{SRD_FLAG+3}], 0 offen sc1")
    a("s_mov_b64 exec, -1")
    a.label(L)

def poll_granules2(a, loads, r0, r1, tagoffs, nloads, label_base, trips=20000):
    Lp, L, Lc = a.uid(label_base + "_poll"), a.uid(label_base + "_ok"), a.uid(label_base + "_copy")
    def check(base):
        a(f"v_cmp_ne_u32 vcc, s{S_NONCE}, v{base+tagoffs[0]}")
        for t in tagoffs[1:]:
            a(f"v_cmp_ne_u32 s[92:93], s{S_NONCE}, v{base+t}")
            a("s_nop 1")
            a("s_or_b64 vcc, vcc, s[92:93]")
        a("s_nop 1")
    a(f"s_mov_b32 s94, {trips}")
    a(f"s_cmp_lg_u32 s{S_DEAD}, 0")
    a("s_cselect_b32 s94, 1, s94")
    for x in loads(r0): a(x)
    a.label(Lp)
    for x in loads(r1): a(x)
    a(f"s_waitcnt vmcnt({nloads})")
    check(r0)
    a(f"s_cbranch_vccz {L}")
    for x in loads(r0): a(x)
    a(f"s_waitcnt vmcnt({nloads})")
    check(r1)
    a(f"s_cbranch_vccz {Lc}")
    a("s_sub_u32 s94, s94, 1")
    a("s_cmp_lg_u32 s94, 0")
    a(f"s_cbranch_scc1 {Lp}")
    a(f"s_mov_b32 s{S_DEAD}, 1")
    a.label(Lc)
    a("s_waitcnt vmcnt(0)")
    for k in range(4*nloads): a(f"v_mov_b32 v{r0+k}, v{r1+k}")
    a.label(L)
    a("s_waitcnt vmcnt(0)")

KNAME = "adaLN_cond__mha_block__glu_gated_glu__prompt_kernel"
OPTC = {"code": True, "flag_sleep": 1, "stat_pre": 6, "stat_sleep": 1, "mod_sleep": 2,
        "fast_start": 1, "spread": 1, "zero_rows": 1, "h16": 0, "zero_k2": 0, "touch4": 0, "touch5": 0, "out_lds": 1, "out_sc": 0}
def code_touch(a, wave, vtmp=(252, 253), vdst=254):
    if not OPTC["code"]: return
    L, Lh = a.uid("cp"), a.uid("cp_here")
    lo, hi = vtmp
    a(f"s_cmp_lg_u32 s{S_WAVE}, {wave}")
    a(f"s_cbranch_scc1 {L}")
    a("s_getpc_b64 s[92:93]")
    a.label(Lh)
    a(f"s_sub_u32 s92, s92, {Lh}-{KNAME}")
    a("s_subb_u32 s93, s93, 0")
    a("s_lshr_b32 s94, s2, 3")
    a("s_and_b32 s94, s94, 31")
    a(f"s_mul_i32 s94, s94, (L_fin-{KNAME}+4095)/4096*128")
    a(f"v_min_u32 v{lo}, (L_fin-{KNAME}+4095)/4096-1, v0")
    a(f"v_lshlrev_b32 v{lo}, 7, v{lo}")
    a(f"v_add_u32 v{lo}, s94, v{lo}")
    a(f"v_min_u32 v{lo}, L_fin-{KNAME}, v{lo}")
    a(f"v_mov_b32 v{hi}, s93")
    a(f"v_add_co_u32 v{lo}, vcc, s92, v{lo}")
    a("s_nop 1")
    a(f"v_addc_co_u32 v{hi}, vcc, 0, v{hi}, vcc")
    a(f"global_load_dword v{vdst}, v[{lo}:{hi}], off")
    a.label(L)
```

```python
from gemm import *
QSCALE = (20 ** -0.5) * LOG2E
OPT01 = {"tlb": True}
P0_RED, P0_TAB = 131072, 139264
P1_RB = 65536

def reduce_swap(a, op, x, t):
    a(f"v_mov_b32 v{t}, v{x}")
    a("s_nop 1")
    a(f"{op} v{x}, v{t}")
    a("s_nop 1")
    a(f"v_add_f32 v{x}, v{x}, v{t}")

def map_p1(a):
    a("s_and_b32 s71, s2, 7")
    a("s_lshr_b32 s72, s2, 3")
    a("s_lshr_b32 s73, s71, 1")
    a("s_lshl_b32 s73, s73, 2")
    a("s_and_b32 s74, s72, 3")
    a(f"s_add_u32 s{S_RB}, s73, s74")
    a("s_and_b32 s73, s71, 1")
    a("s_lshl_b32 s73, s73, 3")
    a("s_lshr_b32 s74, s72, 2")
    a(f"s_add_u32 s{S_CG}, s73, s74")

def p1_a_setup(a):
    a(f"s_sub_u32 s{S_J}, s{S_WAVE}, 4")
    a("v_lshrrev_b32 v8, 4, v0")
    a("v_bfe_u32 v9, v0, 2, 2")
    a("v_xor_b32 v9, v9, v8")
    a("v_and_b32 v10, 3, v0")
    a("v_mul_u32_u24 v56, 3840, v8")
    a("v_lshl_add_u32 v56, v9, 6, v56")
    a("v_lshl_add_u32 v56, v10, 4, v56")
    a(f"s_mul_i32 s73, s{S_J}, {16*3840}")
    a(f"s_lshl_b32 s77, s{S_CG}, 8")
    a("s_add_u32 s73, s73, s77")
    a(f"s_lshl_b32 s77, s{S_J}, 12")
def p1_a_issue(a, c):
    for n in range(4): dma(a, 77, (c % 4)*16384 + n*1024, 56, SRD_A, 73, (c*64 + 4*n)*3840, False)
    return 4

def p1_prefetch(a):
    L = a.uid("P1_nopre")
    if OPT01["tlb"]:
        Lt = a.uid("P0_notlb")
        a(f"s_cmp_lg_u32 s{S_J}, 3")
        a(f"s_cbranch_scc1 {Lt}")
        srd(a, 60, P_WS, 0, WS_TS)
        a("v_min_u32 v103, 23, v0")
        a("v_lshlrev_b32 v103, 21, v103")
        a("buffer_load_dword v104, v103, s[60:63], 0 offen")
        srd(a, 60, P_OUT, 0, S*D*2)
        a("v_and_b32 v103, 1, v0")
        a("v_lshlrev_b32 v103, 21, v103")
        a("buffer_load_dword v105, v103, s[60:63], 0 offen")
        a.label(Lt)
    a(f"s_cmp_ge_u32 s{S_CG}, 15")
    a(f"s_cbranch_scc1 {L}")
    p1_a_setup(a)
    for c in range(3): p1_a_issue(a, c)
    a(f"s_and_b32 s84, s{S_RB}, 3")
    a("s_mul_i32 s84, s84, 112")
    a(f"s_mul_i32 s85, s{S_J}, 28")
    a("s_add_u32 s84, s84, s85")
    a("s_add_u32 s84, s84, 192")
    a("s_mul_i32 s84, s84, 3840")
    a(f"s_lshl_b32 s85, s{S_CG}, 8")
    a("s_add_u32 s84, s84, s85")
    a("v_lshrrev_b32 v100, 1, v0")
    a("v_min_u32 v100, 27, v100")
    a("v_mul_u32_u24 v100, 3840, v100")
    a("v_and_b32 v101, 1, v0")
    a("v_lshl_add_u32 v100, v101, 7, v100")
    a(f"buffer_load_dword v102, v100, s[{SRD_A}:{SRD_A+3}], s84 offen")
    a.label(L)

def mod_job_critical(a):
    srd(a, 56, P_WMOD, 0, 640*3840*2)
    srd(a, 60, P_C, 0, 640*2)
    a("s_and_b32 s84, s2, 7")
    a("s_lshr_b32 s85, s2, 3")
    a("s_mul_i32 s86, s84, 10")
    a("s_add_u32 s86, s86, s85")
    a("s_mul_i32 s87, s84, 20")
    a("s_add_u32 s87, s87, s85")
    a("s_add_u32 s87, s87, 70")
    a("s_cmp_lt_u32 s85, 10")
    a("s_cselect_b32 s86, s86, s87")
    a("v_lshrrev_b32 v2, 1, v0")
    a("v_and_b32 v3, 1, v0")
    a(f"s_mul_i32 s87, s{S_J}, 160")
    a("v_add_u32 v4, s87, v2")
    a("v_lshlrev_b32 v5, 1, v4")
    a("s_movk_i32 s87, 7680")
    a("v_mul_lo_u32 v6, v4, s87")
    a("s_lshl_b32 s88, s86, 5")
    a("v_lshl_add_u32 v6, v3, 4, v6")
    a("v_add_u32 v6, s88, v6")
    for m in range(5): a(f"buffer_load_ushort v{8+m}, v5, s[60:63], 0 offen offset:{64*m}")
    for m in range(5):
        a(f"s_mov_b32 s87, {m*32*7680}")
        a(f"buffer_load_dwordx4 v[{16+4*m}:{19+4*m}], v6, s[56:59], s87 offen")
    a("s_waitcnt vmcnt(5)")
    kernel_nonce(a)
    silu_bf16(a, 8, 40, 5)
    for m in range(5):
        a(f"s_waitcnt vmcnt({4-m})")
        for j in range(4):
            a(f"v_lshlrev_b32 v46, 16, v{16+4*m+j}")
            a(f"v_and_b32 v47, 0xffff0000, v{16+4*m+j}")
            op = "v_mul_f32" if m == 0 else "v_fmac_f32"
            a(f"{op} v{48+2*j}, v{8+m}, v46")
            a(f"{op} v{49+2*j}, v{8+m}, v47")
    a(f"s_lshl_b32 s87, s{S_J}, 11")
    a(f"s_add_u32 s87, s87, {P0_RED}")
    a("v_lshlrev_b32 v7, 5, v0")
    a("v_add_u32 v7, s87, v7")
    a("ds_write_b128 v7, v[48:51]")
    a("ds_write_b128 v7, v[52:55] offset:16")
    a("s_waitcnt lgkmcnt(0)")

def silu_bf16(a, x, t, n):
    for m in range(n): a(f"v_lshlrev_b32 v{x+m}, 16, v{x+m}")
    for m in range(n): a(f"v_mul_f32 v{t+m}, {fl(-LOG2E)}, v{x+m}")
    for m in range(n): a(f"v_exp_f32 v{t+m}, v{t+m}")
    a("s_nop 0")
    for m in range(n): a(f"v_add_f32 v{t+m}, 1.0, v{t+m}")
    for m in range(n): a(f"v_rcp_f32 v{t+m}, v{t+m}")
    a("s_nop 0")
    for m in range(n): a(f"v_mul_f32 v{x+m}, v{x+m}, v{t+m}")
    for m in range(n): a(f"v_cvt_pk_bf16_f32 v{x+m}, v{x+m}, v{x+m}")
    for m in range(n): a(f"v_and_b32 v{x+m}, 0xffff0000, v{x+m}")

def gen_p01(a):
    L_ld, L_A, L_B = a.uid("P0_ld"), a.uid("P0_A"), a.uid("P0_B")
    kernel_setup(a)
    map_p1(a)
    srd(a, SRD_A, P_WQKV, 0, 640*1920*2)
    a(f"s_cmp_ge_u32 s{S_WAVE}, 4")
    a(f"s_cbranch_scc1 {L_ld}")
    srd(a, 56, P_X, 0, S*D*2)
    srd(a, 60, P_WS, WS_HF, SZ_HF)
    a("s_lshl_b32 s85, s2, 3")
    a(f"s_lshl_b32 s86, s{S_WAVE}, 1")
    a("s_add_u32 s85, s85, s86")
    a("v_lshrrev_b32 v2, 5, v0")
    a("v_and_b32 v3, 31, v0")
    a("v_add_u32 v4, s85, v2")
    a("s_movk_i32 s87, 1280")
    a("v_mul_lo_u32 v5, v4, s87")
    a("v_lshl_add_u32 v5, v3, 3, v5")
    for m in range(5): a(f"buffer_load_dwordx2 v[{8+2*m}:{9+2*m}], v5, s[56:59], 0 offen offset:{256*m}")
    a("s_barrier")
    a("s_waitcnt vmcnt(0)")
    kernel_nonce(a)
    for m in range(5):
        for j in range(2):
            a(f"v_lshlrev_b32 v{20+4*m+2*j}, 16, v{8+2*m+j}")
            a(f"v_and_b32 v{21+4*m+2*j}, 0xffff0000, v{8+2*m+j}")
    def tree_sum(dst, src0, n, tmp):
        a(f"v_add_f32 v{tmp}, v{src0}, v{src0+1}")
        a(f"v_add_f32 v{tmp+1}, v{src0+2}, v{src0+3}")
        for r in range(4, n, 2):
            a(f"v_add_f32 v{tmp}, v{tmp}, v{src0+r}")
            a(f"v_add_f32 v{tmp+1}, v{tmp+1}, v{src0+r+1}")
        a(f"v_add_f32 v{dst}, v{tmp}, v{tmp+1}")
    def reduce32(x, t):
        for sh in (8, 4, 2, 1):
            a("s_nop 1")
            a(f"v_add_f32_dpp v{x}, v{x}, v{x} row_ror:{sh} row_mask:0xf bank_mask:0xf")
        reduce_swap(a, "v_permlane16_swap_b32", x, t)
    tree_sum(40, 20, 20, 42)
    reduce32(40, 41)
    a(f"v_mul_f32 v40, {fl(1.0/640)}, v40")
    for r in range(20): a(f"v_sub_f32 v{20+r}, v{20+r}, v40")
    a("v_mul_f32 v42, v20, v20")
    a("v_mul_f32 v43, v21, v21")
    for r in range(2, 20, 2):
        a(f"v_fmac_f32 v42, v{20+r}, v{20+r}")
        a(f"v_fmac_f32 v43, v{21+r}, v{21+r}")
    a("v_add_f32 v41, v42, v43")
    reduce32(41, 42)
    a(f"v_mov_b32 v42, {fl(1e-5)}")
    a(f"v_fmac_f32 v42, {fl(1.0/640)}, v41")
    a("v_rsq_f32 v42, v42")
    a("s_nop 0")
    for r in range(20): a(f"v_mul_f32 v{20+r}, v{20+r}, v42")
    a("v_lshlrev_b32 v6, 4, v3")
    a(f"v_add_u32 v6, {P0_TAB}, v6")
    stamp(a, 1)
    a("s_barrier")
    stamp(a, 3)
    for m in range(5):
        a(f"ds_read_b128 v[{60+8*m}:{63+8*m}], v6 offset:{512*m}")
        a(f"ds_read_b128 v[{64+8*m}:{67+8*m}], v6 offset:{2560+512*m}")
    for m in range(5):
        a(f"s_waitcnt lgkmcnt({8-2*m})")
        for j in range(4): a(f"v_fma_f32 v{20+4*m+j}, v{20+4*m+j}, v{60+8*m+j}, v{64+8*m+j}")
        a(f"v_cvt_pk_bf16_f32 v{8+2*m}, v{20+4*m}, v{21+4*m}")
        a(f"v_cvt_pk_bf16_f32 v{9+2*m}, v{22+4*m}, v{23+4*m}")
        a(f"buffer_store_dwordx2 v[{8+2*m}:{9+2*m}], v5, s[60:63], 0 offen offset:{256*m}{SC}")
    a("s_waitcnt vmcnt(0)")
    L_D = a.uid("P0_D")
    a(f"s_branch {L_D}")

    a.label(L_ld)
    a(f"s_sub_u32 s{S_J}, s{S_WAVE}, 4")
    L_nomod = a.uid("P0_nomod")
    a("s_cmp_ge_u32 s2, 240")
    a(f"s_cbranch_scc1 {L_nomod}")
    mod_job_critical(a)
    a(f"s_branch {L_A}")
    a.label(L_nomod)
    a("s_waitcnt vmcnt(0)")
    kernel_nonce(a)
    a.label(L_A)
    stamp(a, 1)
    a("s_barrier")
    L_w0, L_w12, L_pre = a.uid("P0_w0"), a.uid("P0_w1"), a.uid("P0_pre")
    a(f"s_cmp_eq_u32 s{S_J}, 0")
    a(f"s_cbranch_scc1 {L_w0}")
    a(f"s_cmp_eq_u32 s{S_J}, 3")
    a(f"s_cbranch_scc1 {L_pre}")
    a(f"s_branch {L_w12}")
    a.label(L_w0)
    a("s_cmp_ge_u32 s2, 240")
    a(f"s_cbranch_scc1 {L_pre}")
    srd(a, 56, P_WS, WS_MODG, SZ_MODG)
    a("v_and_b32 v3, 3, v0")
    a("v_lshrrev_b32 v2, 2, v0")
    a("v_lshlrev_b32 v7, 9, v2")
    a("v_lshl_add_u32 v7, v3, 4, v7")
    a(f"v_add_u32 v7, {P0_RED}, v7")
    for r in range(8): a(f"ds_read_b128 v[{64+4*r}:{67+4*r}], v7 offset:{r*64}")
    for r in range(1, 8):
        a(f"s_waitcnt lgkmcnt({7-r})")
        for j in range(4): a(f"v_add_f32 v{64+j}, v{64+j}, v{64+4*r+j}")
    for sh in (4, 8):
        a("s_nop 1")
        for j in range(4): a(f"v_add_f32_dpp v{64+j}, v{64+j}, v{64+j} row_ror:{sh} row_mask:0xf bank_mask:0xf")
    for op in ("v_permlane16_swap_b32", "v_permlane32_swap_b32"):
        for j in range(4): a(f"v_mov_b32 v{68+j}, v{64+j}")
        a("s_nop 1")
        for j in range(4): a(f"{op} v{64+j}, v{68+j}")
        a("s_nop 1")
        for j in range(4): a(f"v_add_f32 v{64+j}, v{64+j}, v{68+j}")
    a("v_cvt_pk_bf16_f32 v72, v64, v65")
    a("v_cvt_pk_bf16_f32 v73, v66, v67")
    a(f"v_mov_b32 v74, s{S_NONCE}")
    a("v_mov_b32 v75, 0")
    a("v_lshlrev_b32 v7, 4, v3")
    a(f"v_mul_u32_u24 v76, {MODG_REP}, v2")
    a("v_add_u32 v7, v7, v76")
    a("s_lshl_b32 s87, s86, 6")
    exec_lo32(a)
    a(f"buffer_store_dwordx4 v[72:75], v7, s[56:59], s87 offen{SC}")
    exec_all(a)
    a(f"s_branch {L_pre}")
    a.label(L_w12)
    srd(a, 56, P_WS, WS_MODG, SZ_MODG)
    a("s_and_b32 s84, s2, 7")
    a(f"s_mul_i32 s84, s84, {MODG_REP}")
    a(f"s_sub_u32 s85, s{S_J}, 1")
    a("s_mul_i32 s86, s85, 2560")
    a("s_add_u32 s84, s84, s86")
    a("v_lshlrev_b32 v7, 4, v0")
    a("v_add_u32 v8, 128, v0")
    a("v_min_u32 v8, 159, v8")
    a("v_lshlrev_b32 v8, 4, v8")
    loads = [f"buffer_load_dwordx4 v[16:19], v7, s[56:59], s84 offen{SC}",
             f"buffer_load_dwordx4 v[20:23], v7, s[56:59], s84 offen offset:1024{SC}",
             f"buffer_load_dwordx4 v[24:27], v8, s[56:59], s84 offen{SC}"]
    poll_granules(a, loads, [18, 22, 26], "P0_mod", sleep=OPTC["mod_sleep"])
    stamp(a, 2)
    a("s_cmp_eq_u32 s85, 0")
    a(f"s_mov_b32 s86, {P0_TAB}")
    a(f"s_cselect_b32 s86, {P0_TAB+2560}, s86")
    a("v_add_u32 v7, s86, v7")
    a("v_add_u32 v8, s86, v8")
    L_plain = a.uid("P0_plain")
    for n in range(3): unpack4(a, 40+4*n, 16+4*n)
    a("s_cmp_eq_u32 s85, 0")
    a(f"s_cbranch_scc1 {L_plain}")
    for n in range(3): one_plus_round(a, 40+4*n)
    a.label(L_plain)
    a("ds_write_b128 v7, v[40:43]")
    a("ds_write_b128 v7, v[44:47] offset:1024")
    a("ds_write_b128 v8, v[48:51]")
    a("s_waitcnt lgkmcnt(0)")
    a("s_barrier")
    p1_prefetch(a)
    a(f"s_branch {L_D}")
    a.label(L_pre)
    p1_prefetch(a)
    a("s_barrier")
    a.label(L_D)
    a("s_barrier")
    signal(a, 0, 2)
    stamp(a, 4)

    L_end = a.uid("P1_end")
    L_spare = a.uid("P1_spare")
    a(f"s_cmp_ge_u32 s{S_CG}, 15")
    a(f"s_cbranch_scc1 {L_spare}")
    lane_consts(a)
    L_comp, L_fin = a.uid("P1_comp"), a.uid("P1_fin")
    a(f"s_cmp_lt_u32 s{S_WAVE}, 4")
    a(f"s_cbranch_scc1 {L_comp}")
    p1_a_setup(a)
    srd(a, SRD_B, P_WS, WS_HF, SZ_HF)
    a("v_lshrrev_b32 v8, 3, v0")
    a("v_mul_u32_u24 v8, 1280, v8")
    a("v_and_b32 v9, 7, v0")
    a("v_lshrrev_b32 v10, 4, v0")
    a("v_xor_b32 v11, v9, v10")
    a("v_lshl_add_u32 v57, v11, 4, v8")
    a("v_xor_b32 v11, 4, v11")
    a("v_lshl_add_u32 v58, v11, 4, v8")
    a(f"s_lshl_b32 s72, s{S_J}, 12")
    a(f"s_lshl_b32 s74, s{S_RB}, 7")
    a(f"s_lshl_b32 s76, s{S_J}, 5")
    a("s_add_u32 s74, s74, s76")
    a("s_mul_i32 s74, s74, 1280")
    def a_issue(c):
        if c < 3: return 4 + (c == 2)
        return p1_a_issue(a, c)
    def b_issue(c):
        for p in range(4): dma(a, 72, P1_RB + (c % 3)*16384 + p*1024, 57 + p % 2, SRD_B, 74, p*8*1280 + c*128, True)
        return 4
    plain_loader(a, NC=10, a_issue=a_issue, b_issue=b_issue, n_pre_a=3, after_pre=lambda vq: None,
                 deps=lambda: a("s_barrier"), sb=8)
    a(f"s_branch {L_fin}")
    a.label(L_comp)
    a(f"s_lshl_b32 s71, s{S_WAVE}, 12")
    a(f"s_add_u32 s71, s71, {P1_RB}")
    a("v_lshlrev_b32 v8, 7, v2")
    a("v_add_u32 v8, s71, v8")
    a("v_bfe_u32 v9, v2, 1, 3")
    for sp in range(4):
        a(f"v_add_u32 v10, {2*sp}, v3")
        a("v_xor_b32 v10, v10, v9")
        a(f"v_lshl_add_u32 v{44+sp}, v10, 4, v8")
    tr_lane_parts(a, 8, 9, 10)
    a("v_lshl_add_u32 v11, v3, 3, v8")
    a("v_lshlrev_b32 v11, 8, v11")
    a("v_lshl_add_u32 v11, v9, 5, v11")
    a("v_lshl_add_u32 v11, v10, 3, v11")
    for T in range(4):
        a(f"v_xor_b32 v12, {T}, v8")
        a(f"v_lshl_add_u32 v{40+T}, v12, 6, v11")
    a(f"s_lshl_b32 s72, s{S_RB}, 2")
    a(f"s_add_u32 s72, s72, s{S_WAVE}")
    ACC = 64
    def pv_reads(s, t, reg):
        o = ((s//4) % 4)*16384 + (s % 4)*4096
        return two64(reg, 40+t, o, 40+t, o + 1024, True)
    args = dict(KS=40, CK=4, NU=4, P=4, acc=lambda t: ACC+16*t, sh_regs=[32, 36], pv_regs=[16, 20, 24, 28],
                sh_reads=lambda s, reg: b128(reg, 44 + s % 4, ((s//4) % 3)*16384), pv_reads=pv_reads, sb=8)
    def deps():
        a(f"s_lshl_b32 s71, s{S_RB}, 4")
        a("v_and_b32 v240, 15, v0")
        a("v_add_u32 v240, s71, v240")
        wait_flags(a, [240], 0)
        a("s_barrier")
    L_v = a.uid("P1_v")
    a(f"s_cmp_ge_u32 s{S_CG}, 10")
    a(f"s_cbranch_scc1 {L_v}")
    a(f"s_mov_b32 s73, {KVT}")
    a(f"s_mov_b32 s74, {WS_KV}")
    a(f"s_cmp_lt_u32 s{S_CG}, 5")
    a(f"s_cselect_b32 s73, {QT}, s73")
    a(f"s_cselect_b32 s74, {WS_Q}, s74")
    a(f"s_cselect_b32 s76, {fl(QSCALE)}, 1.0")
    a("s_cselect_b32 s75, 0, 5")
    a(f"s_sub_u32 s75, s{S_CG}, s75")
    a(f"s_add_u32 s{SRD_E0}, s{P_WS}, s74")
    a(f"s_addc_u32 s{SRD_E0+1}, s{P_WS+1}, 0")
    a(f"s_mov_b32 s{SRD_E0+2}, {hex(SZ_KV)}")
    a(f"s_mov_b32 s{SRD_E0+3}, 0x20000")
    a("s_mul_i32 s78, s72, s73")
    a("s_lshl_b32 s79, s73, 6")
    a("s_lshl_b32 s80, s75, 5")
    a("v_add_u32 v5, s80, v3")
    a("v_lshlrev_b32 v6, 3, v2")
    for T in range(4):
        for g in range(4):
            o = 128 + 4*T + g
            a(f"v_add_u32 v8, {8*T+2*g}, v5")
            a("v_mul_u32_u24 v9, 0xcccd, v8")
            a("v_lshrrev_b32 v9, 18, v9")
            a("v_mul_u32_u24 v10, 5, v9")
            a("v_sub_u32 v10, v8, v10")
            a(f"v_mul_lo_u32 v{o}, v9, s79")
            a("v_lshl_add_u32 v10, v10, 8, v6")
            a(f"v_add_u32 v{o}, v{o}, v10")
    deps()
    compute_loop(a, swap=False, **args)
    a.nop(12)
    L_ns = a.uid("P1_noscale")
    a(f"s_cmp_ge_u32 s{S_CG}, 5")
    a(f"s_cbranch_scc1 {L_ns}")
    for r in range(64): a(f"v_mul_f32 v{ACC+r}, s76, v{ACC+r}")
    a.label(L_ns)
    for T in range(4):
        for g in range(4):
            r = ACC + 16*T + 4*g
            p = 16 + 2*((4*T+g) % 8)
            a(f"v_cvt_pk_bf16_f32 v{p}, v{r}, v{r+1}")
            a(f"v_cvt_pk_bf16_f32 v{p+1}, v{r+2}, v{r+3}")
            a(f"buffer_store_dwordx2 v[{p}:{p+1}], v{128+4*T+g}, s[{SRD_E0}:{SRD_E0+3}], s78 offen{SC}")
    a(f"s_branch {L_fin}")
    a.label(L_v)
    srd(a, SRD_E0, P_WS, WS_KV, SZ_KV)
    a(f"s_mul_i32 s78, s72, {KVT}")
    a(f"s_sub_u32 s75, s{S_CG}, 10")
    a("s_lshl_b32 s80, s75, 7")
    a("v_add_u32 v5, s80, v2")
    a("v_mul_u32_u24 v6, 320, v3")
    a(f"s_mov_b32 s79, {64*KVT}")
    for T in range(4):
        a(f"v_add_u32 v8, {32*T}, v5")
        a("v_mul_u32_u24 v9, 0xcccd, v8")
        a("v_lshrrev_b32 v9, 20, v9")
        a("v_mul_u32_u24 v10, 20, v9")
        a("v_sub_u32 v10, v8, v10")
        a(f"v_mul_lo_u32 v{128+T}, v9, s79")
        a(f"v_lshl_add_u32 v{128+T}, v10, 4, v{128+T}")
        a(f"v_add_u32 v{128+T}, v{128+T}, v6")
    deps()
    compute_loop(a, swap=True, **args)
    a.nop(12)
    for T in range(4):
        for tp in range(2):
            r = ACC + 16*T + 8*tp
            p = 16 + 4*((2*T+tp) % 4)
            for j in range(4): a(f"v_cvt_pk_bf16_f32 v{p+j}, v{r+2*j}, v{r+2*j+1}")
            a(f"buffer_store_dwordx4 v[{p}:{p+3}], v{128+T}, s[{SRD_E0}:{SRD_E0+3}], s78 offen offset:{1280+640*tp}{SC}")
    a.label(L_fin)
    stamp(a, 14)
    a("s_waitcnt vmcnt(0)")
    a("s_barrier")
    a(f"s_lshl_b32 s71, s{S_CG}, 4")
    a(f"s_add_u32 s71, s71, s{S_RB}")
    signal(a, 1, 71)
    a.label(L_spare)
    a.label(L_end)
    stamp(a, 15)
```

```python
from gemm import *

CH = 40960
ONES = 3*CH
LDS_P2 = 4*CH
Q1, Q2, CM, SA, SB, OA = 8, 12, 16, 32, 48, 64
P0, P1 = 80, 84
KB = [(88, 92), (96, 100)]
VB = [(104, 108), (112, 116)]
AK1, AK2, AV = 120, 123, 126
SRD_Q, SRD_KV, SRD_O = 44, 48, 52
S_HEAD, S_TQ = 68, 69
OPT = {"prio": 0, "sched": 1}

def exps(S): return [f"v_exp_f32 v{S+i}, v{S+i}" for i in range(16)]
def cvt(S, i): return f"v_cvt_pk_bf16_f32 v{(P0 if i < 8 else P1) + (i//2) % 4}, v{S+i}, v{S+i+1}"
def qk1(a, S, kb):  a(f"v_mfma_f32_32x32x16_bf16 v[{S}:{S+15}], v[{kb[0]}:{kb[0]+3}], v[{Q1}:{Q1+3}], v[{CM}:{CM+15}]")
def qk2(a, S, kb):  a(f"v_mfma_f32_32x32x8bf16_1k v[{S}:{S+15}], v[{kb[1]}:{kb[1]+1}], v[{Q2}:{Q2+1}], v[{S}:{S+15}]")
def pv(a, vreg, P, first=False):
    c = "0" if first else f"v[{OA}:{OA+15}]"
    a(f"v_mfma_f32_32x32x16_bf16 v[{OA}:{OA+15}], v[{vreg}:{vreg+3}], v[{P}:{P+3}], {c}")
def rdK(a, t):
    c, tl = divmod(t, 16); kb = KB[t % 2]
    a(f"ds_read_b64 v[{kb[0]}:{kb[0]+1}], v{AK1 + c % 3} offset:{tl*KVT}")
    a(f"ds_read_b64 v[{kb[0]+2}:{kb[0]+3}], v{AK1 + c % 3} offset:{tl*KVT + 512}")
    a(f"ds_read_b64 v[{kb[1]}:{kb[1]+1}], v{AK2 + c % 3} offset:{tl*KVT}")
def rdV(a, t, tp):
    c, tl = divmod(t, 16); vb = VB[t % 2]
    a(f"ds_read_b128 v[{vb[tp]}:{vb[tp]+3}], v{AV + c % 3} offset:{tl*KVT + 1280 + 640*tp}")

def deps_p2(a):
    a(f"s_mul_i32 s71, s{S_HEAD}, 20")
    a("s_lshr_b32 s72, s71, 7")
    a("s_add_u32 s71, s71, 19")
    a("s_lshr_b32 s71, s71, 7")
    a("v_min_u32 v242, 47, v0")
    a("v_lshrrev_b32 v243, 4, v242")
    a("v_mul_u32_u24 v243, 80, v243")
    a("v_and_b32 v242, 15, v242")
    a("v_add_u32 v242, v242, v243")
    a("s_lshl_b32 s72, s72, 4")
    a("s_lshl_b32 s71, s71, 4")
    a("v_add_u32 v240, s72, v242")
    a("v_add_u32 v241, s71, v242")
    wait_flags(a, [240, 241], 1)

def gen_p2(a):
    a("s_and_b32 s71, s2, 7")
    a("s_lshr_b32 s72, s2, 3")
    a("s_and_b32 s72, s72, 3")
    a("s_lshl_b32 s72, s72, 3")
    a(f"s_add_u32 s{S_HEAD}, s71, s72")
    a("s_lshr_b32 s72, s2, 5")
    a("s_lshl_b32 s72, s72, 3")
    a(f"s_add_u32 s{S_TQ}, s72, s{S_WAVE}")
    srd(a, SRD_Q, P_WS, WS_Q, SZ_Q)
    srd(a, SRD_KV, P_WS, WS_KV, SZ_KV)
    srd(a, SRD_O, P_WS, WS_O, SZ_O)
    lane_consts(a)
    vq = VmQ(a)
    for j in range(4): a(f"v_mov_b32 v{SA+j}, 0x3f803f80")
    a("v_lshrrev_b32 v6, 4, v0")
    a(f"s_lshl_b32 s74, s{S_WAVE}, 2")
    a("v_add_u32 v6, s74, v6")
    a("v_lshrrev_b32 v7, 1, v6")
    a(f"v_mul_u32_u24 v7, {KVT}, v7")
    a("v_and_b32 v6, 1, v6")
    a("v_mul_u32_u24 v6, 640, v6")
    a("v_add_u32 v7, v7, v6")
    a("v_and_b32 v6, 15, v0")
    a("v_lshl_add_u32 v7, v6, 4, v7")
    a(f"v_add_u32 v7, {ONES+1280}, v7")
    a(f"ds_write_b128 v7, v[{SA}:{SA+3}]")
    a("v_lshlrev_b32 v4, 3, v2")
    a("v_add_u32 v4, 1024, v4")
    a("v_mul_u32_u24 v6, 320, v3")
    a("v_lshl_add_u32 v6, v2, 4, v6")
    a("v_cmp_gt_u32 vcc, 28, v2")
    a("v_mov_b32 v7, 192")
    a("v_mov_b32 v14, 64")
    a("v_cndmask_b32 v7, v7, v14, vcc")
    a("v_lshlrev_b32 v14, 6, v3")
    a("v_add_u32 v7, v7, v14")
    a("v_and_b32 v7, 255, v7")
    a(f"v_add_u32 v7, {ONES}, v7")
    a("v_cmp_gt_u32 vcc, 20, v2")
    a("v_lshlrev_b32 v129, 3, v2")
    a("v_lshl_add_u32 v129, v3, 8, v129")
    for sl in range(3):
        a(f"v_add_u32 v{AK1+sl}, {sl*CH}, v129")
        a(f"v_add_u32 v{AK2+sl}, {sl*CH}, v4")
        a(f"v_add_u32 v14, {sl*CH}, v6")
        a(f"v_cndmask_b32 v{AV+sl}, v7, v14, vcc")
    a(f"s_lshl_b32 s71, s{S_HEAD}, 6")
    a(f"s_add_u32 s71, s71, s{S_TQ}")
    a(f"s_mul_i32 s76, s71, {QT}")
    a(f"s_mul_i32 s77, s{S_HEAD}, {64*KVT}")
    a(f"s_lshl_b32 s73, s{S_WAVE}, 10")
    a("v_add_u32 v5, s73, v1")
    a(f"v_mov_b32 v{Q2}, 0")
    a(f"v_mov_b32 v{Q2+1}, 0")
    deps_p2(a); a("s_barrier")
    stamp(a, 16)
    def ld_qk(r1, r2, srd_, soff, mask2):
        a(f"buffer_load_dwordx2 v[{r1}:{r1+1}], v129, s[{srd_}:{srd_+3}], s{soff} offen{SC}")
        a(f"buffer_load_dwordx2 v[{r1+2}:{r1+3}], v129, s[{srd_}:{srd_+3}], s{soff} offen offset:512{SC}")
        if mask2: exec_lo32(a)
        a(f"buffer_load_dwordx2 v[{r2}:{r2+1}], v4, s[{srd_}:{srd_+3}], s{soff} offen{SC}")
        if mask2: exec_all(a)
    ld_qk(Q1, Q2, SRD_Q, 76, True); vq.issue("Q", 3)
    ld_qk(KB[0][0], KB[0][1], SRD_KV, 77, False); vq.issue("Q", 3)
    def dmac(c, lo=0, hi=5):
        for n in range(lo, hi):
            a(f"s_add_u32 m0, s73, {(c % 3)*CH + n*8192}")
            a(f"s_add_u32 s74, s77, {c*CH + n*8192}")
            a(f"buffer_load_dwordx4 v5, s[{SRD_KV}:{SRD_KV+3}], s74 offen{SC} lds")
            vq.issue(("C", c, n))
    dmac(0)
    def max16(dst, S, init=True):
        if init: a(f"v_max3_f32 v{dst}, v{S}, v{S+1}, v{S+2}")
        else:
            a(f"v_max3_f32 v{dst}, v{dst}, v{S}, v{S+1}")
            a(f"v_max_f32 v{dst}, v{dst}, v{S+2}")
        for i in range(3, 15, 2): a(f"v_max3_f32 v{dst}, v{dst}, v{S+i}, v{S+i+1}")
        a(f"v_max_f32 v{dst}, v{dst}, v{S+15}")
    def set_cm(m):
        a(f"v_mov_b32 v14, v{m}")
        a("s_nop 1")
        a(f"v_permlane32_swap_b32 v{m}, v14")
        a("s_nop 1")
        a(f"v_max_f32 v{m}, v{m}, v14")
        for i in range(16): a(f"v_sub_f32 v{CM+i}, 0, v{m}")
    vq.wait("Q")
    stamp(a, 17)
    a(f"v_mfma_f32_32x32x16_bf16 v[{SA}:{SA+15}], v[{KB[0][0]}:{KB[0][0]+3}], v[{Q1}:{Q1+3}], 0")
    qk2(a, SA, KB[0])
    dmac(1)
    a.nop(2)
    max16(15, SA)
    set_cm(15)
    stamp(a, 18)
    vq.wait(("C", 0, 4))
    a("s_waitcnt lgkmcnt(0)")
    a("s_barrier")
    stamp(a, 19)
    if OPT["prio"]:
        L = a.uid("prio")
        a(f"s_cmp_lt_u32 s{S_WAVE}, 4")
        a(f"s_cbranch_scc1 {L}")
        a("s_setprio 1")
        a.label(L)
    rdK(a, 0); rdK(a, 1); rdV(a, 0, 0); rdV(a, 0, 1)
    dmac(2)
    a("s_waitcnt lgkmcnt(5)")
    qk1(a, SA, KB[0]); qk2(a, SA, KB[0])
    a.nop(8)
    NT = 64
    for t in range(NT):
        S = SA if t % 2 == 0 else SB
        SN = SB if t % 2 == 0 else SA
        nxt = t + 1 < NT
        if t % 16 == 14 and t + 2 < NT:
            c1 = t // 16 + 1
            if c1 == 1: vq.wait(("C", 1, 4))
            else: vq.drain()
            a("s_barrier")
            if c1 == 3:
                signal(a, 5, 2)
                code_touch(a, 7)
            if c1 == 1: retile_loads(a)
            if c1 == 2:
                dmac(3)
                retile_stores(a)
        e = exps(S); c = {i: cvt(S, i) for i in range(0, 16, 2)}
        a("s_waitcnt lgkmcnt(2)")
        if nxt: qk1(a, SN, KB[(t+1) % 2])
        if t + 2 < NT: rdK(a, t+2)
        elif nxt: a("s_nop 1")
        else: a.nop(2)
        for x in [e[0], e[1], e[2], c[0], e[3], e[4]]: a(x)
        if t > 0: pv(a, VB[(t-1) % 2][1], P1, first=False)
        if nxt: rdV(a, t+1, 0); rdV(a, t+1, 1)
        for x in [c[2], e[5], e[6], c[4], e[7], e[8]]: a(x)
        if nxt: qk2(a, SN, KB[(t+1) % 2])
        for x in [c[6], e[9], e[10], c[8], e[11], e[12]]: a(x)
        n_out = (3 if t + 2 < NT else 0) + (2 if nxt else 0) + 1
        a(f"s_waitcnt lgkmcnt({n_out})")
        pv(a, VB[t % 2][0], P0, first=(t == 0))
        for x in [c[10], e[13], e[14], e[15], c[12], c[14]]: a(x)
    a("s_waitcnt lgkmcnt(0)")
    a("s_nop 0")
    pv(a, VB[(NT-1) % 2][1], P1)
    a.nop(12)
    stamp(a, 25)
    if OPT["prio"]: a("s_setprio 0")
    L_slow, L_epi, L_fin = a.uid("P2_slow"), a.uid("P2_epi"), a.uid("P2_fin")
    a(f"v_max3_f32 v14, abs(v{OA}), abs(v{OA+1}), abs(v{OA+2})")
    for i in range(3, 11, 2): a(f"v_max3_f32 v14, v14, abs(v{OA+i}), abs(v{OA+i+1})")
    a(f"v_max_f32 v14, v14, abs(v{OA+11})")
    a(f"v_mov_b32 v15, {fl(2.0**60)}")
    a(f"v_cmp_nlt_f32 vcc, v{OA+12}, v15")
    a(f"v_mov_b32 v15, {fl(2.0**120)}")
    a("v_cmp_nlt_f32 s[80:81], v14, v15")
    a("s_nop 1")
    a("s_or_b64 vcc, vcc, s[80:81]")
    a(f"s_cbranch_vccnz {L_slow}")
    a.label(L_epi)
    a(f"v_rcp_f32 v14, v{OA+12}")
    a(f"s_mul_i32 s74, s{S_TQ}, 40960")
    a(f"s_mul_i32 s75, s{S_HEAD}, 5")
    for i in range(12): a(f"v_mul_f32 v{OA+i}, v{OA+i}, v14")
    for g in range(3):
        a(f"v_cvt_pk_bf16_f32 v{P0+2*g}, v{OA+4*g}, v{OA+4*g+1}")
        a(f"v_cvt_pk_bf16_f32 v{P0+2*g+1}, v{OA+4*g+2}, v{OA+4*g+3}")
    a("v_add_u32 v6, s75, v3")
    a("v_lshlrev_b32 v6, 8, v6")
    a("v_lshl_add_u32 v6, v2, 3, v6")
    for g in range(3):
        if g == 2: exec_lo32(a)
        a(f"buffer_store_dwordx2 v[{P0+2*g}:{P0+2*g+1}], v6, s[{SRD_O}:{SRD_O+3}], s74 offen offset:{512*g}{SC}")
    exec_all(a)
    a(f"s_branch {L_fin}")
    a.label(L_slow)
    kb, vb = KB[0], VB[0]
    a("v_mov_b32 v15, 0xff800000")
    a("s_mov_b32 s78, 0")
    L1, L2 = a.uid("P2_max"), a.uid("P2_pv")
    a.label(L1)
    a("s_add_u32 s79, s77, s78")
    ld_qk(kb[0], kb[1], SRD_KV, 79, False)
    a("s_waitcnt vmcnt(0)")
    a(f"v_mfma_f32_32x32x16_bf16 v[{SA}:{SA+15}], v[{kb[0]}:{kb[0]+3}], v[{Q1}:{Q1+3}], 0")
    qk2(a, SA, kb)
    a.nop(12)
    max16(15, SA, init=False)
    a(f"s_add_u32 s78, s78, {KVT}")
    a(f"s_cmp_lt_u32 s78, {64*KVT}")
    a(f"s_cbranch_scc1 {L1}")
    set_cm(15)
    for i in range(16): a(f"v_mov_b32 v{OA+i}, 0")
    a("v_mul_u32_u24 v6, 320, v3")
    a("v_lshl_add_u32 v6, v2, 4, v6")
    for j in range(4):
        a(f"v_mov_b32 v{vb[0]+j}, 0x3f803f80")
        a(f"v_mov_b32 v{vb[1]+j}, 0x3f803f80")
    a("v_cmp_gt_u32 s[82:83], 20, v2")
    a("s_mov_b32 s78, 0")
    a.label(L2)
    a("s_add_u32 s79, s77, s78")
    ld_qk(kb[0], kb[1], SRD_KV, 79, False)
    a("s_mov_b64 exec, s[82:83]")
    a(f"buffer_load_dwordx4 v[{vb[0]}:{vb[0]+3}], v6, s[{SRD_KV}:{SRD_KV+3}], s79 offen offset:1280{SC}")
    a(f"buffer_load_dwordx4 v[{vb[1]}:{vb[1]+3}], v6, s[{SRD_KV}:{SRD_KV+3}], s79 offen offset:1920{SC}")
    a("s_mov_b64 exec, -1")
    a("s_waitcnt vmcnt(0)")
    qk1(a, SA, kb); qk2(a, SA, kb)
    a.nop(12)
    for x in exps(SA): a(x)
    a("s_nop 0")
    for i in range(0, 16, 2): a(cvt(SA, i))
    a("s_nop 1")
    pv(a, vb[0], P0); pv(a, vb[1], P1)
    a(f"s_add_u32 s78, s78, {KVT}")
    a(f"s_cmp_lt_u32 s78, {64*KVT}")
    a(f"s_cbranch_scc1 {L2}")
    a.nop(12)
    a(f"s_branch {L_epi}")
    a.label(L_fin)
    stamp(a, 26)
    retile_producer_ids(a)
    wait_flags(a, [240, 241, 242], 5)
    a("s_waitcnt vmcnt(0)")
    a("s_barrier")
    a("s_lshr_b32 s71, s2, 5")
    a("s_lshl_b32 s71, s71, 5")
    a(f"s_add_u32 s71, s71, s{S_HEAD}")
    signal(a, 2, 71)
    stamp(a, 27)

RT, RTP = 136, 160
def retile_role(a, Lgu, Ld, Lo, Lnone):
    a(f"s_lshl_b32 s84, s{S_WAVE}, 8")
    a("s_add_u32 s84, s84, s2")
    a("s_cmp_lt_u32 s84, 1280")
    a(f"s_cbranch_scc1 {Lgu}")
    a("s_cmp_lt_u32 s84, 1664")
    a(f"s_cbranch_scc1 {Ld}")
    a("s_cmp_lt_u32 s84, 1824")
    a(f"s_cbranch_scc1 {Lo}")
    a(f"s_branch {Lnone}")
def patterns(a, n, lanes, pitch):
    for p in range(n):
        a(f"v_add_u32 v{RT}, {64*p}, v0")
        vdiv_small(a, RT+1, RT, lanes)
        a(f"v_mul_u32_u24 v{RT+2}, {lanes}, v{RT+1}")
        a(f"v_sub_u32 v{RT+2}, v{RT}, v{RT+2}")
        a(f"v_mul_u32_u24 v{RT+1}, {pitch}, v{RT+1}")
        a(f"v_lshl_add_u32 v{RTP+p}, v{RT+2}, 4, v{RT+1}")
def retile_loads(a):
    Lgu, Ld, Lo, Ln = a.uid("rt_gu"), a.uid("rt_d"), a.uid("rt_o"), a.uid("rt_n")
    retile_role(a, Lgu, Ld, Lo, Ln)
    a.label(Lgu)
    patterns(a, 3, 12, 3072)
    a("s_and_b32 s85, s84, 1")
    a("s_lshr_b32 s86, s84, 1")
    divmod_const(a, 87, 88, 86, 40)
    a("s_cmp_eq_u32 s85, 0")
    a(f"s_cselect_b32 s56, s{P_WG}, s{P_WU}")
    a(f"s_cselect_b32 s57, s{P_WG+1}, s{P_WU+1}")
    a(f"s_mov_b32 s58, {hex(640*1536*2)}")
    a("s_mov_b32 s59, 0x20000")
    a("s_mul_i32 s89, s88, 49152")
    a("s_mul_i32 s90, s87, 192")
    a("s_add_u32 s89, s89, s90")
    for p in range(3): a(f"buffer_load_dwordx4 v[{RT+4*p}:{RT+4*p+3}], v{RTP+p}, s[56:59], s89 offen")
    a("s_mul_i32 s90, s87, 245760")
    a("s_lshr_b32 s91, s88, 2")
    a("s_mul_i32 s91, s91, 24576")
    a("s_add_u32 s90, s90, s91")
    a("s_mul_i32 s91, s85, 12288")
    a("s_add_u32 s90, s90, s91")
    a("s_and_b32 s91, s88, 3")
    a("s_mul_i32 s91, s91, 3072")
    a("s_add_u32 s85, s90, s91")
    a(f"s_branch {Ln}")
    for L, first, per_cg, ptr, rows in ((Ld, 1280, 48, P_WD, 1536), (Lo, 1664, 20, P_WO, 640)):
        a.label(L)
        patterns(a, 5, 10, 1280)
        a(f"s_sub_u32 s86, s84, {first}")
        divmod_const(a, 87, 88, 86, per_cg)
        srd(a, 56, ptr, 0, rows*640*2)
        a("s_mul_i32 s89, s88, 40960")
        a("s_mul_i32 s90, s87, 160")
        a("s_add_u32 s89, s89, s90")
        for p in range(5): a(f"buffer_load_dwordx4 v[{RT+4*p}:{RT+4*p+3}], v{RTP+p}, s[56:59], s89 offen")
        a(f"s_mul_i32 s90, s87, {rows*160}")
        a("s_mul_i32 s91, s88, 5120")
        a("s_add_u32 s85, s90, s91")
        if L == Ld: a(f"s_branch {Ln}")
    a.label(Ln)
def retile_stores(a):
    Lgu, Ld, Lo, Ln = a.uid("rs_gu"), a.uid("rs_d"), a.uid("rs_o"), a.uid("rs_n")
    retile_role(a, Lgu, Ld, Lo, Ln)
    a.label(Lgu)
    srd(a, 56, P_WS, WS_WGU, SZ_WGU)
    for p in range(3): a(f"buffer_store_dwordx4 v[{RT+4*p}:{RT+4*p+3}], v1, s[56:59], s85 offen offset:{1024*p}{SC}")
    a(f"s_branch {Ln}")
    for L, off, size in ((Ld, WS_WD, SZ_WD), (Lo, WS_WO, SZ_WO)):
        a.label(L)
        srd(a, 56, P_WS, off, size)
        for p in range(4): a(f"buffer_store_dwordx4 v[{RT+4*p}:{RT+4*p+3}], v1, s[56:59], s85 offen offset:{1024*p}{SC}")
        a("s_add_u32 s85, s85, 4096")
        a(f"buffer_store_dwordx4 v[{RT+16}:{RT+19}], v1, s[56:59], s85 offen{SC}")
        if L == Ld: a(f"s_branch {Ln}")
    a.label(Ln)

def retile_producer_ids(a):
    a("s_and_b32 s71, s2, 7")
    a("s_lshr_b32 s72, s71, 1")
    a("s_lshl_b32 s72, s72, 2")
    a("s_lshr_b32 s74, s2, 6")
    a("s_add_u32 s72, s72, s74")
    a("s_mul_i32 s72, s72, 80")
    a("s_lshr_b32 s71, s71, 2")
    a("s_lshl_b32 s71, s71, 2")
    a("s_add_u32 s71, s71, s74")
    a("v_add_u32 v240, s72, v0")
    a("v_add_u32 v241, 64, v240")
    a("s_mul_i32 s74, s71, 48")
    a("s_sub_u32 s74, s74, 16")
    a("v_add_u32 v243, s74, v0")
    a("v_cmp_gt_u32 vcc, 16, v0")
    a("s_mul_i32 s74, s71, 20")
    a("s_add_u32 s74, s74, 128")
    a("v_cndmask_b32 v241, v243, v241, vcc")
    a("v_min_u32 v242, 19, v0")
    a("v_add_u32 v242, s74, v242")
    for r in (240, 241, 242): a(f"v_and_b32 v{r}, 255, v{r}")
```

```python
from gemm import *

def map_thin(a):
    a("s_and_b32 s71, s2, 7")
    a("s_lshr_b32 s72, s2, 3")
    a("s_and_b32 s73, s71, 3")
    a("s_lshl_b32 s73, s73, 3")
    a("s_and_b32 s74, s72, 7")
    a(f"s_add_u32 s{S_RB}, s73, s74")
    a("s_lshr_b32 s73, s71, 2")
    a("s_lshl_b32 s73, s73, 2")
    a("s_lshr_b32 s74, s72, 3")
    a(f"s_add_u32 s{S_CG}, s73, s74")

TA, TB = 20480, 16384
T_RB = 4*TA
T_RES = T_RB + 3*TB
T_TAB = T_RES + 10240
T_RED = T_TAB + 1024
T_ST = T_RED + 3072
ACC0 = 64

def thin_compute_setup(a):
    tr_lane_parts(a, 11, 12, 13)
    a("v_lshl_add_u32 v11, v3, 2, v11")
    a("v_mul_u32_u24 v11, 160, v11")
    a(f"s_cmp_eq_u32 s{S_WAVE}, 2")
    a("s_cselect_b32 s71, 0, 32")
    a("v_mul_u32_u24 v12, s71, v12")
    a("v_add_u32 v11, v11, v12")
    a("v_lshl_add_u32 v11, v13, 3, v11")
    a(f"s_lshl_b32 s71, s{S_WAVE}, 6")
    a("v_add_u32 v11, s71, v11")
    lds_addr_set(a, 4, 2, 11)

def thin_loop(a, KS, grouped_b, sb):
    if grouped_b:
        a("v_lshlrev_b32 v12, 3, v2")
        a("v_lshl_add_u32 v12, v3, 8, v12")
        a(f"v_add_u32 v12, {T_RB}, v12")
    else:
        a(f"v_add_u32 v12, {T_RB}, v1")
    lds_addr_set(a, 8, 2, 12)
    def sh(s, reg):
        o = ((s//8) % 4)*TA + (s % 8)*2560
        v0, o0 = seg(4, o); v1, o1 = seg(4, o + 1280)
        return two64(reg, v0, o0, v1, o1, True)
    def pvv(s, t, reg):
        o = ((s//8) % 3)*TB + t*8192 + (s % 8)*1024
        if grouped_b: return two64(reg, 8, o, 8, o + 512, False)
        return b128(reg, 8, o)
    compute_loop(a, KS=KS, CK=8, NU=2, P=4, acc=lambda t: ACC0+16*t, sh_regs=[32, 36, 40], pv_regs=[16, 20, 24, 28],
                 sh_reads=sh, pv_reads=pvv, swap=True, sb=sb)

def thin_loader(a, *, NC, KS, raw_pitch, n_pre_a, extra_barriers, sb, raw_res=False, tail=None):
    a(f"s_lshl_b32 s72, s{S_J}, 10")
    a("v_add_u32 v7, s72, v1")
    a(f"s_mul_i32 s77, s{S_J}, 5120")
    if raw_res:
        for p in range(5):
            a(f"v_add_u32 v8, {64*p}, v0")
            vdiv_small(a, 9, 8, 10)
            a("v_mul_u32_u24 v10, 10, v9")
            a("v_sub_u32 v10, v8, v10")
            a("v_mul_u32_u24 v9, 1280, v9")
            a(f"v_lshl_add_u32 v{16+p}, v10, 4, v9")
    a(f"s_mul_i32 s73, s{S_CG}, {KS*16*160}")
    a("s_add_u32 s73, s73, s77")
    a(f"s_lshl_b32 s74, s{S_RB}, 1")
    a(f"s_mul_i32 s74, s74, {KS*1024}")
    def a_issue(c):
        for p in range(5):
            dma(a, 77, (c % 4)*TA + p*1024, 1, SRD_A, 73, c*TA + p*1024, True)
        return 5
    def b_issue(c):
        for n in range(4):
            tb, hl = divmod(n, 2)
            dma(a, 72, T_RB + (c % 3)*TB + n*4096, 7, SRD_B, 74, tb*KS*1024 + c*8192 + hl*4096, True)
        return 4
    def residual(vq):
        L = a.uid("res")
        if raw_res:
            a(f"s_cmp_ge_u32 s{S_J}, 2")
            a(f"s_cbranch_scc1 {L}")
            a(f"s_lshl_b32 s78, s{S_RB}, 6")
            a(f"s_lshl_b32 s79, s{S_J}, 5")
            a("s_add_u32 s78, s78, s79")
            a("s_mul_i32 s78, s78, 1280")
            a(f"s_mul_i32 s79, s{S_CG}, 160")
            a("s_add_u32 s78, s78, s79")
            for p in range(5):
                a(f"s_add_u32 m0, s77, {T_RES + p*1024}")
                a("s_nop 0")
                a(f"buffer_load_dwordx4 v{16+p}, s[{SRD_E1}:{SRD_E1+3}], s78 offen lds")
            a.label(L)
            return
        a(f"s_lshl_b32 s78, s{S_RB}, 1")
        a("s_mul_i32 s78, s78, 40960")
        a(f"s_mul_i32 s79, s{S_CG}, 5120")
        a("s_add_u32 s78, s78, s79")
        for n in range(3):
            if n == 2:
                a(f"s_cmp_ge_u32 s{S_J}, 2")
                a(f"s_cbranch_scc1 {L}")
            a(f"s_add_u32 s79, s{S_J}, {4*n}")
            a("s_cmp_ge_u32 s79, 5")
            a("s_cselect_b32 s80, 35840, 0")
            a("s_lshl_b32 s79, s79, 10")
            a(f"s_add_u32 m0, s79, {T_RES}")
            a("s_add_u32 s79, s79, s80")
            a("s_add_u32 s79, s79, s78")
            a(f"buffer_load_dwordx4 v1, s[{SRD_E1}:{SRD_E1+3}], s79 offen{SC} lds")
        a.label(L)
    plain_loader(a, NC=NC, a_issue=a_issue, b_issue=b_issue, n_pre_a=n_pre_a, after_pre=residual,
                 deps=lambda: a("s_barrier"), extra_barriers=extra_barriers, sb=sb, tail=tail)

def table_wave(a, vecs, plus_one):
    n = len(vecs)
    a(f"v_min_u32 v4, {20*n-1}, v0")
    vdiv_small(a, 5, 4, 20)
    a("v_mul_u32_u24 v6, 20, v5")
    a("v_sub_u32 v6, v4, v6")
    a(f"v_add_u32 v7, {vecs[0]}, v5")
    a("v_mul_u32_u24 v7, 160, v7")
    a("v_add_u32 v7, v7, v6")
    a(f"s_mul_i32 s71, s{S_CG}, 20")
    a("v_add_u32 v7, s71, v7")
    a("v_lshlrev_b32 v7, 4, v7")
    a("v_mov_b32 v15, v7")
    a("v_mul_u32_u24 v7, 320, v5")
    a("v_lshl_add_u32 v7, v6, 4, v7")
    a(f"v_add_u32 v7, {T_TAB}, v7")
    a("s_barrier")
    a("s_barrier")
    poll_granules(a, [f"buffer_load_dwordx4 v[8:11], v15, s[{SRD_M}:{SRD_M+3}], 0 offen{SC}"], [10], "tab")
    unpack4(a, 12, 8)
    if plus_one is not None:
        for j in range(4): a(f"v_mov_b32 v{16+j}, v{12+j}")
        a(f"v_cmp_eq_u32 vcc, {plus_one}, v5")
        one_plus_round(a, 16)
        for j in range(4): a(f"v_cndmask_b32 v{12+j}, v{12+j}, v{16+j}, vcc")
    a("ds_write_b128 v7, v[12:15]")
    a("s_waitcnt lgkmcnt(0)")

def read_table(a, dst, k):
    for g in range(4): a(f"ds_read_b128 v[{dst+4*g}:{dst+4*g+3}], v13 offset:{320*k + 32*g}")
def epi_setup(a):
    a(f"s_lshl_b32 s71, s{S_WAVE}, 7")
    a(f"s_add_u32 s71, s71, {T_TAB}")
    a("v_lshl_add_u32 v13, v3, 4, s71")
    a(f"s_lshl_b32 s71, s{S_WAVE}, 11")
    a(f"s_add_u32 s71, s71, {T_RES}")
    a("v_add_u32 v14, s71, v1")
def read_residual_raw(a, XR):
    a("v_mul_u32_u24 v14, 160, v2")
    a("v_lshl_add_u32 v14, v3, 3, v14")
    a(f"s_lshl_b32 s71, s{S_WAVE}, 6")
    a(f"s_add_u32 s71, s71, {T_RES}")
    a("v_add_u32 v14, s71, v14")
    for u in range(2):
        for g in range(4):
            a(f"ds_read_b64 v[{XR+8*u+2*g}:{XR+8*u+2*g+1}], v14 offset:{u*5120 + 16*g}")
def read_residual(a, XR):
    for u in range(2):
        for tp in range(2):
            a(f"ds_read_b128 v[{XR+8*u+4*tp}:{XR+8*u+4*tp+3}], v14 offset:{u*5120 + tp*1024}")

def touch_ffn_weights(a):
    if not OPT345["touch"]:
        code_touch(a, 7)
        return
    a("v_min_u32 v30, 59, v0")
    a("v_lshlrev_b32 v30, 7, v30")
    a(f"s_mul_i32 s84, s{S_J}, 7680")
    a("s_lshr_b32 s85, s2, 3")
    a("s_and_b32 s85, s85, 7")
    a("s_mul_i32 s85, s85, 30720")
    a("s_add_u32 s84, s84, s85")
    a("s_and_b32 s86, s2, 7")
    a("s_lshr_b32 s86, s86, 1")
    a("s_lshl_b32 s86, s86, 2")
    a("s_lshr_b32 s87, s2, 6")
    a("s_add_u32 s86, s86, s87")
    a("s_mul_i32 s86, s86, 245760")
    a("s_add_u32 s86, s86, s84")
    srd(a, 88, P_WS, WS_WGU, SZ_WGU)
    a("buffer_load_dword v31, v30, s[88:91], s86 offen")
    a(f"s_mul_i32 s86, s{S_CG}, 245760")
    a("s_add_u32 s86, s86, s84")
    srd(a, 88, P_WS, WS_WD, SZ_WD)
    a("buffer_load_dword v32, v30, s[88:91], s86 offen")
    code_touch(a, 7)

OPT345 = {"touch": False}
def gen_p3(a):
    map_thin(a)
    srd(a, SRD_A, P_WS, WS_WO, SZ_WO)
    srd(a, SRD_B, P_WS, WS_O, SZ_O)
    srd(a, SRD_M, P_WS, WS_MODG, SZ_MODG)
    srd(a, SRD_E1, P_X, 0, S*D*2)
    lane_consts(a)
    L_comp, L_w3, L_fin = a.uid("P3_comp"), a.uid("P3_w3"), a.uid("P3_fin")
    a(f"s_cmp_lt_u32 s{S_WAVE}, 4")
    a(f"s_cbranch_scc1 {L_comp}")
    a(f"s_sub_u32 s{S_J}, s{S_WAVE}, 4")
    thin_loader(a, NC=5, KS=40, raw_pitch=0, n_pre_a=3, extra_barriers=2, sb=28, raw_res=True, tail=lambda: touch_ffn_weights(a))
    a(f"s_branch {L_fin}")
    a.label(L_comp)
    a(f"s_cmp_eq_u32 s{S_WAVE}, 3")
    a(f"s_cbranch_scc1 {L_w3}")
    srd(a, SRD_E0, P_WS, WS_X1, SZ_X1)
    srd(a, SRD_E2, P_WS, WS_H2, SZ_H2)
    thin_compute_setup(a)
    a(f"s_lshr_b32 s71, s{S_RB}, 2")
    a("s_lshl_b32 s71, s71, 5")
    a("v_add_u32 v240, s71, v2")
    wait_flags(a, [240], 2)
    a("s_barrier")
    thin_loop(a, 40, True, 28)
    GA, XR, G2, S2 = 112, 96, 128, 144
    epi_setup(a)
    read_table(a, GA, 0); read_residual_raw(a, XR)
    a(f"s_mul_i32 s73, s{S_CG}, 5")
    a(f"s_lshl_b32 s74, s{S_WAVE}, 1")
    a("s_add_u32 s73, s73, s74")
    a("s_lshl_b32 s73, s73, 10")
    a(f"s_lshl_b32 s74, s{S_RB}, 1")
    a("s_mul_i32 s74, s74, 40960")
    a("s_add_u32 s73, s73, s74")
    a("s_waitcnt lgkmcnt(0)")
    stamp(a, 50)
    a.nop(2)
    def per_half(u, body):
        L = a.uid("P3_e")
        for tp in range(2):
            if tp == 1:
                a(f"s_cmp_eq_u32 s{S_WAVE}, 2")
                a(f"s_cbranch_scc1 {L}")
            body(tp)
        a.label(L)
    for u in range(2):
        acc = ACC0 + 16*u
        sm, sq = 44 + 2*u, 45 + 2*u
        a(f"v_mov_b32 v{sm}, 0")
        a(f"v_mov_b32 v{sq}, 0")
        def body(tp):
            for gg in range(2):
                g = 2*tp + gg
                for jj in range(2):
                    x = XR + 8*u + 2*g + jj
                    a(f"v_lshlrev_b32 v48, 16, v{x}")
                    a(f"v_and_b32 v49, 0xffff0000, v{x}")
                    r = acc + 4*g + 2*jj
                    a(f"v_fma_f32 v{r}, v{GA+4*g+2*jj}, v{r}, v48")
                    a(f"v_fma_f32 v{r+1}, v{GA+4*g+2*jj+1}, v{r+1}, v49")
            p = 160 + 4*(2*u + tp)
            for j in range(4): a(f"v_cvt_pk_bf16_f32 v{p+j}, v{acc+8*tp+2*j}, v{acc+8*tp+2*j+1}")
            for j in range(4):
                a(f"v_lshlrev_b32 v{acc+8*tp+2*j}, 16, v{p+j}")
                a(f"v_and_b32 v{acc+8*tp+2*j+1}, 0xffff0000, v{p+j}")
            for i in range(8):
                a(f"v_add_f32 v{sm}, v{sm}, v{acc+8*tp+i}")
                a(f"v_fmac_f32 v{sq}, v{acc+8*tp+i}, v{acc+8*tp+i}")
        per_half(u, body)
        stamp(a, 51 + u)
    a(f"s_lshl_b32 s75, s{S_WAVE}, 9")
    a(f"s_add_u32 s75, s75, {T_RED}")
    a("v_lshl_add_u32 v15, v0, 3, s75")
    a("ds_write_b64 v15, v[44:45]")
    a("ds_write_b64 v15, v[46:47] offset:1536")
    read_table(a, S2, 1); read_table(a, G2, 2)
    a("s_waitcnt lgkmcnt(0)")
    stamp(a, 32)
    a("s_barrier")
    a("s_barrier")
    stamp(a, 33)
    a("v_lshlrev_b32 v15, 3, v2")
    a(f"v_add_u32 v15, {T_ST}, v15")
    a("ds_read_b64 v[44:45], v15")
    a("ds_read_b64 v[46:47], v15 offset:256")
    a("s_waitcnt lgkmcnt(0)")
    for u in range(2):
        acc = ACC0 + 16*u
        a(f"s_add_u32 s75, s73, {u*40960}")
        def body(tp):
            for i in range(8):
                r = acc + 8*tp + i
                a(f"v_fma_f32 v{r}, v{r}, v{44+2*u}, v{45+2*u}")
            for i in range(8):
                r = acc + 8*tp + i
                a(f"v_fma_f32 v{r}, v{r}, v{G2+8*tp+i}, v{S2+8*tp+i}")
            p = 16 + 4*(2*u + tp)
            for j in range(4): a(f"v_cvt_pk_bf16_f32 v{p+j}, v{acc+8*tp+2*j}, v{acc+8*tp+2*j+1}")
            a(f"buffer_store_dwordx4 v[{p}:{p+3}], v1, s[{SRD_E2}:{SRD_E2+3}], s75 offen offset:{1024*tp}{SC}")
            x = 160 + 4*(2*u + tp)
            a(f"buffer_store_dwordx4 v[{x}:{x+3}], v1, s[{SRD_E0}:{SRD_E0+3}], s75 offen offset:{1024*tp}{SC}")
        per_half(u, body)
    a(f"s_branch {L_fin}")
    a.label(L_w3)
    table_wave(a, [2, 3, 4], 2)
    for _ in range(4): a("s_barrier")
    stamp(a, 50)
    a("s_barrier")
    stamp(a, 51)
    srd(a, SRD_E0, P_WS, WS_STAT, SZ_STAT)
    a("v_mul_u32_u24 v13, 1536, v3")
    a("v_lshl_add_u32 v13, v2, 3, v13")
    a(f"v_add_u32 v13, {T_RED}, v13")
    for T in range(3):
        for h in range(2):
            r = 48 + 2*(2*T+h)
            a(f"ds_read_b64 v[{r}:{r+1}], v13 offset:{T*512 + h*256}")
    a("s_waitcnt lgkmcnt(0)")
    for i in range(1, 6):
        a(f"v_add_f32 v48, v48, v{48+2*i}")
        a(f"v_add_f32 v49, v49, v{49+2*i}")
    a(f"v_mov_b32 v50, s{S_NONCE}")
    a("v_mov_b32 v51, 0")
    a(f"s_lshl_b32 s75, s{S_RB}, 13")
    a(f"s_lshl_b32 s76, s{S_CG}, 10")
    a("s_add_u32 s76, s76, s75")
    a(f"buffer_store_dwordx4 v[48:51], v1, s[{SRD_E0}:{SRD_E0+3}], s76 offen{SC}")
    a(f"s_add_u32 s76, s75, 4096")
    def loads(base):
        return [f"buffer_load_dwordx4 v[{base+4*c}:{base+3+4*c}], v1, s[{SRD_E0}:{SRD_E0+3}], s{75 if c < 4 else 76} offen offset:{1024*(c % 4)}{SC}" for c in range(8)]
    stamp(a, 52)
    if OPTC["stat_pre"]: a(f"s_sleep {OPTC['stat_pre']}")
    poll_granules(a, loads(64), [66+4*c for c in range(8)], "P3_stat", sleep=OPTC["stat_sleep"])
    stamp(a, 32)
    if CTX.instrument is True: a(f"v_writelane_b32 v255, s94, 53")
    for c in range(1, 8):
        a(f"v_add_f32 v64, v64, v{64+4*c}")
        a(f"v_add_f32 v65, v65, v{65+4*c}")
    a(f"v_mul_f32 v64, {fl(1.0/640)}, v64")
    a(f"v_mul_f32 v65, {fl(1.0/640)}, v65")
    a("v_fma_f32 v65, -v64, v64, v65")
    a("v_max_f32 v65, 0, v65")
    a(f"v_add_f32 v65, {fl(1e-5)}, v65")
    a("v_rsq_f32 v66, v65")
    a("s_nop 0")
    a("v_mul_f32 v67, v64, v66")
    a("v_sub_f32 v67, 0, v67")
    a("v_lshlrev_b32 v13, 3, v0")
    a(f"v_add_u32 v13, {T_ST}, v13")
    a("ds_write_b64 v13, v[66:67]")
    a("s_waitcnt lgkmcnt(0)")
    a("s_barrier")
    a.label(L_fin)
    stamp(a, 34)
    a("s_waitcnt vmcnt(0)")
    a("s_barrier")
    a(f"s_lshl_b32 s71, s{S_RB}, 3")
    a(f"s_add_u32 s71, s71, s{S_CG}")
    signal(a, 3, 71)
    stamp(a, 35)

def gen_p5(a):
    map_thin(a)
    srd(a, SRD_A, P_WS, WS_WD, SZ_WD)
    srd(a, SRD_B, P_WS, WS_HH, SZ_HH)
    srd(a, SRD_M, P_WS, WS_MODG, SZ_MODG)
    srd(a, SRD_E1, P_WS, WS_X1, SZ_X1)
    lane_consts(a)
    L_comp, L_w3, L_fin = a.uid("P5_comp"), a.uid("P5_w3"), a.uid("P5_fin")
    a(f"s_cmp_lt_u32 s{S_WAVE}, 4")
    a(f"s_cbranch_scc1 {L_comp}")
    a(f"s_sub_u32 s{S_J}, s{S_WAVE}, 4")
    thin_loader(a, NC=12, KS=96, raw_pitch=0, n_pre_a=3, extra_barriers=0, sb=44)
    a(f"s_branch {L_fin}")
    a.label(L_comp)
    a(f"s_cmp_eq_u32 s{S_WAVE}, 3")
    a(f"s_cbranch_scc1 {L_w3}")
    srd(a, SRD_E0, P_OUT, 0, S*D*2)
    thin_compute_setup(a)
    a(f"s_lshr_b32 s71, s{S_RB}, 1")
    a("s_lshl_b32 s71, s71, 4")
    a("v_and_b32 v240, 15, v0")
    a("v_add_u32 v240, s71, v240")
    wait_flags(a, [240], 4)
    a("s_barrier")
    thin_loop(a, 96, False, 44)
    GB, XR = 112, 96
    epi_setup(a)
    read_table(a, GB, 0); read_residual(a, XR)
    a("v_mul_u32_u24 v14, 1280, v2")
    a("v_lshl_add_u32 v14, v3, 3, v14")
    a(f"s_mul_i32 s72, s{S_CG}, 160")
    a(f"s_lshl_b32 s73, s{S_WAVE}, 6")
    a("s_add_u32 s72, s72, s73")
    a(f"s_mul_i32 s73, s{S_RB}, {64*1280}")
    a("s_add_u32 s72, s72, s73")
    a("s_waitcnt lgkmcnt(0)")
    a.nop(2)
    for u in range(2):
        acc = ACC0 + 16*u
        L = a.uid("P5_e")
        a(f"s_add_u32 s74, s72, {u*32*1280}")
        for g in range(4):
            if g == 2:
                a(f"s_cmp_eq_u32 s{S_WAVE}, 2")
                a(f"s_cbranch_scc1 {L}")
            for jj in range(2):
                x = XR + 8*u + 2*g + jj
                a(f"v_lshlrev_b32 v48, 16, v{x}")
                a(f"v_and_b32 v49, 0xffff0000, v{x}")
                r = acc + 4*g + 2*jj
                a(f"v_fma_f32 v{r}, v{GB+4*g+2*jj}, v{r}, v48")
                a(f"v_fma_f32 v{r+1}, v{GB+4*g+2*jj+1}, v{r+1}, v49")
            p = 16 + 2*((4*u+g) % 8)
            a(f"v_cvt_pk_bf16_f32 v{p}, v{acc+4*g}, v{acc+4*g+1}")
            a(f"v_cvt_pk_bf16_f32 v{p+1}, v{acc+4*g+2}, v{acc+4*g+3}")
            a(f"buffer_store_dwordx2 v[{p}:{p+1}], v14, s[{SRD_E0}:{SRD_E0+3}], s74 offen offset:{16*g}")
        a.label(L)
    a(f"s_branch {L_fin}")
    a.label(L_w3)
    table_wave(a, [5], None)
    for _ in range(11): a("s_barrier")
    a.label(L_fin)
    stamp(a, 48)

SLOT4 = 24640
P4_RB = 4*SLOT4
def gen_p4(a):
    a("s_and_b32 s71, s2, 7")
    a("s_lshr_b32 s72, s2, 3")
    a("s_and_b32 s73, s71, 1")
    a("s_lshl_b32 s73, s73, 3")
    a("s_and_b32 s74, s72, 7")
    a(f"s_add_u32 s{S_RB}, s73, s74")
    a("s_lshr_b32 s73, s71, 1")
    a("s_lshl_b32 s73, s73, 2")
    a("s_lshr_b32 s74, s72, 3")
    a(f"s_add_u32 s{S_CG}, s73, s74")
    srd(a, SRD_A, P_WS, WS_WGU, SZ_WGU)
    srd(a, SRD_B, P_WS, WS_H2, SZ_H2)
    lane_consts(a)
    L_comp, L_fin = a.uid("P4_comp"), a.uid("P4_fin")
    a(f"s_cmp_lt_u32 s{S_WAVE}, 4")
    a(f"s_cbranch_scc1 {L_comp}")
    a(f"s_sub_u32 s{S_J}, s{S_WAVE}, 4")
    a(f"s_lshl_b32 s72, s{S_J}, 10")
    a("v_add_u32 v7, s72, v1")
    a(f"s_mul_i32 s77, s{S_J}, 3072")
    a(f"s_mul_i32 s73, s{S_CG}, 245760")
    a("s_add_u32 s73, s73, s77")
    a(f"s_lshl_b32 s74, s{S_RB}, 2")
    a("s_mul_i32 s74, s74, 40960")
    def a_issue(c):
        for m in range(2):
            for p in range(3): dma(a, 77, (c % 4)*SLOT4 + m*12320 + p*1024, 1, SRD_A, 73, c*24576 + m*12288 + p*1024, True)
        return 6
    def b_issue(c):
        for tb in range(4): dma(a, 72, P4_RB + (c % 3)*16384 + tb*4096, 7, SRD_B, 74, tb*40960 + c*4096, True)
        return 4
    plain_loader(a, NC=10, a_issue=a_issue, b_issue=b_issue, n_pre_a=3, after_pre=lambda vq: None,
                 deps=lambda: a("s_barrier"), sb=36)
    a(f"s_branch {L_fin}")
    a.label(L_comp)
    srd(a, SRD_E1, P_WS, WS_HH, SZ_HH)
    tr_lane_parts(a, 8, 9, 10)
    a("v_lshl_add_u32 v8, v3, 2, v8")
    a("v_mul_u32_u24 v8, 192, v8")
    a("v_mul_u32_u24 v9, 12320, v9")
    a("v_add_u32 v8, v8, v9")
    a("v_lshl_add_u32 v8, v10, 3, v8")
    lds_addr_set(a, 4, 2, 8)
    a(f"s_lshl_b32 s71, s{S_WAVE}, 12")
    a(f"s_add_u32 s71, s71, {P4_RB}")
    a("v_add_u32 v6, s71, v1")
    ACC = 64
    def pv_reads(s, t, reg):
        o = ((s//4) % 4)*SLOT4 + (s % 4)*3072 + t*32
        v0, o0 = seg(4, o); v1, o1 = seg(4, o + 1536)
        return two64(reg, v0, o0, v1, o1, True)
    a(f"s_lshl_b32 s71, s{S_RB}, 4")
    a("v_and_b32 v240, 15, v0")
    a("v_add_u32 v240, s71, v240")
    wait_flags(a, [240], 3)
    a("s_barrier")
    compute_loop(a, KS=40, CK=4, NU=6, P=6, acc=lambda t: ACC+16*t, sh_regs=[40, 44], pv_regs=[16, 20, 24, 28, 32, 36],
                 sh_reads=lambda s, reg: b128(reg, 6, ((s//4) % 3)*16384 + (s % 4)*1024), pv_reads=pv_reads, swap=False, sb=36)
    a(f"s_lshl_b32 s72, s{S_RB}, 2")
    a(f"s_add_u32 s72, s72, s{S_WAVE}")
    a("s_mul_i32 s72, s72, 98304")
    a(f"s_mul_i32 s73, s{S_CG}, 6144")
    a("s_add_u32 s72, s72, s73")
    a.nop(8)
    for T in range(6):
        g = ACC + 16*T; u = g + 8
        for i in range(8): a(f"v_mul_f32 v{g+i}, {fl(-LOG2E)}, v{g+i}")
        for i in range(8): a(f"v_exp_f32 v{g+i}, v{g+i}")
        for i in range(8): a(f"v_add_f32 v{g+i}, 1.0, v{g+i}")
        for i in range(8): a(f"v_rcp_f32 v{g+i}, v{g+i}")
        for i in range(8): a(f"v_mul_f32 v{g+i}, v{g+i}, v{u+i}")
        p = 16 + 4*(T % 4)
        for j in range(4): a(f"v_cvt_pk_bf16_f32 v{p+j}, v{g+2*j}, v{g+2*j+1}")
        a(f"s_add_u32 s73, s72, {T*1024}")
        a(f"buffer_store_dwordx4 v[{p}:{p+3}], v1, s[{SRD_E1}:{SRD_E1+3}], s73 offen{SC}")
    a.label(L_fin)
    stamp(a, 41)
    a("s_waitcnt vmcnt(0)")
    a("s_barrier")
    a(f"s_lshl_b32 s71, s{S_RB}, 4")
    a(f"s_add_u32 s71, s71, s{S_CG}")
    signal(a, 4, 71)
    stamp(a, 42)
```

```python
import sys
from common import *
import p01, p2, p345

NAME = "adaLN_cond__mha_block__glu_gated_glu__prompt"
REF = open(f"cdna_kernels/{NAME}.s.ref").read()
HEADER = REF.split("; Override launch geometry")[0]
KNAME = NAME + "_kernel"

def ts_setup(a):
    srd(a, 4, P_WS, WS_TS, SZ_TS)
    a("s_lshl_b32 s8, s2, 3")
    a(f"s_add_u32 s8, s8, s{S_WAVE}")
    a("s_lshl_b32 s8, s8, 8")
    a("v_mov_b32 v255, 0")
    a("s_nop 0")
    a("v_writelane_b32 v255, s10, 62")
    a("v_writelane_b32 v255, s14, 0")
    stamp(a, 58)
def ts_end(a):
    stamp(a, 60)
    a("s_waitcnt vmcnt(0)")
    stamp(a, 61)
    a("s_memrealtime s[10:11]")
    a("s_waitcnt lgkmcnt(0)")
    a("s_mov_b64 exec, -1")
    a("v_writelane_b32 v255, s10, 63")
    a("v_mbcnt_lo_u32_b32 v4, -1, 0")
    a("v_mbcnt_hi_u32_b32 v4, -1, v4")
    a("v_lshlrev_b32 v4, 2, v4")
    a("buffer_store_dword v255, v4, s[4:7], s8 offen")

def dbg_out(a):
    L = a.uid("dbg")
    a("s_cmp_lg_u32 s2, 37")
    a(f"s_cbranch_scc1 {L}")
    a(f"s_cmp_lg_u32 s{S_WAVE}, 0")
    a(f"s_cbranch_scc1 {L}")
    srd(a, 44, P_DBG, 0, 256)
    for k, idx in enumerate([1, 3, 4, 9, 10, 15, 16, 19, 27, 29, 35, 37, 42, 45, 60, 61]):
        a(f"v_readlane_b32 s46, v255, {idx}") if False else None
    a("v_readlane_b32 s48, v255, 0")
    a("v_mov_b32 v6, 0")
    for k, idx in enumerate([1, 3, 4, 9, 10, 15, 16, 19, 27, 29, 35, 37, 42, 45, 60, 61]):
        a(f"v_readlane_b32 s49, v255, {idx}")
        a("s_nop 3")
        a("s_sub_u32 s49, s49, s48")
        a(f"v_writelane_b32 v6, s49, {k}")
    a("v_readlane_b32 s48, v255, 62")
    a("v_readlane_b32 s49, v255, 63")
    a("s_nop 3")
    a("s_sub_u32 s49, s49, s48")
    a("v_writelane_b32 v6, s49, 0")
    a("v_mbcnt_lo_u32_b32 v4, -1, 0")
    a("v_mbcnt_hi_u32_b32 v4, -1, v4")
    a("v_lshlrev_b32 v4, 2, v4")
    a("buffer_store_dword v6, v4, s[44:47], 0 offen")
    a.label(L)

def build(instrument=False, dbg=False):
    CTX.persistent, CTX.instrument = True, instrument
    a = Asm()
    fin = "L_fin"
    if instrument:
        a("s_memrealtime s[10:11]")
        a("s_memtime s[14:15]")
    prologue(a, 256, fin)
    code_touch(a, 7)
    if instrument: ts_setup(a)
    p01.gen_p01(a)
    p2.gen_p2(a)
    p345.gen_p3(a)
    p345.gen_p4(a)
    p345.gen_p5(a)
    kernel_publish_nonce(a)
    if instrument: ts_end(a)
    if dbg: dbg_out(a)
    a.label(fin)
    a("s_endpgm")
    problems = check_hazards(a.lines, KNAME)
    s = HEADER + "; @launch grid=(256,1,1) block=(512,1,1) lds=163840\n" + '.amdgcn_target "amdgcn-amd-amdhsa--gfx950"\n.text\n'
    s += kernel_text(KNAME, a) + '.section .rodata,"a"\n' + descriptor(KNAME)
    return s, problems

if __name__ == "__main__":
    if "-notlb" in sys.argv: p01.OPT01["tlb"] = False
    if "-nocode" in sys.argv: OPTC["code"] = False
    for arg in sys.argv:
        if arg.startswith("-D"):
            k, v = arg[2:].split("="); OPTC[k] = int(v)
    if "-notouch" in sys.argv: p345.OPT345["touch"] = False
    s, problems = build(instrument=("light" if "-light" in sys.argv else "-ts" in sys.argv), dbg="-dbg" in sys.argv)
    for p in problems: print("HAZARD", p)
    out = sys.argv[1] if len(sys.argv) > 1 and not sys.argv[1].startswith("-") else "pers.s"
    open(out, "w").write(s)
    print("wrote", out, len(s), "bytes;", len(problems), "hazards")
```

```python
from gemm import *

CH = 40960
ONES = 3*CH
LDS_P2 = 4*CH
Q1, Q2, CM, SA, SB, OA = 8, 12, 16, 32, 48, 64
P0, P1 = 80, 84
KB = [(88, 92), (96, 100)]
VB = [(104, 108), (112, 116)]
AK1, AK2, AV = 120, 123, 126
SRD_Q, SRD_KV, SRD_O = 44, 48, 52
S_HEAD, S_TQ = 68, 69
OPT = {"prio": 0, "sched": 1}

def exps(S): return [f"v_exp_f32 v{S+i}, v{S+i}" for i in range(16)]
def cvt(S, i): return f"v_cvt_pk_bf16_f32 v{(P0 if i < 8 else P1) + (i//2) % 4}, v{S+i}, v{S+i+1}"
def qk1(a, S, kb):  a(f"v_mfma_f32_32x32x16_bf16 v[{S}:{S+15}], v[{kb[0]}:{kb[0]+3}], v[{Q1}:{Q1+3}], v[{CM}:{CM+15}]")
def qk2(a, S, kb):  a(f"v_mfma_f32_32x32x8bf16_1k v[{S}:{S+15}], v[{kb[1]}:{kb[1]+1}], v[{Q2}:{Q2+1}], v[{S}:{S+15}]")
def pv(a, vreg, P, first=False):
    c = "0" if first else f"v[{OA}:{OA+15}]"
    a(f"v_mfma_f32_32x32x16_bf16 v[{OA}:{OA+15}], v[{vreg}:{vreg+3}], v[{P}:{P+3}], {c}")
def rdK(a, t):
    c, tl = divmod(t, 16); kb = KB[t % 2]
    a(f"ds_read_b64 v[{kb[0]}:{kb[0]+1}], v{AK1 + c % 3} offset:{tl*KVT}")
    a(f"ds_read_b64 v[{kb[0]+2}:{kb[0]+3}], v{AK1 + c % 3} offset:{tl*KVT + 512}")
    a(f"ds_read_b64 v[{kb[1]}:{kb[1]+1}], v{AK2 + c % 3} offset:{tl*KVT}")
def rdV(a, t, tp):
    c, tl = divmod(t, 16); vb = VB[t % 2]
    a(f"ds_read_b128 v[{vb[tp]}:{vb[tp]+3}], v{AV + c % 3} offset:{tl*KVT + 1280 + 640*tp}")

def deps_p2(a):
    a(f"s_mul_i32 s71, s{S_HEAD}, 20")
    a("s_lshr_b32 s72, s71, 7")
    a("s_add_u32 s71, s71, 19")
    a("s_lshr_b32 s71, s71, 7")
    a("v_min_u32 v242, 47, v0")
    a("v_lshrrev_b32 v243, 4, v242")
    a("v_mul_u32_u24 v243, 80, v243")
    a("v_and_b32 v242, 15, v242")
    a("v_add_u32 v242, v242, v243")
    a("s_lshl_b32 s72, s72, 4")
    a("s_lshl_b32 s71, s71, 4")
    a("v_add_u32 v240, s72, v242")
    a("v_add_u32 v241, s71, v242")
    wait_flags(a, [240, 241], 1)

def gen_p2(a):
    a("s_and_b32 s71, s2, 7")
    a("s_lshr_b32 s72, s2, 3")
    a("s_and_b32 s72, s72, 3")
    a("s_lshl_b32 s72, s72, 3")
    a(f"s_add_u32 s{S_HEAD}, s71, s72")
    a("s_lshr_b32 s72, s2, 5")
    a("s_lshl_b32 s72, s72, 3")
    a(f"s_add_u32 s{S_TQ}, s72, s{S_WAVE}")
    srd(a, SRD_Q, P_WS, WS_Q, SZ_Q)
    srd(a, SRD_KV, P_WS, WS_KV, SZ_KV)
    srd(a, SRD_O, P_WS, WS_O, SZ_O)
    lane_consts(a)
    vq = VmQ(a)
    if OPTC["zero_rows"]:
        a("v_and_b32 v6, 15, v0")
        a("v_mov_b32 v7, 0x1221")
        a("v_lshrrev_b32 v7, v6, v7")
        a("v_and_b32 v7, 1, v7")
        a("v_mul_u32_u24 v7, 0x3f80, v7")
        a("v_lshl_or_b32 v7, v7, 16, v7")
        for j in range(4): a(f"v_mov_b32 v{SA+j}, v7")
    else:
        for j in range(4): a(f"v_mov_b32 v{SA+j}, 0x3f803f80")
    a("v_lshrrev_b32 v6, 4, v0")
    a(f"s_lshl_b32 s74, s{S_WAVE}, 2")
    a("v_add_u32 v6, s74, v6")
    a("v_lshrrev_b32 v7, 1, v6")
    a(f"v_mul_u32_u24 v7, {KVT}, v7")
    a("v_and_b32 v6, 1, v6")
    a("v_mul_u32_u24 v6, 640, v6")
    a("v_add_u32 v7, v7, v6")
    a("v_and_b32 v6, 15, v0")
    a("v_lshl_add_u32 v7, v6, 4, v7")
    a(f"v_add_u32 v7, {ONES+1280}, v7")
    a(f"ds_write_b128 v7, v[{SA}:{SA+3}]")
    a("v_lshlrev_b32 v4, 3, v2")
    a("v_add_u32 v4, 1024, v4")
    a("v_mul_u32_u24 v6, 320, v3")
    a("v_lshl_add_u32 v6, v2, 4, v6")
    a("v_cmp_gt_u32 vcc, 28, v2")
    a("v_mov_b32 v7, 192")
    a("v_mov_b32 v14, 64")
    a("v_cndmask_b32 v7, v7, v14, vcc")
    a("v_lshlrev_b32 v14, 6, v3")
    a("v_add_u32 v7, v7, v14")
    a("v_and_b32 v7, 255, v7")
    if OPTC["zero_rows"]:
        a("v_cmp_eq_u32 vcc, 24, v2")
        a("v_add_u32 v14, 16, v7")
        a("s_nop 0")
        a("v_cndmask_b32 v7, v7, v14, vcc")
        a("v_cmp_lt_u32 vcc, 28, v2")
        a("v_add_u32 v14, 16, v7")
        a("s_nop 0")
        a("v_cndmask_b32 v7, v7, v14, vcc")
    a(f"v_add_u32 v7, {ONES}, v7")
    a("v_cmp_gt_u32 vcc, 20, v2")
    a("v_lshlrev_b32 v129, 3, v2")
    a("v_lshl_add_u32 v129, v3, 8, v129")
    for sl in range(3):
        a(f"v_add_u32 v{AK1+sl}, {sl*CH}, v129")
        a(f"v_add_u32 v{AK2+sl}, {sl*CH}, v4")
        if OPTC["zero_k2"]:
            a("v_cmp_eq_u32 s[82:83], 0, v3")
            a(f"v_mov_b32 v15, {ONES + 1280 + 16}")
            a("s_nop 0")
            a(f"v_cndmask_b32 v{AK2+sl}, v15, v{AK2+sl}, s[82:83]")
        a(f"v_add_u32 v14, {sl*CH}, v6")
        a(f"v_cndmask_b32 v{AV+sl}, v7, v14, vcc")
    a(f"s_lshl_b32 s71, s{S_HEAD}, 6")
    a(f"s_add_u32 s71, s71, s{S_TQ}")
    a(f"s_mul_i32 s76, s71, {QT}")
    a(f"s_mul_i32 s77, s{S_HEAD}, {64*KVT}")
    a(f"s_lshl_b32 s73, s{S_WAVE}, 10")
    a("v_add_u32 v5, s73, v1")
    a(f"v_mov_b32 v{Q2}, 0")
    a(f"v_mov_b32 v{Q2+1}, 0")
    retile_setup(a)
    deps_p2(a); a("s_barrier")
    stamp(a, 16)
    def ld_qk(r1, r2, srd_, soff, mask2):
        a(f"buffer_load_dwordx2 v[{r1}:{r1+1}], v129, s[{srd_}:{srd_+3}], s{soff} offen{SC}")
        a(f"buffer_load_dwordx2 v[{r1+2}:{r1+3}], v129, s[{srd_}:{srd_+3}], s{soff} offen offset:512{SC}")
        if mask2: exec_lo32(a)
        a(f"buffer_load_dwordx2 v[{r2}:{r2+1}], v4, s[{srd_}:{srd_+3}], s{soff} offen{SC}")
        if mask2: exec_all(a)
    ld_qk(Q1, Q2, SRD_Q, 76, True); vq.issue("Q", 3)
    ld_qk(KB[0][0], KB[0][1], SRD_KV, 77, False); vq.issue("Q", 3)
    def dmac(c, lo=0, hi=5):
        for n in range(lo, hi):
            a(f"s_add_u32 m0, s73, {(c % 3)*CH + n*8192}")
            a(f"s_add_u32 s74, s77, {c*CH + n*8192}")
            a(f"buffer_load_dwordx4 v5, s[{SRD_KV}:{SRD_KV+3}], s74 offen{SC} lds")
            vq.issue(("C", c, n))
    if OPTC["fast_start"]:
        dmac(0, 0, 1)
        dmac(0, 1, 5)
    else: dmac(0)
    def max16(dst, S, init=True):
        if init: a(f"v_max3_f32 v{dst}, v{S}, v{S+1}, v{S+2}")
        else:
            a(f"v_max3_f32 v{dst}, v{dst}, v{S}, v{S+1}")
            a(f"v_max_f32 v{dst}, v{dst}, v{S+2}")
        for i in range(3, 15, 2): a(f"v_max3_f32 v{dst}, v{dst}, v{S+i}, v{S+i+1}")
        a(f"v_max_f32 v{dst}, v{dst}, v{S+15}")
    def set_cm(m):
        a(f"v_mov_b32 v14, v{m}")
        a("s_nop 1")
        a(f"v_permlane32_swap_b32 v{m}, v14")
        a("s_nop 1")
        a(f"v_max_f32 v{m}, v{m}, v14")
        for i in range(16): a(f"v_sub_f32 v{CM+i}, 0, v{m}")
    vq.wait("Q")
    stamp(a, 17)
    a(f"v_mfma_f32_32x32x16_bf16 v[{SA}:{SA+15}], v[{KB[0][0]}:{KB[0][0]+3}], v[{Q1}:{Q1+3}], 0")
    qk2(a, SA, KB[0])
    dmac(1)
    a.nop(2)
    max16(15, SA)
    set_cm(15)
    stamp(a, 18)
    vq.wait(("C", 0, 0) if OPTC["fast_start"] else ("C", 0, 4))
    a("s_waitcnt lgkmcnt(0)")
    a("s_barrier")
    stamp(a, 19)
    if OPT["prio"]:
        L = a.uid("prio")
        a(f"s_cmp_lt_u32 s{S_WAVE}, 4")
        a(f"s_cbranch_scc1 {L}")
        a("s_setprio 1")
        a.label(L)
    rdK(a, 0); rdK(a, 1); rdV(a, 0, 0); rdV(a, 0, 1)
    if not OPTC["spread"]: dmac(2)
    a("s_waitcnt lgkmcnt(5)")
    qk1(a, SA, KB[0]); qk2(a, SA, KB[0])
    a.nop(8)
    NT = 64
    for t in range(NT):
        S = SA if t % 2 == 0 else SB
        SN = SB if t % 2 == 0 else SA
        nxt = t + 1 < NT
        if t == 1 and OPTC["fast_start"]:
            vq.wait(("C", 0, 4))
            a("s_barrier")
        if t % 16 == 14 and t + 2 < NT:
            c1 = t // 16 + 1
            if c1 == 1: vq.wait(("C", 1, 4))
            else: vq.drain()
            a("s_barrier")
            if c1 == 3:
                signal(a, 5, 2)
                code_touch(a, 7)
        side = None
        if OPTC["spread"]:
            if t < 5: side = lambda: dmac(2, t, t+1)
            elif 15 <= t < 20: side = lambda: retile_load(a, t-15)
            elif 31 <= t < 36: side = lambda: dmac(3, t-31, t-30)
            elif 36 <= t < 41: side = lambda: retile_store(a, t-36)
        else:
            if t == 14:
                for p in range(5): retile_load(a, p)
            if t == 30:
                dmac(3)
                for p in range(5): retile_store(a, p)
        e = exps(S); c = {i: cvt(S, i) for i in range(0, 16, 2)}
        a("s_waitcnt lgkmcnt(2)")
        if nxt: qk1(a, SN, KB[(t+1) % 2])
        if t + 2 < NT: rdK(a, t+2)
        elif nxt: a("s_nop 1")
        else: a.nop(2)
        for x in [e[0], e[1], e[2], c[0], e[3], e[4]]: a(x)
        if t > 0: pv(a, VB[(t-1) % 2][1], P1, first=False)
        if side: side()
        if nxt: rdV(a, t+1, 0); rdV(a, t+1, 1)
        for x in [c[2], e[5], e[6], c[4], e[7], e[8]]: a(x)
        if nxt: qk2(a, SN, KB[(t+1) % 2])
        for x in [c[6], e[9], e[10], c[8], e[11], e[12]]: a(x)
        n_out = (3 if t + 2 < NT else 0) + (2 if nxt else 0) + 1
        a(f"s_waitcnt lgkmcnt({n_out})")
        pv(a, VB[t % 2][0], P0, first=(t == 0))
        for x in [c[10], e[13], e[14], e[15], c[12], c[14]]: a(x)
    a("s_waitcnt lgkmcnt(0)")
    a("s_nop 0")
    pv(a, VB[(NT-1) % 2][1], P1)
    a.nop(12)
    stamp(a, 25)
    if OPT["prio"]: a("s_setprio 0")
    L_slow, L_epi, L_fin = a.uid("P2_slow"), a.uid("P2_epi"), a.uid("P2_fin")
    a(f"v_max3_f32 v14, abs(v{OA}), abs(v{OA+1}), abs(v{OA+2})")
    for i in range(3, 11, 2): a(f"v_max3_f32 v14, v14, abs(v{OA+i}), abs(v{OA+i+1})")
    a(f"v_max_f32 v14, v14, abs(v{OA+11})")
    a(f"v_mov_b32 v15, {fl(2.0**60)}")
    a(f"v_cmp_nlt_f32 vcc, v{OA+12}, v15")
    a(f"v_mov_b32 v15, {fl(2.0**120)}")
    a("v_cmp_nlt_f32 s[80:81], v14, v15")
    a("s_nop 1")
    a("s_or_b64 vcc, vcc, s[80:81]")
    a(f"s_cbranch_vccnz {L_slow}")
    a.label(L_epi)
    a(f"v_rcp_f32 v14, v{OA+12}")
    a(f"s_mul_i32 s74, s{S_TQ}, 40960")
    a(f"s_mul_i32 s75, s{S_HEAD}, 5")
    for i in range(12): a(f"v_mul_f32 v{OA+i}, v{OA+i}, v14")
    for g in range(3):
        a(f"v_cvt_pk_bf16_f32 v{P0+2*g}, v{OA+4*g}, v{OA+4*g+1}")
        a(f"v_cvt_pk_bf16_f32 v{P0+2*g+1}, v{OA+4*g+2}, v{OA+4*g+3}")
    a("v_add_u32 v6, s75, v3")
    a("v_lshlrev_b32 v6, 8, v6")
    a("v_lshl_add_u32 v6, v2, 3, v6")
    for g in range(3):
        if g == 2: exec_lo32(a)
        a(f"buffer_store_dwordx2 v[{P0+2*g}:{P0+2*g+1}], v6, s[{SRD_O}:{SRD_O+3}], s74 offen offset:{512*g}{SC}")
    exec_all(a)
    a(f"s_branch {L_fin}")
    a.label(L_slow)
    kb, vb = KB[0], VB[0]
    a("v_mov_b32 v15, 0xff800000")
    a("s_mov_b32 s78, 0")
    L1, L2 = a.uid("P2_max"), a.uid("P2_pv")
    a.label(L1)
    a("s_add_u32 s79, s77, s78")
    ld_qk(kb[0], kb[1], SRD_KV, 79, False)
    a("s_waitcnt vmcnt(0)")
    a(f"v_mfma_f32_32x32x16_bf16 v[{SA}:{SA+15}], v[{kb[0]}:{kb[0]+3}], v[{Q1}:{Q1+3}], 0")
    qk2(a, SA, kb)
    a.nop(12)
    max16(15, SA, init=False)
    a(f"s_add_u32 s78, s78, {KVT}")
    a(f"s_cmp_lt_u32 s78, {64*KVT}")
    a(f"s_cbranch_scc1 {L1}")
    set_cm(15)
    for i in range(16): a(f"v_mov_b32 v{OA+i}, 0")
    a("v_mul_u32_u24 v6, 320, v3")
    a("v_lshl_add_u32 v6, v2, 4, v6")
    for j in range(4):
        a(f"v_mov_b32 v{vb[0]+j}, 0x3f803f80")
        a(f"v_mov_b32 v{vb[1]+j}, 0x3f803f80")
    a("v_cmp_gt_u32 s[82:83], 20, v2")
    a("s_mov_b32 s78, 0")
    a.label(L2)
    a("s_add_u32 s79, s77, s78")
    ld_qk(kb[0], kb[1], SRD_KV, 79, False)
    a("s_mov_b64 exec, s[82:83]")
    a(f"buffer_load_dwordx4 v[{vb[0]}:{vb[0]+3}], v6, s[{SRD_KV}:{SRD_KV+3}], s79 offen offset:1280{SC}")
    a(f"buffer_load_dwordx4 v[{vb[1]}:{vb[1]+3}], v6, s[{SRD_KV}:{SRD_KV+3}], s79 offen offset:1920{SC}")
    a("s_mov_b64 exec, -1")
    a("s_waitcnt vmcnt(0)")
    qk1(a, SA, kb); qk2(a, SA, kb)
    a.nop(12)
    for x in exps(SA): a(x)
    a("s_nop 0")
    for i in range(0, 16, 2): a(cvt(SA, i))
    a("s_nop 1")
    pv(a, vb[0], P0); pv(a, vb[1], P1)
    a(f"s_add_u32 s78, s78, {KVT}")
    a(f"s_cmp_lt_u32 s78, {64*KVT}")
    a(f"s_cbranch_scc1 {L2}")
    a.nop(12)
    a(f"s_branch {L_epi}")
    a.label(L_fin)
    stamp(a, 26)
    retile_producer_ids(a)
    wait_flags(a, [240, 241, 242], 5)
    a("s_waitcnt vmcnt(0)")
    a("s_barrier")
    a("s_lshr_b32 s71, s2, 5")
    a("s_lshl_b32 s71, s71, 5")
    a(f"s_add_u32 s71, s71, s{S_HEAD}")
    signal(a, 2, 71)
    stamp(a, 27)

RT, RTP = 136, 160
S_RN, S_RSRC, S_RDST = 84, 85, 78
SRD_RS, SRD_RD = 56, 60
def patterns(a, n, lanes, pitch):
    for p in range(n):
        a(f"v_add_u32 v{RT}, {64*p}, v0")
        vdiv_small(a, RT+1, RT, lanes)
        a(f"v_mul_u32_u24 v{RT+2}, {lanes}, v{RT+1}")
        a(f"v_sub_u32 v{RT+2}, v{RT}, v{RT+2}")
        a(f"v_mul_u32_u24 v{RT+1}, {pitch}, v{RT+1}")
        a(f"v_lshl_add_u32 v{RTP+p}, v{RT+2}, 4, v{RT+1}")
def retile_setup(a):
    Lgu, Ld, Lo, Ln = a.uid("rt_gu"), a.uid("rt_d"), a.uid("rt_o"), a.uid("rt_n")
    a(f"s_mov_b32 s{S_RN}, 0")
    srd(a, SRD_RS, P_WO, 0, 640*640*2)
    srd(a, SRD_RD, P_WS, WS_WO, SZ_WO)
    a(f"s_mov_b32 s{S_RSRC}, 0")
    a(f"s_mov_b32 s{S_RDST}, 0")
    for p in range(5): a(f"v_mov_b32 v{RTP+p}, 0")
    a(f"s_lshl_b32 s79, s{S_WAVE}, 8")
    a("s_add_u32 s79, s79, s2")
    a("s_cmp_lt_u32 s79, 1280")
    a(f"s_cbranch_scc1 {Lgu}")
    a("s_cmp_lt_u32 s79, 1664")
    a(f"s_cbranch_scc1 {Ld}")
    a("s_cmp_lt_u32 s79, 1824")
    a(f"s_cbranch_scc1 {Lo}")
    a(f"s_branch {Ln}")
    a.label(Lgu)
    a(f"s_mov_b32 s{S_RN}, 3")
    patterns(a, 3, 12, 3072)
    a("s_and_b32 s80, s79, 1")
    a("s_lshr_b32 s79, s79, 1")
    divmod_const(a, 81, 82, 79, 40)
    a("s_cmp_eq_u32 s80, 0")
    a(f"s_cselect_b32 s{SRD_RS}, s{P_WG}, s{P_WU}")
    a(f"s_cselect_b32 s{SRD_RS+1}, s{P_WG+1}, s{P_WU+1}")
    a(f"s_mov_b32 s{SRD_RS+2}, {hex(640*1536*2)}")
    a(f"s_mov_b32 s{SRD_RS+3}, 0x20000")
    srd(a, SRD_RD, P_WS, WS_WGU, SZ_WGU)
    a(f"s_mul_i32 s{S_RSRC}, s82, 49152")
    a("s_mul_i32 s83, s81, 192")
    a(f"s_add_u32 s{S_RSRC}, s{S_RSRC}, s83")
    a(f"s_mul_i32 s{S_RDST}, s81, 245760")
    a("s_lshr_b32 s83, s82, 2")
    a("s_mul_i32 s83, s83, 24576")
    a(f"s_add_u32 s{S_RDST}, s{S_RDST}, s83")
    a("s_mul_i32 s83, s80, 12288")
    a(f"s_add_u32 s{S_RDST}, s{S_RDST}, s83")
    a("s_and_b32 s83, s82, 3")
    a("s_mul_i32 s83, s83, 3072")
    a(f"s_add_u32 s{S_RDST}, s{S_RDST}, s83")
    a(f"s_branch {Ln}")
    for L, first, per_cg, ptr, rows, off, size in ((Ld, 1280, 48, P_WD, 1536, WS_WD, SZ_WD), (Lo, 1664, 20, P_WO, 640, WS_WO, SZ_WO)):
        a.label(L)
        a(f"s_mov_b32 s{S_RN}, 5")
        patterns(a, 5, 10, 1280)
        a(f"s_sub_u32 s79, s79, {first}")
        divmod_const(a, 81, 82, 79, per_cg)
        srd(a, SRD_RS, ptr, 0, rows*640*2)
        srd(a, SRD_RD, P_WS, off, size)
        a(f"s_mul_i32 s{S_RSRC}, s82, 40960")
        a("s_mul_i32 s83, s81, 160")
        a(f"s_add_u32 s{S_RSRC}, s{S_RSRC}, s83")
        a(f"s_mul_i32 s{S_RDST}, s81, {rows*160}")
        a("s_mul_i32 s83, s82, 5120")
        a(f"s_add_u32 s{S_RDST}, s{S_RDST}, s83")
        if L == Ld: a(f"s_branch {Ln}")
    a.label(Ln)
def retile_load(a, p):
    L = a.uid("rl")
    a(f"s_cmp_le_u32 s{S_RN}, {p}")
    a(f"s_cbranch_scc1 {L}")
    a(f"buffer_load_dwordx4 v[{RT+4*p}:{RT+4*p+3}], v{RTP+p}, s[{SRD_RS}:{SRD_RS+3}], s{S_RSRC} offen")
    a.label(L)
def retile_store(a, p):
    L = a.uid("rs")
    a(f"s_cmp_le_u32 s{S_RN}, {p}")
    a(f"s_cbranch_scc1 {L}")
    a(f"s_add_u32 s79, s{S_RDST}, {1024*p}")
    a(f"buffer_store_dwordx4 v[{RT+4*p}:{RT+4*p+3}], v1, s[{SRD_RD}:{SRD_RD+3}], s79 offen{SC}")
    a.label(L)

def retile_producer_ids(a):
    a("s_and_b32 s71, s2, 7")
    a("s_lshr_b32 s72, s71, 1")
    a("s_lshl_b32 s72, s72, 2")
    a("s_lshr_b32 s74, s2, 6")
    a("s_add_u32 s72, s72, s74")
    a("s_mul_i32 s72, s72, 80")
    a("s_lshr_b32 s71, s71, 2")
    a("s_lshl_b32 s71, s71, 2")
    a("s_add_u32 s71, s71, s74")
    a("v_add_u32 v240, s72, v0")
    a("v_add_u32 v241, 64, v240")
    a("s_mul_i32 s74, s71, 48")
    a("s_sub_u32 s74, s74, 16")
    a("v_add_u32 v243, s74, v0")
    a("v_cmp_gt_u32 vcc, 16, v0")
    a("s_mul_i32 s74, s71, 20")
    a("s_add_u32 s74, s74, 128")
    a("v_cndmask_b32 v241, v243, v241, vcc")
    a("v_min_u32 v242, 19, v0")
    a("v_add_u32 v242, s74, v242")
    for r in (240, 241, 242): a(f"v_and_b32 v{r}, 255, v{r}")
```

```python
from gemm import *

def map_thin(a):
    a("s_and_b32 s71, s2, 7")
    a("s_lshr_b32 s72, s2, 3")
    a("s_and_b32 s73, s71, 3")
    a("s_lshl_b32 s73, s73, 3")
    a("s_and_b32 s74, s72, 7")
    a(f"s_add_u32 s{S_RB}, s73, s74")
    a("s_lshr_b32 s73, s71, 2")
    a("s_lshl_b32 s73, s73, 2")
    a("s_lshr_b32 s74, s72, 3")
    a(f"s_add_u32 s{S_CG}, s73, s74")

TA, TB = 20480, 16384
T_RB = 4*TA
T_RES = T_RB + 3*TB
T_TAB = T_RES + 10240
T_RED = T_TAB + 1024
T_ST = T_RED + 3072
ACC0 = 64

def thin_compute_setup(a):
    tr_lane_parts(a, 11, 12, 13)
    a("v_lshl_add_u32 v11, v3, 2, v11")
    a("v_mul_u32_u24 v11, 160, v11")
    a(f"s_cmp_eq_u32 s{S_WAVE}, 2")
    a("s_cselect_b32 s71, 0, 32")
    a("v_mul_u32_u24 v12, s71, v12")
    a("v_add_u32 v11, v11, v12")
    a("v_lshl_add_u32 v11, v13, 3, v11")
    a(f"s_lshl_b32 s71, s{S_WAVE}, 6")
    a("v_add_u32 v11, s71, v11")
    lds_addr_set(a, 4, 2, 11)

def thin_loop(a, KS, grouped_b, sb):
    if grouped_b:
        a("v_lshlrev_b32 v12, 3, v2")
        a("v_lshl_add_u32 v12, v3, 8, v12")
        a(f"v_add_u32 v12, {T_RB}, v12")
    else:
        a(f"v_add_u32 v12, {T_RB}, v1")
    lds_addr_set(a, 8, 2, 12)
    def sh(s, reg):
        o = ((s//8) % 4)*TA + (s % 8)*2560
        v0, o0 = seg(4, o); v1, o1 = seg(4, o + 1280)
        return two64(reg, v0, o0, v1, o1, True)
    def pvv(s, t, reg):
        o = ((s//8) % 3)*TB + t*8192 + (s % 8)*1024
        if grouped_b: return two64(reg, 8, o, 8, o + 512, False)
        return b128(reg, 8, o)
    compute_loop(a, KS=KS, CK=8, NU=2, P=4, acc=lambda t: ACC0+16*t, sh_regs=[32, 36, 40], pv_regs=[16, 20, 24, 28],
                 sh_reads=sh, pv_reads=pvv, swap=True, sb=sb)

def thin_loader(a, *, NC, KS, raw_pitch, n_pre_a, extra_barriers, sb, raw_res=False, tail=None):
    a(f"s_lshl_b32 s72, s{S_J}, 10")
    a("v_add_u32 v7, s72, v1")
    a(f"s_mul_i32 s77, s{S_J}, 5120")
    if raw_res:
        for p in range(5):
            a(f"v_add_u32 v8, {64*p}, v0")
            vdiv_small(a, 9, 8, 10)
            a("v_mul_u32_u24 v10, 10, v9")
            a("v_sub_u32 v10, v8, v10")
            a("v_mul_u32_u24 v9, 1280, v9")
            a(f"v_lshl_add_u32 v{16+p}, v10, 4, v9")
    a(f"s_mul_i32 s73, s{S_CG}, {KS*16*160}")
    a("s_add_u32 s73, s73, s77")
    a(f"s_lshl_b32 s74, s{S_RB}, 1")
    a(f"s_mul_i32 s74, s74, {KS*1024}")
    def a_issue(c):
        for p in range(5):
            dma(a, 77, (c % 4)*TA + p*1024, 1, SRD_A, 73, c*TA + p*1024, True)
        return 5
    def b_issue(c):
        for n in range(4):
            tb, hl = divmod(n, 2)
            dma(a, 72, T_RB + (c % 3)*TB + n*4096, 7, SRD_B, 74, tb*KS*1024 + c*8192 + hl*4096, True)
        return 4
    def residual(vq):
        L = a.uid("res")
        if raw_res:
            a(f"s_cmp_ge_u32 s{S_J}, 2")
            a(f"s_cbranch_scc1 {L}")
            a(f"s_lshl_b32 s78, s{S_RB}, 6")
            a(f"s_lshl_b32 s79, s{S_J}, 5")
            a("s_add_u32 s78, s78, s79")
            a("s_mul_i32 s78, s78, 1280")
            a(f"s_mul_i32 s79, s{S_CG}, 160")
            a("s_add_u32 s78, s78, s79")
            for p in range(5):
                a(f"s_add_u32 m0, s77, {T_RES + p*1024}")
                a("s_nop 0")
                a(f"buffer_load_dwordx4 v{16+p}, s[{SRD_E1}:{SRD_E1+3}], s78 offen lds")
            a.label(L)
            return
        a(f"s_lshl_b32 s78, s{S_RB}, 1")
        a("s_mul_i32 s78, s78, 40960")
        a(f"s_mul_i32 s79, s{S_CG}, 5120")
        a("s_add_u32 s78, s78, s79")
        for n in range(3):
            if n == 2:
                a(f"s_cmp_ge_u32 s{S_J}, 2")
                a(f"s_cbranch_scc1 {L}")
            a(f"s_add_u32 s79, s{S_J}, {4*n}")
            a("s_cmp_ge_u32 s79, 5")
            a("s_cselect_b32 s80, 35840, 0")
            a("s_lshl_b32 s79, s79, 10")
            a(f"s_add_u32 m0, s79, {T_RES}")
            a("s_add_u32 s79, s79, s80")
            a("s_add_u32 s79, s79, s78")
            a(f"buffer_load_dwordx4 v1, s[{SRD_E1}:{SRD_E1+3}], s79 offen{SC} lds")
        a.label(L)
    plain_loader(a, NC=NC, a_issue=a_issue, b_issue=b_issue, n_pre_a=n_pre_a, after_pre=residual,
                 deps=lambda: a("s_barrier"), extra_barriers=extra_barriers, sb=sb, tail=tail)

def table_wave(a, vecs, plus_one):
    n = len(vecs)
    a(f"v_min_u32 v4, {20*n-1}, v0")
    vdiv_small(a, 5, 4, 20)
    a("v_mul_u32_u24 v6, 20, v5")
    a("v_sub_u32 v6, v4, v6")
    a(f"v_add_u32 v7, {vecs[0]}, v5")
    a("v_mul_u32_u24 v7, 160, v7")
    a("v_add_u32 v7, v7, v6")
    a(f"s_mul_i32 s71, s{S_CG}, 20")
    a("v_add_u32 v7, s71, v7")
    a("v_lshlrev_b32 v7, 4, v7")
    a("v_mov_b32 v15, v7")
    a("v_mul_u32_u24 v7, 320, v5")
    a("v_lshl_add_u32 v7, v6, 4, v7")
    a(f"v_add_u32 v7, {T_TAB}, v7")
    a("s_barrier")
    a("s_barrier")
    poll_granules(a, [f"buffer_load_dwordx4 v[8:11], v15, s[{SRD_M}:{SRD_M+3}], 0 offen{SC}"], [10], "tab")
    unpack4(a, 12, 8)
    if plus_one is not None:
        for j in range(4): a(f"v_mov_b32 v{16+j}, v{12+j}")
        a(f"v_cmp_eq_u32 vcc, {plus_one}, v5")
        one_plus_round(a, 16)
        for j in range(4): a(f"v_cndmask_b32 v{12+j}, v{12+j}, v{16+j}, vcc")
    a("ds_write_b128 v7, v[12:15]")
    a("s_waitcnt lgkmcnt(0)")

def read_table(a, dst, k):
    for g in range(4): a(f"ds_read_b128 v[{dst+4*g}:{dst+4*g+3}], v13 offset:{320*k + 32*g}")
def epi_setup(a):
    a(f"s_lshl_b32 s71, s{S_WAVE}, 7")
    a(f"s_add_u32 s71, s71, {T_TAB}")
    a("v_lshl_add_u32 v13, v3, 4, s71")
    a(f"s_lshl_b32 s71, s{S_WAVE}, 11")
    a(f"s_add_u32 s71, s71, {T_RES}")
    a("v_add_u32 v14, s71, v1")
def read_residual_raw(a, XR):
    a("v_mul_u32_u24 v14, 160, v2")
    a("v_lshl_add_u32 v14, v3, 3, v14")
    a(f"s_lshl_b32 s71, s{S_WAVE}, 6")
    a(f"s_add_u32 s71, s71, {T_RES}")
    a("v_add_u32 v14, s71, v14")
    for u in range(2):
        for g in range(4):
            a(f"ds_read_b64 v[{XR+8*u+2*g}:{XR+8*u+2*g+1}], v14 offset:{u*5120 + 16*g}")
def read_residual(a, XR):
    for u in range(2):
        for tp in range(2):
            a(f"ds_read_b128 v[{XR+8*u+4*tp}:{XR+8*u+4*tp+3}], v14 offset:{u*5120 + tp*1024}")

def touch_ffn_weights(a):
    if not OPT345["touch"]:
        code_touch(a, 7)
        return
    a("v_min_u32 v30, 59, v0")
    a("v_lshlrev_b32 v30, 7, v30")
    a(f"s_mul_i32 s84, s{S_J}, 7680")
    a("s_lshr_b32 s85, s2, 3")
    a("s_and_b32 s85, s85, 7")
    a("s_mul_i32 s85, s85, 30720")
    a("s_add_u32 s84, s84, s85")
    a("s_and_b32 s86, s2, 7")
    a("s_lshr_b32 s86, s86, 1")
    a("s_lshl_b32 s86, s86, 2")
    a("s_lshr_b32 s87, s2, 6")
    a("s_add_u32 s86, s86, s87")
    a("s_mul_i32 s86, s86, 245760")
    a("s_add_u32 s86, s86, s84")
    srd(a, 88, P_WS, WS_WGU, SZ_WGU)
    a("buffer_load_dword v31, v30, s[88:91], s86 offen")
    a(f"s_mul_i32 s86, s{S_CG}, 245760")
    a("s_add_u32 s86, s86, s84")
    srd(a, 88, P_WS, WS_WD, SZ_WD)
    a("buffer_load_dword v32, v30, s[88:91], s86 offen")
    code_touch(a, 7)

OPT345 = {"touch": False}
def touch_tile(a, ws_off, size, cg_sgpr_expr, waves):
    L = a.uid("touch")
    a(f"s_cmp_lt_u32 s{S_WAVE}, {waves[0]}")
    a(f"s_cbranch_scc1 {L}")
    a(f"s_cmp_gt_u32 s{S_WAVE}, {waves[1]}")
    a(f"s_cbranch_scc1 {L}")
    cg_sgpr_expr()
    a("s_mul_i32 s86, s86, 245760")
    a("s_lshr_b32 s85, s2, 3")
    a("s_and_b32 s85, s85, 7")
    a("s_mul_i32 s85, s85, 30720")
    a("s_add_u32 s86, s86, s85")
    a(f"s_sub_u32 s85, s{S_WAVE}, {waves[0]}")
    a("s_mul_i32 s85, s85, 15360")
    a("s_add_u32 s86, s86, s85")
    srd(a, 88, P_WS, ws_off, size)
    a("v_min_u32 v30, 59, v0")
    a("v_lshlrev_b32 v30, 7, v30")
    a("buffer_load_dword v31, v30, s[88:91], s86 offen")
    a("s_add_u32 s86, s86, 7680")
    a("buffer_load_dword v31, v30, s[88:91], s86 offen")
    a.label(L)
def cg_p4(a):
    a("s_and_b32 s86, s2, 7")
    a("s_lshr_b32 s86, s86, 1")
    a("s_lshl_b32 s86, s86, 2")
    a("s_lshr_b32 s87, s2, 6")
    a("s_add_u32 s86, s86, s87")
def cg_p5(a):
    a("s_and_b32 s86, s2, 7")
    a("s_lshr_b32 s86, s86, 2")
    a("s_lshl_b32 s86, s86, 2")
    a("s_lshr_b32 s87, s2, 6")
    a("s_add_u32 s86, s86, s87")

def gen_p3(a):
    map_thin(a)
    srd(a, SRD_A, P_WS, WS_WO, SZ_WO)
    srd(a, SRD_B, P_WS, WS_O, SZ_O)
    srd(a, SRD_M, P_WS, WS_MODG, SZ_MODG)
    srd(a, SRD_E1, P_X, 0, S*D*2)
    lane_consts(a)
    L_comp, L_w3, L_fin = a.uid("P3_comp"), a.uid("P3_w3"), a.uid("P3_fin")
    a(f"s_cmp_lt_u32 s{S_WAVE}, 4")
    a(f"s_cbranch_scc1 {L_comp}")
    a(f"s_sub_u32 s{S_J}, s{S_WAVE}, 4")
    thin_loader(a, NC=5, KS=40, raw_pitch=0, n_pre_a=3, extra_barriers=2, sb=28, raw_res=True, tail=lambda: touch_ffn_weights(a))
    a(f"s_branch {L_fin}")
    a.label(L_comp)
    a(f"s_cmp_eq_u32 s{S_WAVE}, 3")
    a(f"s_cbranch_scc1 {L_w3}")
    srd(a, SRD_E0, P_WS, WS_X1, SZ_X1)
    srd(a, SRD_E2, P_WS, WS_H2, SZ_H2)
    thin_compute_setup(a)
    a(f"s_lshr_b32 s71, s{S_RB}, 2")
    a("s_lshl_b32 s71, s71, 5")
    a("v_add_u32 v240, s71, v2")
    if OPTC["touch4"]: touch_tile(a, WS_WGU, SZ_WGU, lambda: cg_p4(a), (1, 2))
    wait_flags(a, [240], 2)
    a("s_barrier")
    thin_loop(a, 40, True, 28)
    GA, XR, G2, S2 = 112, 96, 128, 144
    epi_setup(a)
    read_table(a, GA, 0); read_residual_raw(a, XR)
    a(f"s_mul_i32 s73, s{S_CG}, 5")
    a(f"s_lshl_b32 s74, s{S_WAVE}, 1")
    a("s_add_u32 s73, s73, s74")
    a("s_lshl_b32 s73, s73, 10")
    a(f"s_lshl_b32 s74, s{S_RB}, 1")
    a("s_mul_i32 s74, s74, 40960")
    a("s_add_u32 s73, s73, s74")
    a("s_waitcnt lgkmcnt(0)")
    stamp(a, 50)
    a.nop(2)
    def per_half(u, body):
        L = a.uid("P3_e")
        for tp in range(2):
            if tp == 1:
                a(f"s_cmp_eq_u32 s{S_WAVE}, 2")
                a(f"s_cbranch_scc1 {L}")
            body(tp)
        a.label(L)
    for u in range(2):
        acc = ACC0 + 16*u
        sm, sq = 44 + 2*u, 45 + 2*u
        a(f"v_mov_b32 v{sm}, 0")
        a(f"v_mov_b32 v{sq}, 0")
        def body(tp):
            for gg in range(2):
                g = 2*tp + gg
                for jj in range(2):
                    x = XR + 8*u + 2*g + jj
                    a(f"v_lshlrev_b32 v48, 16, v{x}")
                    a(f"v_and_b32 v49, 0xffff0000, v{x}")
                    r = acc + 4*g + 2*jj
                    a(f"v_fma_f32 v{r}, v{GA+4*g+2*jj}, v{r}, v48")
                    a(f"v_fma_f32 v{r+1}, v{GA+4*g+2*jj+1}, v{r+1}, v49")
            p = 160 + 4*(2*u + tp)
            for j in range(4): a(f"v_cvt_pk_bf16_f32 v{p+j}, v{acc+8*tp+2*j}, v{acc+8*tp+2*j+1}")
            for j in range(4):
                a(f"v_lshlrev_b32 v{acc+8*tp+2*j}, 16, v{p+j}")
                a(f"v_and_b32 v{acc+8*tp+2*j+1}, 0xffff0000, v{p+j}")
            for i in range(8):
                a(f"v_add_f32 v{sm}, v{sm}, v{acc+8*tp+i}")
                a(f"v_fmac_f32 v{sq}, v{acc+8*tp+i}, v{acc+8*tp+i}")
        per_half(u, body)
        stamp(a, 51 + u)
    a(f"s_lshl_b32 s75, s{S_WAVE}, 9")
    a(f"s_add_u32 s75, s75, {T_RED}")
    a("v_lshl_add_u32 v15, v0, 3, s75")
    a("ds_write_b64 v15, v[44:45]")
    a("ds_write_b64 v15, v[46:47] offset:1536")
    read_table(a, S2, 1); read_table(a, G2, 2)
    a("s_waitcnt lgkmcnt(0)")
    stamp(a, 32)
    a("s_barrier")
    a("s_barrier")
    stamp(a, 33)
    a("v_lshlrev_b32 v15, 3, v2")
    a(f"v_add_u32 v15, {T_ST}, v15")
    a("ds_read_b64 v[44:45], v15")
    a("ds_read_b64 v[46:47], v15 offset:256")
    a("s_waitcnt lgkmcnt(0)")
    for u in range(2):
        acc = ACC0 + 16*u
        a(f"s_add_u32 s75, s73, {u*40960}")
        def body(tp):
            for i in range(8):
                r = acc + 8*tp + i
                a(f"v_fma_f32 v{r}, v{r}, v{44+2*u}, v{45+2*u}")
            for i in range(8):
                r = acc + 8*tp + i
                a(f"v_fma_f32 v{r}, v{r}, v{G2+8*tp+i}, v{S2+8*tp+i}")
            p = 16 + 4*(2*u + tp)
            for j in range(4): a(f"v_cvt_pk_bf16_f32 v{p+j}, v{acc+8*tp+2*j}, v{acc+8*tp+2*j+1}")
            a(f"buffer_store_dwordx4 v[{p}:{p+3}], v1, s[{SRD_E2}:{SRD_E2+3}], s75 offen offset:{1024*tp}{SC}")
            x = 160 + 4*(2*u + tp)
            a(f"buffer_store_dwordx4 v[{x}:{x+3}], v1, s[{SRD_E0}:{SRD_E0+3}], s75 offen offset:{1024*tp}{SC}")
        per_half(u, body)
    a(f"s_branch {L_fin}")
    a.label(L_w3)
    table_wave(a, [2, 3, 4], 2)
    for _ in range(4): a("s_barrier")
    stamp(a, 50)
    a("s_barrier")
    stamp(a, 51)
    srd(a, SRD_E0, P_WS, WS_STAT, SZ_STAT)
    a("v_mul_u32_u24 v13, 1536, v3")
    a("v_lshl_add_u32 v13, v2, 3, v13")
    a(f"v_add_u32 v13, {T_RED}, v13")
    for T in range(3):
        for h in range(2):
            r = 48 + 2*(2*T+h)
            a(f"ds_read_b64 v[{r}:{r+1}], v13 offset:{T*512 + h*256}")
    a("s_waitcnt lgkmcnt(0)")
    for i in range(1, 6):
        a(f"v_add_f32 v48, v48, v{48+2*i}")
        a(f"v_add_f32 v49, v49, v{49+2*i}")
    a(f"v_mov_b32 v50, s{S_NONCE}")
    a("v_mov_b32 v51, 0")
    a(f"s_lshl_b32 s75, s{S_RB}, 13")
    a(f"s_lshl_b32 s76, s{S_CG}, 10")
    a("s_add_u32 s76, s76, s75")
    a(f"buffer_store_dwordx4 v[48:51], v1, s[{SRD_E0}:{SRD_E0+3}], s76 offen{SC}")
    a(f"s_add_u32 s76, s75, 4096")
    def loads(base):
        return [f"buffer_load_dwordx4 v[{base+4*c}:{base+3+4*c}], v1, s[{SRD_E0}:{SRD_E0+3}], s{75 if c < 4 else 76} offen offset:{1024*(c % 4)}{SC}" for c in range(8)]
    stamp(a, 52)
    if OPTC["stat_pre"]: a(f"s_sleep {OPTC['stat_pre']}")
    poll_granules(a, loads(64), [66+4*c for c in range(8)], "P3_stat", sleep=OPTC["stat_sleep"])
    stamp(a, 32)
    if CTX.instrument is True: a(f"v_writelane_b32 v255, s94, 53")
    for c in range(1, 8):
        a(f"v_add_f32 v64, v64, v{64+4*c}")
        a(f"v_add_f32 v65, v65, v{65+4*c}")
    a(f"v_mul_f32 v64, {fl(1.0/640)}, v64")
    a(f"v_mul_f32 v65, {fl(1.0/640)}, v65")
    a("v_fma_f32 v65, -v64, v64, v65")
    a("v_max_f32 v65, 0, v65")
    a(f"v_add_f32 v65, {fl(1e-5)}, v65")
    a("v_rsq_f32 v66, v65")
    a("s_nop 0")
    a("v_mul_f32 v67, v64, v66")
    a("v_sub_f32 v67, 0, v67")
    a("v_lshlrev_b32 v13, 3, v0")
    a(f"v_add_u32 v13, {T_ST}, v13")
    a("ds_write_b64 v13, v[66:67]")
    a("s_waitcnt lgkmcnt(0)")
    a("s_barrier")
    a.label(L_fin)
    stamp(a, 34)
    a("s_waitcnt vmcnt(0)")
    a("s_barrier")
    a(f"s_lshl_b32 s71, s{S_RB}, 3")
    a(f"s_add_u32 s71, s71, s{S_CG}")
    signal(a, 3, 71)
    stamp(a, 35)

def gen_p5(a):
    map_thin(a)
    srd(a, SRD_A, P_WS, WS_WD, SZ_WD)
    srd(a, SRD_B, P_WS, WS_HH, SZ_HH)
    srd(a, SRD_M, P_WS, WS_MODG, SZ_MODG)
    srd(a, SRD_E1, P_WS, WS_X1, SZ_X1)
    lane_consts(a)
    L_comp, L_w3, L_fin = a.uid("P5_comp"), a.uid("P5_w3"), a.uid("P5_fin")
    a(f"s_cmp_lt_u32 s{S_WAVE}, 4")
    a(f"s_cbranch_scc1 {L_comp}")
    a(f"s_sub_u32 s{S_J}, s{S_WAVE}, 4")
    thin_loader(a, NC=12, KS=96, raw_pitch=0, n_pre_a=3, extra_barriers=1 if OPTC["out_lds"] else 0, sb=44)
    a(f"s_branch {L_fin}")
    a.label(L_comp)
    a(f"s_cmp_eq_u32 s{S_WAVE}, 3")
    a(f"s_cbranch_scc1 {L_w3}")
    srd(a, SRD_E0, P_OUT, 0, S*D*2)
    thin_compute_setup(a)
    a(f"s_lshr_b32 s71, s{S_RB}, 1")
    a("s_lshl_b32 s71, s71, 4")
    a("v_and_b32 v240, 15, v0")
    a("v_add_u32 v240, s71, v240")
    wait_flags(a, [240], 4)
    a("s_barrier")
    thin_loop(a, 96, False, 44)
    GB, XR = 112, 96
    epi_setup(a)
    read_table(a, GB, 0); read_residual(a, XR)
    T_OUT = 0
    if OPTC["out_lds"]:
        a("v_mul_u32_u24 v15, 160, v2")
        a("v_lshl_add_u32 v15, v3, 3, v15")
        a(f"s_lshl_b32 s73, s{S_WAVE}, 6")
        a(f"s_add_u32 s73, s73, {T_RED}")
        a("v_add_u32 v15, s73, v15")
    a("v_mul_u32_u24 v14, 1280, v2")
    a("v_lshl_add_u32 v14, v3, 3, v14")
    a(f"s_mul_i32 s72, s{S_CG}, 160")
    a(f"s_lshl_b32 s73, s{S_WAVE}, 6")
    a("s_add_u32 s72, s72, s73")
    a(f"s_mul_i32 s73, s{S_RB}, {64*1280}")
    a("s_add_u32 s72, s72, s73")
    a("s_waitcnt lgkmcnt(0)")
    a.nop(2)
    for u in range(2):
        acc = ACC0 + 16*u
        L = a.uid("P5_e")
        a(f"s_add_u32 s74, s72, {u*32*1280}")
        for g in range(4):
            if g == 2:
                a(f"s_cmp_eq_u32 s{S_WAVE}, 2")
                a(f"s_cbranch_scc1 {L}")
            for jj in range(2):
                x = XR + 8*u + 2*g + jj
                a(f"v_lshlrev_b32 v48, 16, v{x}")
                a(f"v_and_b32 v49, 0xffff0000, v{x}")
                r = acc + 4*g + 2*jj
                a(f"v_fma_f32 v{r}, v{GB+4*g+2*jj}, v{r}, v48")
                a(f"v_fma_f32 v{r+1}, v{GB+4*g+2*jj+1}, v{r+1}, v49")
            p = 16 + 2*((4*u+g) % 8)
            a(f"v_cvt_pk_bf16_f32 v{p}, v{acc+4*g}, v{acc+4*g+1}")
            a(f"v_cvt_pk_bf16_f32 v{p+1}, v{acc+4*g+2}, v{acc+4*g+3}")
            if OPTC["out_lds"]: a(f"ds_write_b64 v15, v[{p}:{p+1}] offset:{u*5120 + 16*g}")
            else: a(f"buffer_store_dwordx4 v[{p}:{p+1}], v14, s[{SRD_E0}:{SRD_E0+3}], s74 offen offset:{16*g}".replace("dwordx4", "dwordx2"))
        a.label(L)
    if OPTC["out_lds"]:
        a("s_waitcnt lgkmcnt(0)")
        a("s_barrier")
        a(f"s_mul_i32 s72, s{S_CG}, 160")
        a(f"s_mul_i32 s73, s{S_RB}, {64*1280}")
        a("s_add_u32 s72, s72, s73")
        sc = SC if OPTC["out_sc"] else ""
        Lq = a.uid("P5_q")
        for n in range(4):
            if n == 3:
                a(f"s_cmp_lg_u32 s{S_WAVE}, 0")
                a(f"s_cbranch_scc1 {Lq}")
            a(f"s_add_u32 s73, s{S_WAVE}, {3*n}")
            a("s_lshl_b32 s73, s73, 6")
            a("v_add_u32 v8, s73, v0")
            a(f"v_lshlrev_b32 v9, 4, v8")
            a(f"v_add_u32 v9, {T_RED}, v9")
            a(f"ds_read_b128 v[{96+4*n}:{99+4*n}], v9")
            vdiv_small(a, 10, 8, 10)
            a("v_mul_u32_u24 v11, 10, v10")
            a("v_sub_u32 v11, v8, v11")
            a("v_mul_u32_u24 v10, 1280, v10")
            a(f"v_lshl_add_u32 v{20+n}, v11, 4, v10")
            a("s_waitcnt lgkmcnt(0)")
            a(f"buffer_store_dwordx4 v[{96+4*n}:{99+4*n}], v{20+n}, s[{SRD_E0}:{SRD_E0+3}], s72 offen{sc}")
        a.label(Lq)
    a(f"s_branch {L_fin}")
    a.label(L_w3)
    table_wave(a, [5], None)
    for _ in range(11 + (1 if OPTC["out_lds"] else 0)): a("s_barrier")
    a.label(L_fin)
    stamp(a, 48)

SLOT4 = 24640
P4_RB = 4*SLOT4
def gen_p4(a):
    a("s_and_b32 s71, s2, 7")
    a("s_lshr_b32 s72, s2, 3")
    a("s_and_b32 s73, s71, 1")
    a("s_lshl_b32 s73, s73, 3")
    a("s_and_b32 s74, s72, 7")
    a(f"s_add_u32 s{S_RB}, s73, s74")
    a("s_lshr_b32 s73, s71, 1")
    a("s_lshl_b32 s73, s73, 2")
    a("s_lshr_b32 s74, s72, 3")
    a(f"s_add_u32 s{S_CG}, s73, s74")
    srd(a, SRD_A, P_WS, WS_WGU, SZ_WGU)
    srd(a, SRD_B, P_WS, WS_H2, SZ_H2)
    lane_consts(a)
    L_comp, L_fin = a.uid("P4_comp"), a.uid("P4_fin")
    a(f"s_cmp_lt_u32 s{S_WAVE}, 4")
    a(f"s_cbranch_scc1 {L_comp}")
    a(f"s_sub_u32 s{S_J}, s{S_WAVE}, 4")
    a(f"s_lshl_b32 s72, s{S_J}, 10")
    a("v_add_u32 v7, s72, v1")
    a(f"s_mul_i32 s77, s{S_J}, 3072")
    a(f"s_mul_i32 s73, s{S_CG}, 245760")
    a("s_add_u32 s73, s73, s77")
    a(f"s_lshl_b32 s74, s{S_RB}, 2")
    a("s_mul_i32 s74, s74, 40960")
    def a_issue(c):
        for m in range(2):
            for p in range(3): dma(a, 77, (c % 4)*SLOT4 + m*12320 + p*1024, 1, SRD_A, 73, c*24576 + m*12288 + p*1024, True)
        return 6
    def b_issue(c):
        for tb in range(4): dma(a, 72, P4_RB + (c % 3)*16384 + tb*4096, 7, SRD_B, 74, tb*40960 + c*4096, True)
        return 4
    plain_loader(a, NC=10, a_issue=a_issue, b_issue=b_issue, n_pre_a=3, after_pre=lambda vq: None,
                 deps=lambda: a("s_barrier"), sb=36)
    a(f"s_branch {L_fin}")
    a.label(L_comp)
    srd(a, SRD_E1, P_WS, WS_HH, SZ_HH)
    tr_lane_parts(a, 8, 9, 10)
    a("v_lshl_add_u32 v8, v3, 2, v8")
    a("v_mul_u32_u24 v8, 192, v8")
    a("v_mul_u32_u24 v9, 12320, v9")
    a("v_add_u32 v8, v8, v9")
    a("v_lshl_add_u32 v8, v10, 3, v8")
    lds_addr_set(a, 4, 2, 8)
    a(f"s_lshl_b32 s71, s{S_WAVE}, 12")
    a(f"s_add_u32 s71, s71, {P4_RB}")
    a("v_add_u32 v6, s71, v1")
    ACC = 64
    def pv_reads(s, t, reg):
        o = ((s//4) % 4)*SLOT4 + (s % 4)*3072 + t*32
        v0, o0 = seg(4, o); v1, o1 = seg(4, o + 1536)
        return two64(reg, v0, o0, v1, o1, True)
    a(f"s_lshl_b32 s71, s{S_RB}, 4")
    a("v_and_b32 v240, 15, v0")
    a("v_add_u32 v240, s71, v240")
    if OPTC["touch5"]: touch_tile(a, WS_WD, SZ_WD, lambda: cg_p5(a), (1, 2))
    wait_flags(a, [240], 3)
    a("s_barrier")
    compute_loop(a, KS=40, CK=4, NU=6, P=6, acc=lambda t: ACC+16*t, sh_regs=[40, 44], pv_regs=[16, 20, 24, 28, 32, 36],
                 sh_reads=lambda s, reg: b128(reg, 6, ((s//4) % 3)*16384 + (s % 4)*1024), pv_reads=pv_reads, swap=False, sb=36)
    a(f"s_lshl_b32 s72, s{S_RB}, 2")
    a(f"s_add_u32 s72, s72, s{S_WAVE}")
    a("s_mul_i32 s72, s72, 98304")
    a(f"s_mul_i32 s73, s{S_CG}, 6144")
    a("s_add_u32 s72, s72, s73")
    a.nop(8)
    for T in range(6):
        g = ACC + 16*T; u = g + 8
        for i in range(8): a(f"v_mul_f32 v{g+i}, {fl(-LOG2E)}, v{g+i}")
        for i in range(8): a(f"v_exp_f32 v{g+i}, v{g+i}")
        for i in range(8): a(f"v_add_f32 v{g+i}, 1.0, v{g+i}")
        for i in range(8): a(f"v_rcp_f32 v{g+i}, v{g+i}")
        for i in range(8): a(f"v_mul_f32 v{g+i}, v{g+i}, v{u+i}")
        p = 16 + 4*(T % 4)
        for j in range(4): a(f"v_cvt_pk_bf16_f32 v{p+j}, v{g+2*j}, v{g+2*j+1}")
        a(f"s_add_u32 s73, s72, {T*1024}")
        a(f"buffer_store_dwordx4 v[{p}:{p+3}], v1, s[{SRD_E1}:{SRD_E1+3}], s73 offen{SC}")
    a.label(L_fin)
    stamp(a, 41)
    a("s_waitcnt vmcnt(0)")
    a("s_barrier")
    a(f"s_lshl_b32 s71, s{S_RB}, 4")
    a(f"s_add_u32 s71, s71, s{S_CG}")
    signal(a, 4, 71)
    stamp(a, 42)
```

```python
from gemm import *
QSCALE = (20 ** -0.5) * LOG2E
OPT01 = {"tlb": True}
P0_RED, P0_TAB = 131072, 139264
P1_RB = 65536

def reduce_swap(a, op, x, t):
    a(f"v_mov_b32 v{t}, v{x}")
    a("s_nop 1")
    a(f"{op} v{x}, v{t}")
    a("s_nop 1")
    a(f"v_add_f32 v{x}, v{x}, v{t}")

def map_p1(a):
    a("s_and_b32 s71, s2, 7")
    a("s_lshr_b32 s72, s2, 3")
    a("s_lshr_b32 s73, s71, 1")
    a("s_lshl_b32 s73, s73, 2")
    a("s_and_b32 s74, s72, 3")
    a(f"s_add_u32 s{S_RB}, s73, s74")
    a("s_and_b32 s73, s71, 1")
    a("s_lshl_b32 s73, s73, 3")
    a("s_lshr_b32 s74, s72, 2")
    a(f"s_add_u32 s{S_CG}, s73, s74")

def p1_a_setup(a):
    a(f"s_sub_u32 s{S_J}, s{S_WAVE}, 4")
    a("v_lshrrev_b32 v8, 4, v0")
    a("v_bfe_u32 v9, v0, 2, 2")
    a("v_xor_b32 v9, v9, v8")
    a("v_and_b32 v10, 3, v0")
    a("v_mul_u32_u24 v56, 3840, v8")
    a("v_lshl_add_u32 v56, v9, 6, v56")
    a("v_lshl_add_u32 v56, v10, 4, v56")
    a(f"s_mul_i32 s73, s{S_J}, {16*3840}")
    a(f"s_lshl_b32 s77, s{S_CG}, 8")
    a("s_add_u32 s73, s73, s77")
    a(f"s_lshl_b32 s77, s{S_J}, 12")
def p1_a_issue(a, c):
    for n in range(4): dma(a, 77, (c % 4)*16384 + n*1024, 56, SRD_A, 73, (c*64 + 4*n)*3840, False)
    return 4

def p1_prefetch(a):
    L = a.uid("P1_nopre")
    if OPT01["tlb"]:
        Lt = a.uid("P0_notlb")
        a(f"s_cmp_lg_u32 s{S_J}, 3")
        a(f"s_cbranch_scc1 {Lt}")
        srd(a, 60, P_WS, 0, WS_TS)
        a("v_min_u32 v103, 23, v0")
        a("v_lshlrev_b32 v103, 21, v103")
        a("buffer_load_dword v104, v103, s[60:63], 0 offen")
        srd(a, 60, P_OUT, 0, S*D*2)
        a("v_and_b32 v103, 1, v0")
        a("v_lshlrev_b32 v103, 21, v103")
        a("buffer_load_dword v105, v103, s[60:63], 0 offen")
        a.label(Lt)
    a(f"s_cmp_ge_u32 s{S_CG}, 15")
    a(f"s_cbranch_scc1 {L}")
    p1_a_setup(a)
    for c in range(3): p1_a_issue(a, c)
    a(f"s_and_b32 s84, s{S_RB}, 3")
    a("s_mul_i32 s84, s84, 112")
    a(f"s_mul_i32 s85, s{S_J}, 28")
    a("s_add_u32 s84, s84, s85")
    a("s_add_u32 s84, s84, 192")
    a("s_mul_i32 s84, s84, 3840")
    a(f"s_lshl_b32 s85, s{S_CG}, 8")
    a("s_add_u32 s84, s84, s85")
    a("v_lshrrev_b32 v100, 1, v0")
    a("v_min_u32 v100, 27, v100")
    a("v_mul_u32_u24 v100, 3840, v100")
    a("v_and_b32 v101, 1, v0")
    a("v_lshl_add_u32 v100, v101, 7, v100")
    a(f"buffer_load_dword v102, v100, s[{SRD_A}:{SRD_A+3}], s84 offen")
    a.label(L)

def mod_job_critical(a):
    srd(a, 56, P_WMOD, 0, 640*3840*2)
    srd(a, 60, P_C, 0, 640*2)
    a("s_and_b32 s84, s2, 7")
    a("s_lshr_b32 s85, s2, 3")
    a("s_mul_i32 s86, s84, 10")
    a("s_add_u32 s86, s86, s85")
    a("s_mul_i32 s87, s84, 20")
    a("s_add_u32 s87, s87, s85")
    a("s_add_u32 s87, s87, 70")
    a("s_cmp_lt_u32 s85, 10")
    a("s_cselect_b32 s86, s86, s87")
    a("v_lshrrev_b32 v2, 1, v0")
    a("v_and_b32 v3, 1, v0")
    a(f"s_mul_i32 s87, s{S_J}, 160")
    a("v_add_u32 v4, s87, v2")
    a("v_lshlrev_b32 v5, 1, v4")
    a("s_movk_i32 s87, 7680")
    a("v_mul_lo_u32 v6, v4, s87")
    a("s_lshl_b32 s88, s86, 5")
    a("v_lshl_add_u32 v6, v3, 4, v6")
    a("v_add_u32 v6, s88, v6")
    for m in range(5): a(f"buffer_load_ushort v{8+m}, v5, s[60:63], 0 offen offset:{64*m}")
    for m in range(5):
        a(f"s_mov_b32 s87, {m*32*7680}")
        a(f"buffer_load_dwordx4 v[{16+4*m}:{19+4*m}], v6, s[56:59], s87 offen")
    stamp(a, 54)
    a("s_waitcnt vmcnt(5)")
    stamp(a, 55)
    kernel_nonce(a)
    silu_bf16(a, 8, 40, 5)
    for m in range(5):
        a(f"s_waitcnt vmcnt({4-m})")
        for j in range(4):
            a(f"v_lshlrev_b32 v46, 16, v{16+4*m+j}")
            a(f"v_and_b32 v47, 0xffff0000, v{16+4*m+j}")
            op = "v_mul_f32" if m == 0 else "v_fmac_f32"
            a(f"{op} v{48+2*j}, v{8+m}, v46")
            a(f"{op} v{49+2*j}, v{8+m}, v47")
    stamp(a, 56)
    a(f"s_lshl_b32 s87, s{S_J}, 11")
    a(f"s_add_u32 s87, s87, {P0_RED}")
    a("v_lshlrev_b32 v7, 5, v0")
    a("v_add_u32 v7, s87, v7")
    a("ds_write_b128 v7, v[48:51]")
    a("ds_write_b128 v7, v[52:55] offset:16")
    a("s_waitcnt lgkmcnt(0)")

def silu_bf16(a, x, t, n):
    for m in range(n): a(f"v_lshlrev_b32 v{x+m}, 16, v{x+m}")
    for m in range(n): a(f"v_mul_f32 v{t+m}, {fl(-LOG2E)}, v{x+m}")
    for m in range(n): a(f"v_exp_f32 v{t+m}, v{t+m}")
    a("s_nop 0")
    for m in range(n): a(f"v_add_f32 v{t+m}, 1.0, v{t+m}")
    for m in range(n): a(f"v_rcp_f32 v{t+m}, v{t+m}")
    a("s_nop 0")
    for m in range(n): a(f"v_mul_f32 v{x+m}, v{x+m}, v{t+m}")
    for m in range(n): a(f"v_cvt_pk_bf16_f32 v{x+m}, v{x+m}, v{x+m}")
    for m in range(n): a(f"v_and_b32 v{x+m}, 0xffff0000, v{x+m}")

def gen_p01(a):
    L_ld, L_A, L_B, L_D = a.uid("P0_ld"), a.uid("P0_A"), a.uid("P0_B"), a.uid("P0_D")
    code_touch(a, 7)
    kernel_setup(a)
    map_p1(a)
    srd(a, SRD_A, P_WQKV, 0, 640*1920*2)
    a(f"s_cmp_ge_u32 s{S_WAVE}, 4")
    a(f"s_cbranch_scc1 {L_ld}")
    srd(a, 56, P_X, 0, S*D*2)
    srd(a, 60, P_WS, WS_HF, SZ_HF)
    a("s_lshl_b32 s85, s2, 3")
    a(f"s_lshl_b32 s86, s{S_WAVE}, 1")
    a("s_add_u32 s85, s85, s86")
    a("v_lshrrev_b32 v2, 5, v0")
    a("v_and_b32 v3, 31, v0")
    a("v_add_u32 v4, s85, v2")
    a("s_movk_i32 s87, 1280")
    a("v_mul_lo_u32 v5, v4, s87")
    a("v_lshl_add_u32 v5, v3, 3, v5")
    for m in range(5): a(f"buffer_load_dwordx2 v[{8+2*m}:{9+2*m}], v5, s[56:59], 0 offen offset:{256*m}")
    a("s_barrier")
    a("s_waitcnt vmcnt(0)")
    kernel_nonce(a)
    for m in range(5):
        for j in range(2):
            a(f"v_lshlrev_b32 v{20+4*m+2*j}, 16, v{8+2*m+j}")
            a(f"v_and_b32 v{21+4*m+2*j}, 0xffff0000, v{8+2*m+j}")
    def tree_sum(dst, src0, n, tmp):
        a(f"v_add_f32 v{tmp}, v{src0}, v{src0+1}")
        a(f"v_add_f32 v{tmp+1}, v{src0+2}, v{src0+3}")
        for r in range(4, n, 2):
            a(f"v_add_f32 v{tmp}, v{tmp}, v{src0+r}")
            a(f"v_add_f32 v{tmp+1}, v{tmp+1}, v{src0+r+1}")
        a(f"v_add_f32 v{dst}, v{tmp}, v{tmp+1}")
    def reduce32(x, t):
        for sh in (8, 4, 2, 1):
            a("s_nop 1")
            a(f"v_add_f32_dpp v{x}, v{x}, v{x} row_ror:{sh} row_mask:0xf bank_mask:0xf")
        reduce_swap(a, "v_permlane16_swap_b32", x, t)
    tree_sum(40, 20, 20, 42)
    reduce32(40, 41)
    a(f"v_mul_f32 v40, {fl(1.0/640)}, v40")
    for r in range(20): a(f"v_sub_f32 v{20+r}, v{20+r}, v40")
    a("v_mul_f32 v42, v20, v20")
    a("v_mul_f32 v43, v21, v21")
    for r in range(2, 20, 2):
        a(f"v_fmac_f32 v42, v{20+r}, v{20+r}")
        a(f"v_fmac_f32 v43, v{21+r}, v{21+r}")
    a("v_add_f32 v41, v42, v43")
    reduce32(41, 42)
    a(f"v_mov_b32 v42, {fl(1e-5)}")
    a(f"v_fmac_f32 v42, {fl(1.0/640)}, v41")
    a("v_rsq_f32 v42, v42")
    a("s_nop 0")
    for r in range(20): a(f"v_mul_f32 v{20+r}, v{20+r}, v42")
    a("v_lshlrev_b32 v6, 4, v3")
    a(f"v_add_u32 v6, {P0_TAB}, v6")
    if OPTC["h16"]:
        a("v_and_b32 v49, 1, v3")
        a("v_cmp_eq_u32 s[90:91], 0, v49")
        a("v_mul_u32_u24 v48, 248, v49")
        a("v_add_u32 v48, v48, v5")
    stamp(a, 1)
    a("s_barrier")
    stamp(a, 3)
    for m in range(5):
        a(f"ds_read_b128 v[{60+8*m}:{63+8*m}], v6 offset:{512*m}")
        a(f"ds_read_b128 v[{64+8*m}:{67+8*m}], v6 offset:{2560+512*m}")
    for m in range(5):
        a(f"s_waitcnt lgkmcnt({8-2*m})")
        for j in range(4): a(f"v_fma_f32 v{20+4*m+j}, v{20+4*m+j}, v{60+8*m+j}, v{64+8*m+j}")
        a(f"v_cvt_pk_bf16_f32 v{8+2*m}, v{20+4*m}, v{21+4*m}")
        a(f"v_cvt_pk_bf16_f32 v{9+2*m}, v{22+4*m}, v{23+4*m}")
        if not OPTC["h16"] or m == 4:
            a(f"buffer_store_dwordx2 v[{8+2*m}:{9+2*m}], v5, s[60:63], 0 offen offset:{256*m}{SC}")
        elif m % 2 == 1:
            e0, o0, t = 8+2*(m-1), 8+2*m, 44
            for r in range(2): a(f"v_cndmask_b32 v{t+r}, v{e0+r}, v{o0+r}, s[90:91]")
            a("s_nop 1")
            for r in range(2): a(f"v_mov_b32_dpp v{t+2+r}, v{t+r} quad_perm:[1,0,3,2] row_mask:0xf bank_mask:0xf")
            q = 100 + 4*(m//2)
            for r in range(2):
                a(f"v_cndmask_b32 v{q+r}, v{t+2+r}, v{e0+r}, s[90:91]")
                a(f"v_cndmask_b32 v{q+2+r}, v{o0+r}, v{t+2+r}, s[90:91]")
            a(f"buffer_store_dwordx4 v[{q}:{q+3}], v48, s[60:63], 0 offen offset:{256*(m-1)}{SC}")
    a("s_waitcnt vmcnt(0)")

    a(f"s_branch {L_D}")

    a.label(L_ld)
    a(f"s_sub_u32 s{S_J}, s{S_WAVE}, 4")
    L_nomod = a.uid("P0_nomod")
    a("s_cmp_ge_u32 s2, 240")
    a(f"s_cbranch_scc1 {L_nomod}")
    mod_job_critical(a)
    a(f"s_branch {L_A}")
    a.label(L_nomod)
    a("s_waitcnt vmcnt(0)")
    kernel_nonce(a)
    a.label(L_A)
    stamp(a, 1)
    a("s_barrier")
    L_w0, L_w12, L_pre = a.uid("P0_w0"), a.uid("P0_w1"), a.uid("P0_pre")
    a(f"s_cmp_eq_u32 s{S_J}, 0")
    a(f"s_cbranch_scc1 {L_w0}")
    a(f"s_cmp_eq_u32 s{S_J}, 3")
    a(f"s_cbranch_scc1 {L_pre}")
    a(f"s_branch {L_w12}")
    a.label(L_w0)
    a("s_cmp_ge_u32 s2, 240")
    a(f"s_cbranch_scc1 {L_pre}")
    srd(a, 56, P_WS, WS_MODG, SZ_MODG)
    a("v_and_b32 v3, 3, v0")
    a("v_lshrrev_b32 v2, 2, v0")
    a("v_lshlrev_b32 v7, 9, v2")
    a("v_lshl_add_u32 v7, v3, 4, v7")
    a(f"v_add_u32 v7, {P0_RED}, v7")
    for r in range(8): a(f"ds_read_b128 v[{64+4*r}:{67+4*r}], v7 offset:{r*64}")
    for r in range(1, 8):
        a(f"s_waitcnt lgkmcnt({7-r})")
        for j in range(4): a(f"v_add_f32 v{64+j}, v{64+j}, v{64+4*r+j}")
    for sh in (4, 8):
        a("s_nop 1")
        for j in range(4): a(f"v_add_f32_dpp v{64+j}, v{64+j}, v{64+j} row_ror:{sh} row_mask:0xf bank_mask:0xf")
    for op in ("v_permlane16_swap_b32", "v_permlane32_swap_b32"):
        for j in range(4): a(f"v_mov_b32 v{68+j}, v{64+j}")
        a("s_nop 1")
        for j in range(4): a(f"{op} v{64+j}, v{68+j}")
        a("s_nop 1")
        for j in range(4): a(f"v_add_f32 v{64+j}, v{64+j}, v{68+j}")
    a("v_cvt_pk_bf16_f32 v72, v64, v65")
    a("v_cvt_pk_bf16_f32 v73, v66, v67")
    a(f"v_mov_b32 v74, s{S_NONCE}")
    a("v_mov_b32 v75, 0")
    a("v_lshlrev_b32 v7, 4, v3")
    a(f"v_mul_u32_u24 v76, {MODG_REP}, v2")
    a("v_add_u32 v7, v7, v76")
    a("s_lshl_b32 s87, s86, 6")
    exec_lo32(a)
    a(f"buffer_store_dwordx4 v[72:75], v7, s[56:59], s87 offen{SC}")
    exec_all(a)
    a(f"s_branch {L_pre}")
    a.label(L_w12)
    srd(a, 56, P_WS, WS_MODG, SZ_MODG)
    a("s_and_b32 s84, s2, 7")
    a(f"s_mul_i32 s84, s84, {MODG_REP}")
    a(f"s_sub_u32 s85, s{S_J}, 1")
    a("s_mul_i32 s86, s85, 2560")
    a("s_add_u32 s84, s84, s86")
    a("v_lshlrev_b32 v7, 4, v0")
    a("v_add_u32 v8, 128, v0")
    a("v_min_u32 v8, 159, v8")
    a("v_lshlrev_b32 v8, 4, v8")
    loads = [f"buffer_load_dwordx4 v[16:19], v7, s[56:59], s84 offen{SC}",
             f"buffer_load_dwordx4 v[20:23], v7, s[56:59], s84 offen offset:1024{SC}",
             f"buffer_load_dwordx4 v[24:27], v8, s[56:59], s84 offen{SC}"]
    poll_granules(a, loads, [18, 22, 26], "P0_mod", sleep=OPTC["mod_sleep"])
    stamp(a, 2)
    a("s_cmp_eq_u32 s85, 0")
    a(f"s_mov_b32 s86, {P0_TAB}")
    a(f"s_cselect_b32 s86, {P0_TAB+2560}, s86")
    a("v_add_u32 v7, s86, v7")
    a("v_add_u32 v8, s86, v8")
    L_plain = a.uid("P0_plain")
    for n in range(3): unpack4(a, 40+4*n, 16+4*n)
    a("s_cmp_eq_u32 s85, 0")
    a(f"s_cbranch_scc1 {L_plain}")
    for n in range(3): one_plus_round(a, 40+4*n)
    a.label(L_plain)
    a("ds_write_b128 v7, v[40:43]")
    a("ds_write_b128 v7, v[44:47] offset:1024")
    a("ds_write_b128 v8, v[48:51]")
    a("s_waitcnt lgkmcnt(0)")
    a("s_barrier")
    p1_prefetch(a)
    a(f"s_branch {L_D}")
    a.label(L_pre)
    p1_prefetch(a)
    a("s_barrier")
    a.label(L_D)
    a("s_barrier")
    signal(a, 0, 2)
    stamp(a, 4)

    L_end = a.uid("P1_end")
    L_spare = a.uid("P1_spare")
    a(f"s_cmp_ge_u32 s{S_CG}, 15")
    a(f"s_cbranch_scc1 {L_spare}")
    lane_consts(a)
    L_comp, L_fin = a.uid("P1_comp"), a.uid("P1_fin")
    a(f"s_cmp_lt_u32 s{S_WAVE}, 4")
    a(f"s_cbranch_scc1 {L_comp}")
    p1_a_setup(a)
    srd(a, SRD_B, P_WS, WS_HF, SZ_HF)
    a("v_lshrrev_b32 v8, 3, v0")
    a("v_mul_u32_u24 v8, 1280, v8")
    a("v_and_b32 v9, 7, v0")
    a("v_lshrrev_b32 v10, 4, v0")
    a("v_xor_b32 v11, v9, v10")
    a("v_lshl_add_u32 v57, v11, 4, v8")
    a("v_xor_b32 v11, 4, v11")
    a("v_lshl_add_u32 v58, v11, 4, v8")
    a(f"s_lshl_b32 s72, s{S_J}, 12")
    a(f"s_lshl_b32 s74, s{S_RB}, 7")
    a(f"s_lshl_b32 s76, s{S_J}, 5")
    a("s_add_u32 s74, s74, s76")
    a("s_mul_i32 s74, s74, 1280")
    def a_issue(c):
        if c < 3: return 4 + (c == 2)
        return p1_a_issue(a, c)
    def b_issue(c):
        for p in range(4): dma(a, 72, P1_RB + (c % 3)*16384 + p*1024, 57 + p % 2, SRD_B, 74, p*8*1280 + c*128, True)
        return 4
    plain_loader(a, NC=10, a_issue=a_issue, b_issue=b_issue, n_pre_a=3, after_pre=lambda vq: None,
                 deps=lambda: a("s_barrier"), sb=8)
    a(f"s_branch {L_fin}")
    a.label(L_comp)
    a(f"s_lshl_b32 s71, s{S_WAVE}, 12")
    a(f"s_add_u32 s71, s71, {P1_RB}")
    a("v_lshlrev_b32 v8, 7, v2")
    a("v_add_u32 v8, s71, v8")
    a("v_bfe_u32 v9, v2, 1, 3")
    for sp in range(4):
        a(f"v_add_u32 v10, {2*sp}, v3")
        a("v_xor_b32 v10, v10, v9")
        a(f"v_lshl_add_u32 v{44+sp}, v10, 4, v8")
    tr_lane_parts(a, 8, 9, 10)
    a("v_lshl_add_u32 v11, v3, 3, v8")
    a("v_lshlrev_b32 v11, 8, v11")
    a("v_lshl_add_u32 v11, v9, 5, v11")
    a("v_lshl_add_u32 v11, v10, 3, v11")
    for T in range(4):
        a(f"v_xor_b32 v12, {T}, v8")
        a(f"v_lshl_add_u32 v{40+T}, v12, 6, v11")
    a(f"s_lshl_b32 s72, s{S_RB}, 2")
    a(f"s_add_u32 s72, s72, s{S_WAVE}")
    ACC = 64
    def pv_reads(s, t, reg):
        o = ((s//4) % 4)*16384 + (s % 4)*4096
        return two64(reg, 40+t, o, 40+t, o + 1024, True)
    args = dict(KS=40, CK=4, NU=4, P=4, acc=lambda t: ACC+16*t, sh_regs=[32, 36], pv_regs=[16, 20, 24, 28],
                sh_reads=lambda s, reg: b128(reg, 44 + s % 4, ((s//4) % 3)*16384), pv_reads=pv_reads, sb=8)
    def deps():
        a(f"s_lshl_b32 s71, s{S_RB}, 4")
        a("v_and_b32 v240, 15, v0")
        a("v_add_u32 v240, s71, v240")
        wait_flags(a, [240], 0)
        a("s_barrier")
    L_v = a.uid("P1_v")
    a(f"s_cmp_ge_u32 s{S_CG}, 10")
    a(f"s_cbranch_scc1 {L_v}")
    a(f"s_mov_b32 s73, {KVT}")
    a(f"s_mov_b32 s74, {WS_KV}")
    a(f"s_cmp_lt_u32 s{S_CG}, 5")
    a(f"s_cselect_b32 s73, {QT}, s73")
    a(f"s_cselect_b32 s74, {WS_Q}, s74")
    a(f"s_cselect_b32 s76, {fl(QSCALE)}, 1.0")
    a("s_cselect_b32 s75, 0, 5")
    a(f"s_sub_u32 s75, s{S_CG}, s75")
    a(f"s_add_u32 s{SRD_E0}, s{P_WS}, s74")
    a(f"s_addc_u32 s{SRD_E0+1}, s{P_WS+1}, 0")
    a(f"s_mov_b32 s{SRD_E0+2}, {hex(SZ_KV)}")
    a(f"s_mov_b32 s{SRD_E0+3}, 0x20000")
    a("s_mul_i32 s78, s72, s73")
    a("s_lshl_b32 s79, s73, 6")
    a("s_lshl_b32 s80, s75, 5")
    a("v_add_u32 v5, s80, v3")
    a("v_lshlrev_b32 v6, 3, v2")
    for T in range(4):
        for g in range(4):
            o = 128 + 4*T + g
            a(f"v_add_u32 v8, {8*T+2*g}, v5")
            a("v_mul_u32_u24 v9, 0xcccd, v8")
            a("v_lshrrev_b32 v9, 18, v9")
            a("v_mul_u32_u24 v10, 5, v9")
            a("v_sub_u32 v10, v8, v10")
            a(f"v_mul_lo_u32 v{o}, v9, s79")
            a("v_lshl_add_u32 v10, v10, 8, v6")
            a(f"v_add_u32 v{o}, v{o}, v10")
    deps()
    compute_loop(a, swap=False, **args)
    a.nop(12)
    L_ns = a.uid("P1_noscale")
    a(f"s_cmp_ge_u32 s{S_CG}, 5")
    a(f"s_cbranch_scc1 {L_ns}")
    for r in range(64): a(f"v_mul_f32 v{ACC+r}, s76, v{ACC+r}")
    a.label(L_ns)
    for T in range(4):
        for g in range(4):
            r = ACC + 16*T + 4*g
            p = 16 + 2*((4*T+g) % 8)
            a(f"v_cvt_pk_bf16_f32 v{p}, v{r}, v{r+1}")
            a(f"v_cvt_pk_bf16_f32 v{p+1}, v{r+2}, v{r+3}")
            a(f"buffer_store_dwordx2 v[{p}:{p+1}], v{128+4*T+g}, s[{SRD_E0}:{SRD_E0+3}], s78 offen{SC}")
    a(f"s_branch {L_fin}")
    a.label(L_v)
    srd(a, SRD_E0, P_WS, WS_KV, SZ_KV)
    a(f"s_mul_i32 s78, s72, {KVT}")
    a(f"s_sub_u32 s75, s{S_CG}, 10")
    a("s_lshl_b32 s80, s75, 7")
    a("v_add_u32 v5, s80, v2")
    a("v_mul_u32_u24 v6, 320, v3")
    a(f"s_mov_b32 s79, {64*KVT}")
    for T in range(4):
        a(f"v_add_u32 v8, {32*T}, v5")
        a("v_mul_u32_u24 v9, 0xcccd, v8")
        a("v_lshrrev_b32 v9, 20, v9")
        a("v_mul_u32_u24 v10, 20, v9")
        a("v_sub_u32 v10, v8, v10")
        a(f"v_mul_lo_u32 v{128+T}, v9, s79")
        a(f"v_lshl_add_u32 v{128+T}, v10, 4, v{128+T}")
        a(f"v_add_u32 v{128+T}, v{128+T}, v6")
    deps()
    compute_loop(a, swap=True, **args)
    a.nop(12)
    for T in range(4):
        for tp in range(2):
            r = ACC + 16*T + 8*tp
            p = 16 + 4*((2*T+tp) % 4)
            for j in range(4): a(f"v_cvt_pk_bf16_f32 v{p+j}, v{r+2*j}, v{r+2*j+1}")
            a(f"buffer_store_dwordx4 v[{p}:{p+3}], v{128+T}, s[{SRD_E0}:{SRD_E0+3}], s78 offen offset:{1280+640*tp}{SC}")
    a.label(L_fin)
    stamp(a, 14)
    a("s_waitcnt vmcnt(0)")
    a("s_barrier")
    a(f"s_lshl_b32 s71, s{S_CG}, 4")
    a(f"s_add_u32 s71, s71, s{S_RB}")
    signal(a, 1, 71)
    a.label(L_spare)
    a.label(L_end)
    stamp(a, 15)
```

```python
import sys
from common import *
import p01, p2, p345

NAME = "adaLN_cond__mha_block__glu_gated_glu__prompt"
REF = open(f"cdna_kernels/{NAME}.s.ref").read()
HEADER = REF.split("; Override launch geometry")[0]
KNAME = NAME + "_kernel"

def ts_setup(a):
    srd(a, 4, P_WS, WS_TS, SZ_TS)
    a("s_lshl_b32 s8, s2, 3")
    a(f"s_add_u32 s8, s8, s{S_WAVE}")
    a("s_lshl_b32 s8, s8, 8")
    a("v_mov_b32 v255, 0")
    a("s_nop 0")
    a("v_writelane_b32 v255, s10, 62")
    a("v_writelane_b32 v255, s14, 0")
    stamp(a, 58)
def ts_end(a):
    stamp(a, 60)
    a("s_waitcnt vmcnt(0)")
    stamp(a, 61)
    a("s_memrealtime s[10:11]")
    a("s_waitcnt lgkmcnt(0)")
    a("s_mov_b64 exec, -1")
    a("v_writelane_b32 v255, s10, 63")
    a("v_mbcnt_lo_u32_b32 v4, -1, 0")
    a("v_mbcnt_hi_u32_b32 v4, -1, v4")
    a("v_lshlrev_b32 v4, 2, v4")
    a("buffer_store_dword v255, v4, s[4:7], s8 offen")

def dbg_out(a):
    L = a.uid("dbg")
    a("s_cmp_lg_u32 s2, 37")
    a(f"s_cbranch_scc1 {L}")
    a(f"s_cmp_lg_u32 s{S_WAVE}, 0")
    a(f"s_cbranch_scc1 {L}")
    srd(a, 44, P_DBG, 0, 256)
    for k, idx in enumerate([1, 3, 4, 9, 10, 15, 16, 19, 27, 29, 35, 37, 42, 45, 60, 61]):
        a(f"v_readlane_b32 s46, v255, {idx}") if False else None
    a("v_readlane_b32 s48, v255, 0")
    a("v_mov_b32 v6, 0")
    for k, idx in enumerate([1, 3, 4, 9, 10, 15, 16, 19, 27, 29, 35, 37, 42, 45, 60, 61]):
        a(f"v_readlane_b32 s49, v255, {idx}")
        a("s_nop 3")
        a("s_sub_u32 s49, s49, s48")
        a(f"v_writelane_b32 v6, s49, {k}")
    a("v_readlane_b32 s48, v255, 62")
    a("v_readlane_b32 s49, v255, 63")
    a("s_nop 3")
    a("s_sub_u32 s49, s49, s48")
    a("v_writelane_b32 v6, s49, 0")
    a("v_mbcnt_lo_u32_b32 v4, -1, 0")
    a("v_mbcnt_hi_u32_b32 v4, -1, v4")
    a("v_lshlrev_b32 v4, 2, v4")
    a("buffer_store_dword v6, v4, s[44:47], 0 offen")
    a.label(L)

def build(instrument=False, dbg=False):
    CTX.persistent, CTX.instrument = True, instrument
    a = Asm()
    fin = "L_fin"
    if instrument:
        a("s_memrealtime s[10:11]")
        a("s_memtime s[14:15]")
    prologue(a, 256, fin)
    if instrument: ts_setup(a)
    def delay(n):
        L = a.uid("dly")
        a(f"s_mov_b32 s94, {n}")
        a.label(L)
        for _ in range(4): a("s_nop 15")
        a("s_sub_u32 s94, s94, 1")
        a("s_cmp_lg_u32 s94, 0")
        a(f"s_cbranch_scc1 {L}")
    if OPTC.get("delay0"): delay(OPTC["delay0"])
    p01.gen_p01(a)
    if OPTC.get("delay1"): delay(OPTC["delay1"])
    p2.gen_p2(a)
    if OPTC.get("delay2"): delay(OPTC["delay2"])
    p345.gen_p3(a)
    p345.gen_p4(a)
    p345.gen_p5(a)
    kernel_publish_nonce(a)
    if instrument: ts_end(a)
    if dbg: dbg_out(a)
    a.label(fin)
    a("s_endpgm")
    problems = check_hazards(a.lines, KNAME)
    s = HEADER + "; @launch grid=(256,1,1) block=(512,1,1) lds=163840\n" + '.amdgcn_target "amdgcn-amd-amdhsa--gfx950"\n.text\n'
    s += kernel_text(KNAME, a) + '.section .rodata,"a"\n' + descriptor(KNAME)
    return s, problems

if __name__ == "__main__":
    if "-notlb" in sys.argv: p01.OPT01["tlb"] = False
    if "-nocode" in sys.argv: OPTC["code"] = False
    for arg in sys.argv:
        if arg.startswith("-D"):
            k, v = arg[2:].split("="); OPTC[k] = int(v)
    if "-notouch" in sys.argv: p345.OPT345["touch"] = False
    s, problems = build(instrument=("light" if "-light" in sys.argv else "-ts" in sys.argv), dbg="-dbg" in sys.argv)
    for p in problems: print("HAZARD", p)
    out = sys.argv[1] if len(sys.argv) > 1 and not sys.argv[1].startswith("-") else "pers.s"
    open(out, "w").write(s)
    print("wrote", out, len(s), "bytes;", len(problems), "hazards")
```

```python
from asmlib import *
from layout import *

P_X, P_WQKV, P_WO, P_BX, P_WG, P_WU, P_WD, P_C = 16, 18, 20, 22, 24, 26, 28, 30
P_WMOD, P_OUT, P_DBG, P_WS = 32, 34, 36, 38
S_WAVE, S_NONCE, S_DEAD = 40, 41, 42
S_ROLE, S_PURE = 43, 9
LDS_ROLE = 150016
SRD_FLAG = 96
LOG2E = 1.4426950408889634
SC = " sc1"

def f32bits(x):
    import struct
    return struct.unpack("<I", struct.pack("<f", x))[0]
def fl(x): return hex(f32bits(x))

class Ctx:
    def __init__(self, persistent, instrument):
        self.persistent, self.instrument = persistent, instrument
        self.stamp_base = 0

CTX = Ctx(True, False)

def stamp(a, idx):
    if not CTX.instrument: return
    if CTX.instrument == "light" and idx not in (58, 60, 61): return
    a("s_memtime s[12:13]")
    a("s_waitcnt lgkmcnt(0)")
    a(f"v_writelane_b32 v255, s12, {idx}")

def prologue(a, nwg, end_label, pre=None):
    a(f"s_cmp_ge_u32 s2, {nwg}")
    a(f"s_cbranch_scc1 {end_label}")
    a("s_load_dwordx16 s[16:31], s[0:1], 0")
    a("s_load_dwordx8 s[32:39], s[0:1], 64")
    a("v_lshrrev_b32 v1, 6, v0")
    a("s_nop 0")
    if pre: pre()
    a("v_and_b32 v0, 63, v0")
    a(f"v_readfirstlane_b32 s{S_WAVE}, v1")
    a("s_waitcnt lgkmcnt(0)")

def srd(a, d, ptr, off, size):
    if off:
        a(f"s_add_u32 s{d}, s{ptr}, {hex(off)}")
        a(f"s_addc_u32 s{d+1}, s{ptr+1}, 0")
    else:
        a(f"s_mov_b32 s{d}, s{ptr}")
        a(f"s_mov_b32 s{d+1}, s{ptr+1}")
    a(f"s_mov_b32 s{d+2}, {hex(size)}")
    a(f"s_mov_b32 s{d+3}, 0x20000")

def divmod_const(a, q, r, x, c):
    m = -(-(1 << 32) // c)
    a(f"s_mul_hi_u32 s{q}, s{x}, {hex(m)}")
    if r is not None:
        a(f"s_mul_i32 s{r}, s{q}, {c}")
        a(f"s_sub_u32 s{r}, s{x}, s{r}")

def vdiv_small(a, q, x, c, tmp=None):
    sh = 20
    m = -(-(1 << sh) // c)
    assert all((v*m) >> sh == v // c for v in range(4096)) and m < (1 << 24)
    a(f"v_mul_u32_u24 v{q}, {m}, v{x}")
    a(f"v_lshrrev_b32 v{q}, {sh}, v{q}")

def exec_lo32(a):
    a("s_mov_b32 exec_lo, -1")
    a("s_mov_b32 exec_hi, 0")
def exec_all(a): a("s_mov_b64 exec, -1")

def lane_consts(a):
    a("v_lshlrev_b32 v1, 4, v0")
    a("v_and_b32 v2, 31, v0")
    a("v_lshrrev_b32 v3, 5, v0")

class VmQ:
    def __init__(self, a): self.a, self.q = a, []
    def issue(self, tag, n=1): self.q += [tag]*n
    def wait(self, tag):
        idx = [i for i, t in enumerate(self.q) if t == tag]
        if not idx: return
        n = len(self.q) - 1 - idx[-1]
        assert n <= 63, n
        self.a(f"s_waitcnt vmcnt({n})")
        self.q = self.q[idx[-1]+1:]
    def drain(self):
        self.a("s_waitcnt vmcnt(0)")
        self.q = []

def flag_off(phase, idx): return 64*(1 + phase*256 + idx)

def barrier_if_persistent(a):
    if CTX.persistent: a("s_barrier")

def LSC(local=True):
    return "" if (OPTC["xcd"] and local) else SC

def signal(a, phase, s_idx, local=False):
    L = a.uid("sig")
    a(f"s_cmp_lg_u32 s{S_WAVE}, 0")
    a(f"s_cbranch_scc1 {L}")
    a(f"s_lshl_b32 s94, s{s_idx}, 6")
    a(f"s_add_u32 s94, s94, {flag_off(phase, 0)}")
    a(f"v_mov_b32 v250, s{S_NONCE}")
    a("v_mov_b32 v251, 0")
    a("s_mov_b64 exec, 1")
    if local and OPTC["xcd"]:
        Lg, Le = a.uid("sig_g"), a.uid("sig_e")
        a(f"s_cmp_eq_u32 s{S_PURE}, 0")
        a(f"s_cbranch_scc1 {Lg}")
        a(f"buffer_store_dword v250, v251, s[{SRD_FLAG}:{SRD_FLAG+3}], s94 offen")
        a(f"s_branch {Le}")
        a.label(Lg)
        a("buffer_wbl2 sc1")
        a("s_waitcnt vmcnt(0)")
        a(f"buffer_store_dword v250, v251, s[{SRD_FLAG}:{SRD_FLAG+3}], s94 offen sc1")
        a.label(Le)
    else:
        a(f"buffer_store_dword v250, v251, s[{SRD_FLAG}:{SRD_FLAG+3}], s94 offen sc1")
    a("s_mov_b64 exec, -1")
    a.label(L)

def acquire_if_impure(a):
    L = a.uid("acq")
    a(f"s_cmp_lg_u32 s{S_PURE}, 0")
    a(f"s_cbranch_scc1 {L}")
    a("buffer_inv sc1")
    a("s_waitcnt vmcnt(0)")
    a.label(L)

def wait_flags(a, idx_vregs, phase, wave=0, local=False):
    if not CTX.persistent: return
    L, Lp, Ld = a.uid("wf"), a.uid("wf_poll"), a.uid("wf_done")
    a(f"s_cmp_lg_u32 s{S_WAVE}, {wave}")
    a(f"s_cbranch_scc1 {L}")
    a(f"s_cmp_lg_u32 s{S_DEAD}, 0")
    a(f"s_cbranch_scc1 {L}")
    for r in idx_vregs:
        a(f"v_lshlrev_b32 v{r}, 6, v{r}")
        a(f"v_add_u32 v{r}, {flag_off(phase, 0)}, v{r}")
    a("s_mov_b32 s94, 30000")
    a.label(Lp)
    for i, r in enumerate(idx_vregs):
        a(f"buffer_load_dword v{250+i}, v{r}, s[{SRD_FLAG}:{SRD_FLAG+3}], 0 offen sc1")
    a("s_waitcnt vmcnt(0)")
    a(f"v_cmp_ne_u32 vcc, s{S_NONCE}, v250")
    for i in range(1, len(idx_vregs)):
        a(f"v_cmp_ne_u32 s[92:93], s{S_NONCE}, v{250+i}")
        a("s_nop 1")
        a("s_or_b64 vcc, vcc, s[92:93]")
    a("s_nop 1")
    a(f"s_cbranch_vccz {L}")
    if OPTC["flag_sleep"]: a(f"s_sleep {OPTC['flag_sleep']}")
    a("s_sub_u32 s94, s94, 1")
    a("s_cmp_lg_u32 s94, 0")
    a(f"s_cbranch_scc1 {Lp}")
    a.label(Ld)
    a(f"s_mov_b32 s{S_DEAD}, 1")
    a.label(L)
    if local and OPTC["xcd"]:
        L2 = a.uid("wf_acq")
        a(f"s_cmp_lg_u32 s{S_WAVE}, {wave}")
        a(f"s_cbranch_scc1 {L2}")
        acquire_if_impure(a)
        a.label(L2)

def poll_granules(a, loads, tagregs, label_base, trips=30000, sleep=2):
    Lp, Ld, L = a.uid(label_base + "_poll"), a.uid(label_base + "_dead"), a.uid(label_base + "_ok")
    a(f"s_mov_b32 s94, {trips}")
    a(f"s_cmp_lg_u32 s{S_DEAD}, 0")
    a(f"s_cselect_b32 s94, 1, s94")
    a.label(Lp)
    for x in loads: a(x)
    a("s_waitcnt vmcnt(0)")
    a(f"v_cmp_ne_u32 vcc, s{S_NONCE}, v{tagregs[0]}")
    for r in tagregs[1:]:
        a(f"v_cmp_ne_u32 s[92:93], s{S_NONCE}, v{r}")
        a("s_nop 1")
        a("s_or_b64 vcc, vcc, s[92:93]")
    a("s_nop 1")
    a(f"s_cbranch_vccz {L}")
    a(f"s_sleep {sleep}")
    a("s_sub_u32 s94, s94, 1")
    a("s_cmp_lg_u32 s94, 0")
    a(f"s_cbranch_scc1 {Lp}")
    a(f"s_mov_b32 s{S_DEAD}, 1")
    a.label(L)

def kernel_setup(a):
    srd(a, SRD_FLAG, P_WS, WS_FLAG, SZ_FLAG)
    a("v_mov_b32 v250, 0")
    a(f"buffer_load_dword v251, v250, s[{SRD_FLAG}:{SRD_FLAG+3}], 0 offen sc1")
    a(f"s_mov_b32 s{S_DEAD}, 0")
def kernel_nonce(a):
    a(f"s_mov_b32 s{S_NONCE}, 0x9e3779b1")
    a(f"v_mul_lo_u32 v251, v251, s{S_NONCE}")
    a("v_add_u32 v251, 0x85ebca6b, v251")
    a("s_nop 0")
    a(f"v_readfirstlane_b32 s{S_NONCE}, v251")
def kernel_publish_nonce(a):
    L = a.uid("pubn")
    a("s_cmp_lg_u32 s2, 0")
    a(f"s_cbranch_scc1 {L}")
    a(f"s_cmp_lg_u32 s{S_WAVE}, 0")
    a(f"s_cbranch_scc1 {L}")
    a(f"v_mov_b32 v250, s{S_NONCE}")
    a("v_mov_b32 v251, 0")
    a("s_mov_b64 exec, 1")
    a(f"buffer_store_dword v250, v251, s[{SRD_FLAG}:{SRD_FLAG+3}], 0 offen sc1")
    a("s_mov_b64 exec, -1")
    a.label(L)

def poll_granules2(a, loads, r0, r1, tagoffs, nloads, label_base, trips=20000):
    Lp, L, Lc = a.uid(label_base + "_poll"), a.uid(label_base + "_ok"), a.uid(label_base + "_copy")
    def check(base):
        a(f"v_cmp_ne_u32 vcc, s{S_NONCE}, v{base+tagoffs[0]}")
        for t in tagoffs[1:]:
            a(f"v_cmp_ne_u32 s[92:93], s{S_NONCE}, v{base+t}")
            a("s_nop 1")
            a("s_or_b64 vcc, vcc, s[92:93]")
        a("s_nop 1")
    a(f"s_mov_b32 s94, {trips}")
    a(f"s_cmp_lg_u32 s{S_DEAD}, 0")
    a("s_cselect_b32 s94, 1, s94")
    for x in loads(r0): a(x)
    a.label(Lp)
    for x in loads(r1): a(x)
    a(f"s_waitcnt vmcnt({nloads})")
    check(r0)
    a(f"s_cbranch_vccz {L}")
    for x in loads(r0): a(x)
    a(f"s_waitcnt vmcnt({nloads})")
    check(r1)
    a(f"s_cbranch_vccz {Lc}")
    a("s_sub_u32 s94, s94, 1")
    a("s_cmp_lg_u32 s94, 0")
    a(f"s_cbranch_scc1 {Lp}")
    a(f"s_mov_b32 s{S_DEAD}, 1")
    a.label(Lc)
    a("s_waitcnt vmcnt(0)")
    for k in range(4*nloads): a(f"v_mov_b32 v{r0+k}, v{r1+k}")
    a.label(L)
    a("s_waitcnt vmcnt(0)")

KNAME = "adaLN_cond__mha_block__glu_gated_glu__prompt_kernel"
OPTC = {"code": True, "flag_sleep": 1, "stat_pre": 6, "stat_sleep": 1, "mod_sleep": 2,
        "fast_start": 1, "spread": 1, "zero_rows": 1, "h16": 0, "tlb_early": 0, "xcd": 0, "tail_touch": 1, "lean": 1, "att_local": 0, "touchw": 1, "force_impure": 0, "prio_ld": 0, "prio_cp": 0, "prio_at": 0, "zero_k2": 0, "touch4": 0, "touch5": 0, "out_lds": 1, "out_sc": 0}
def code_touch(a, wave, vtmp=(252, 253), vdst=254):
    if not OPTC["code"]: return
    L, Lh = a.uid("cp"), a.uid("cp_here")
    lo, hi = vtmp
    a(f"s_cmp_lg_u32 s{S_WAVE}, {wave}")
    a(f"s_cbranch_scc1 {L}")
    a("s_getpc_b64 s[92:93]")
    a.label(Lh)
    a(f"s_sub_u32 s92, s92, {Lh}-{KNAME}")
    a("s_subb_u32 s93, s93, 0")
    a("s_lshr_b32 s94, s2, 3")
    a("s_and_b32 s94, s94, 31")
    a(f"s_mul_i32 s94, s94, (L_fin-{KNAME}+4095)/4096*128")
    a(f"v_min_u32 v{lo}, (L_fin-{KNAME}+4095)/4096-1, v0")
    a(f"v_lshlrev_b32 v{lo}, 7, v{lo}")
    a(f"v_add_u32 v{lo}, s94, v{lo}")
    a(f"v_min_u32 v{lo}, L_fin-{KNAME}, v{lo}")
    a(f"v_mov_b32 v{hi}, s93")
    a(f"v_add_co_u32 v{lo}, vcc, s92, v{lo}")
    a("s_nop 1")
    a(f"v_addc_co_u32 v{hi}, vcc, 0, v{hi}, vcc")
    a(f"global_load_dword v{vdst}, v[{lo}:{hi}], off")
    a.label(L)

def role_register(a):
    srd(a, 88, P_DBG, 0, 256)
    a("s_getreg_b32 s92, hwreg(HW_REG_XCC_ID)")
    a("s_and_b32 s92, s92, 7")
    a("s_lshl_b32 s93, s92, 5")
    a("v_mov_b32 v110, 1")
    a("v_mov_b32 v111, 0")
    a("s_mov_b64 exec, 1")
    a("buffer_atomic_add v110, v111, s[88:91], s93 offen sc0 sc1")
    a("s_mov_b64 exec, -1")
def role_register_finish(a):
    a("v_readfirstlane_b32 s93, v110")
    a("s_lshl_b32 s92, s92, 8")
    a("s_nop 2")
    a("s_min_u32 s93, s93, 255")
    a("s_or_b32 s92, s92, s93")
    a("v_mov_b32 v110, s92")
    a(f"v_mov_b32 v111, {LDS_ROLE}")
    a("ds_write_b32 v111, v110")
    a("s_waitcnt lgkmcnt(0)")
def role_resolve(a, wave):
    L, Lp, Ld, Lo = a.uid("rr"), a.uid("rr_poll"), a.uid("rr_dead"), a.uid("rr_ok")
    a(f"s_cmp_lg_u32 s{S_WAVE}, {wave}")
    a(f"s_cbranch_scc1 {L}")
    srd(a, 88, P_DBG, 0, 256)
    a("v_min_u32 v240, 7, v0")
    a("v_lshlrev_b32 v240, 5, v240")
    a(f"v_mov_b32 v241, {LDS_ROLE}")
    a("ds_read_b32 v242, v241")
    a("s_mov_b32 s94, 30000")
    a.label(Lp)
    a("buffer_load_dword v243, v240, s[88:91], 0 offen sc1")
    a("s_waitcnt vmcnt(0)")
    a("s_mov_b32 s92, 0")
    for i in range(8):
        a(f"v_readlane_b32 s93, v243, {i}")
        a("s_nop 0")
        a("s_add_u32 s92, s92, s93")
    a("s_cmp_eq_u32 s92, 256")
    a(f"s_cbranch_scc1 {Lo}")
    a("s_sleep 2")
    a("s_sub_u32 s94, s94, 1")
    a("s_cmp_lg_u32 s94, 0")
    a(f"s_cbranch_scc1 {Lp}")
    a.label(Lo)
    a("s_waitcnt lgkmcnt(0)")
    a("v_cmp_ne_u32 vcc, 32, v243")
    a("v_readfirstlane_b32 s92, v242")
    a("s_nop 2")
    a("s_cmp_eq_u64 vcc, 0")
    a("s_cselect_b32 s93, 1, 0")
    if OPTC["force_impure"]: a("s_mov_b32 s93, 0")
    a("s_lshr_b32 s94, s92, 8")
    a("s_lshl_b32 s94, s94, 5")
    a("s_and_b32 s92, s92, 31")
    a("s_or_b32 s92, s92, s94")
    a("s_cmp_eq_u32 s93, 1")
    a("s_cselect_b32 s92, s92, s2")
    a("s_lshl_b32 s93, s93, 16")
    a("s_or_b32 s92, s92, s93")
    a("v_mov_b32 v242, s92")
    a("ds_write_b32 v241, v242 offset:4")
    a("s_waitcnt lgkmcnt(0)")
    a.label(L)
def role_read(a):
    a(f"v_mov_b32 v241, {LDS_ROLE}")
    a("ds_read_b32 v242, v241 offset:4")
    a("s_waitcnt lgkmcnt(0)")
    a(f"v_readfirstlane_b32 s{S_ROLE}, v242")
    a("s_nop 3")
    a(f"s_lshr_b32 s{S_PURE}, s{S_ROLE}, 16")
    a(f"s_and_b32 s{S_ROLE}, s{S_ROLE}, 255")
```

```python
from common import *

def compute_loop(a, KS, CK, NU, P, acc, sh_regs, pv_regs, sh_reads, pv_reads, swap, sb=0):
    M = KS*NU
    NSH = len(sh_regs)
    q = []
    def issue_for(m):
        s, t = divmod(m, NU)
        if t == 0:
            for ins in sh_reads(s, sh_regs[s % NSH]): a(ins); q.append(("sh", s))
        for ins in pv_reads(s, t, pv_regs[m % P]): a(ins); q.append(("pv", m))
        assert len(q) <= 15, len(q)
    def wait_for(m):
        s, t = divmod(m, NU)
        need = [i for i, x in enumerate(q) if x == ("pv", m) or x == ("sh", s)]
        if need:
            n = len(q) - 1 - max(need)
            a(f"s_waitcnt lgkmcnt({n})")
            del q[:max(need)+1]
    chunk = lambda m: (m // NU) // CK
    stamp(a, sb+1)
    if OPTC["prio_cp"]: a(f"s_setprio {OPTC['prio_cp']}")
    a("s_barrier")
    stamp(a, sb+2)
    nxt = 0
    while nxt < min(P, M):
        issue_for(nxt); nxt += 1
    for m in range(M):
        s, t = divmod(m, NU)
        wait_for(m)
        A, B = (pv_regs[m % P], sh_regs[s % NSH])
        if swap: A, B = B, A
        c = "0" if s == 0 else f"v[{acc(t)}:{acc(t)+15}]"
        a(f"v_mfma_f32_32x32x16_bf16 v[{acc(t)}:{acc(t)+15}], v[{A}:{A+3}], v[{B}:{B+3}], {c}")
        while nxt < M and nxt <= m + P:
            if nxt % (NU*CK) == 0:
                if nxt == m + P and m + 1 < M and P > 1:
                    break
                a("s_waitcnt lgkmcnt(0)"); q.clear()
                a("s_barrier")
            issue_for(nxt); nxt += 1
    if OPTC["prio_cp"]: a("s_setprio 0")
    stamp(a, sb+3)

def b128(reg, vaddr, off):
    assert 0 <= off < 65536, off
    return [f"ds_read_b128 v[{reg}:{reg+3}], v{vaddr} offset:{off}"]
def two64(reg, v0, o0, v1, o1, tr):
    assert 0 <= o0 < 65536 and 0 <= o1 < 65536, (o0, o1)
    op = "ds_read_b64_tr_b16" if tr else "ds_read_b64"
    return [f"{op} v[{reg}:{reg+1}], v{v0} offset:{o0}", f"{op} v[{reg+2}:{reg+3}], v{v1} offset:{o1}"]

SRD_A, SRD_B, SRD_M, SRD_E0, SRD_E1, SRD_E2 = 44, 48, 52, 56, 60, 64
S_RB, S_CG, S_J = 68, 69, 70

def tr_lane_parts(a, r, nh, c):
    a(f"v_bfe_u32 v{r}, v0, 2, 2")
    a(f"v_bfe_u32 v{nh}, v0, 4, 1")
    a(f"v_and_b32 v{c}, 3, v0")

def dma(a, lds_sgpr, lds_off, vaddr, srd_, s_base, g_off, sc):
    a(f"s_add_u32 m0, s{lds_sgpr}, {lds_off}")
    a(f"s_add_u32 s75, s{s_base}, {g_off}")
    a(f"buffer_load_dwordx4 v{vaddr}, s[{srd_}:{srd_+3}], s75 offen{SC if sc else ''} lds")

def plain_loader(a, *, NC, a_issue, b_issue, n_pre_a, after_pre, deps, extra_barriers=0, sb=0, tail=None):
    vq = VmQ(a)
    if OPTC["prio_ld"]: a(f"s_setprio {OPTC['prio_ld']}")
    for c in range(n_pre_a): vq.issue(("A", c), a_issue(c))
    after_pre(vq)
    stamp(a, sb+1)
    deps()
    stamp(a, sb+2)
    for c in range(2): vq.issue(("B", c), b_issue(c))
    for c in range(NC):
        vq.wait(("B", c))
        vq.wait(("A", c))
        a("s_barrier")
        if c == 0: stamp(a, sb+3)
        if c + 2 < NC: vq.issue(("B", c+2), b_issue(c+2))
        if c + n_pre_a < NC: vq.issue(("A", c+n_pre_a), a_issue(c+n_pre_a))
    stamp(a, sb+4)
    if OPTC["prio_ld"]: a("s_setprio 0")
    if tail: tail()
    for _ in range(extra_barriers): a("s_barrier")

def lds_addr_set(a, dst, nseg, extra_v):
    for k in range(nseg):
        if k == 0: a(f"v_mov_b32 v{dst}, v{extra_v}")
        else: a(f"v_add_u32 v{dst+k}, {k*65536}, v{extra_v}")
def seg(dst, off): return (dst + off // 65536, off % 65536)

def unpack4(a, dst, src):
    a(f"v_lshlrev_b32 v{dst}, 16, v{src}")
    a(f"v_and_b32 v{dst+1}, 0xffff0000, v{src}")
    a(f"v_lshlrev_b32 v{dst+2}, 16, v{src+1}")
    a(f"v_and_b32 v{dst+3}, 0xffff0000, v{src+1}")
def one_plus_round(a, r):
    for j in range(4): a(f"v_add_f32 v{r+j}, 1.0, v{r+j}")
    a(f"v_cvt_pk_bf16_f32 v{r}, v{r}, v{r+1}")
    a(f"v_cvt_pk_bf16_f32 v{r+2}, v{r+2}, v{r+3}")
    a(f"v_and_b32 v{r+1}, 0xffff0000, v{r}")
    a(f"v_and_b32 v{r+3}, 0xffff0000, v{r+2}")
    a(f"v_lshlrev_b32 v{r}, 16, v{r}")
    a(f"v_lshlrev_b32 v{r+2}, 16, v{r+2}")
```

```python
from gemm import *
QSCALE = (20 ** -0.5) * LOG2E
OPT01 = {"tlb": False}
P0_RED, P0_TAB = 131072, 139264
P1_RB = 65536

def reduce_swap(a, op, x, t):
    a(f"v_mov_b32 v{t}, v{x}")
    a("s_nop 1")
    a(f"{op} v{x}, v{t}")
    a("s_nop 1")
    a(f"v_add_f32 v{x}, v{x}, v{t}")

def map_p1(a):
    a("s_and_b32 s71, s2, 7")
    a("s_lshr_b32 s72, s2, 3")
    a("s_lshr_b32 s73, s71, 1")
    a("s_lshl_b32 s73, s73, 2")
    a("s_and_b32 s74, s72, 3")
    a(f"s_add_u32 s{S_RB}, s73, s74")
    a("s_and_b32 s73, s71, 1")
    a("s_lshl_b32 s73, s73, 3")
    a("s_lshr_b32 s74, s72, 2")
    a(f"s_add_u32 s{S_CG}, s73, s74")

def p1_a_setup(a):
    a(f"s_sub_u32 s{S_J}, s{S_WAVE}, 4")
    a("v_lshrrev_b32 v8, 4, v0")
    a("v_bfe_u32 v9, v0, 2, 2")
    a("v_xor_b32 v9, v9, v8")
    a("v_and_b32 v10, 3, v0")
    a("v_mul_u32_u24 v56, 3840, v8")
    a("v_lshl_add_u32 v56, v9, 6, v56")
    a("v_lshl_add_u32 v56, v10, 4, v56")
    a(f"s_mul_i32 s73, s{S_J}, {16*3840}")
    a(f"s_lshl_b32 s77, s{S_CG}, 8")
    a("s_add_u32 s73, s73, s77")
    a(f"s_lshl_b32 s77, s{S_J}, 12")
def p1_a_issue(a, c):
    for n in range(4): dma(a, 77, (c % 4)*16384 + n*1024, 56, SRD_A, 73, (c*64 + 4*n)*3840, False)
    return 4

def tlb_touch(a, wave):
    Lt = a.uid("P0_notlb")
    a(f"s_cmp_lg_u32 s{S_WAVE}, {wave}")
    a(f"s_cbranch_scc1 {Lt}")
    srd(a, 88, P_WS, 0, WS_TS)
    a("v_min_u32 v103, 23, v0")
    a("v_lshlrev_b32 v103, 21, v103")
    a("buffer_load_dword v104, v103, s[88:91], 0 offen")
    srd(a, 88, P_OUT, 0, S*D*2)
    a("v_and_b32 v103, 1, v0")
    a("v_lshlrev_b32 v103, 21, v103")
    a("buffer_load_dword v105, v103, s[88:91], 0 offen")
    a.label(Lt)

def p1_prefetch(a):
    L = a.uid("P1_nopre")
    if OPT01["tlb"] and not OPTC["tlb_early"]: tlb_touch(a, 7)
    a(f"s_cmp_ge_u32 s{S_CG}, 15")
    a(f"s_cbranch_scc1 {L}")
    p1_a_setup(a)
    for c in range(3): p1_a_issue(a, c)
    a(f"s_and_b32 s84, s{S_RB}, 3")
    a("s_mul_i32 s84, s84, 112")
    a(f"s_mul_i32 s85, s{S_J}, 28")
    a("s_add_u32 s84, s84, s85")
    a("s_add_u32 s84, s84, 192")
    a("s_mul_i32 s84, s84, 3840")
    a(f"s_lshl_b32 s85, s{S_CG}, 8")
    a("s_add_u32 s84, s84, s85")
    a("v_lshrrev_b32 v100, 1, v0")
    a("v_min_u32 v100, 27, v100")
    a("v_mul_u32_u24 v100, 3840, v100")
    a("v_and_b32 v101, 1, v0")
    a("v_lshl_add_u32 v100, v101, 7, v100")
    a(f"buffer_load_dword v102, v100, s[{SRD_A}:{SRD_A+3}], s84 offen")
    a.label(L)

def mod_job_critical(a):
    srd(a, 56, P_WMOD, 0, 640*3840*2)
    srd(a, 60, P_C, 0, 640*2)
    a("s_and_b32 s84, s2, 7")
    a("s_lshr_b32 s85, s2, 3")
    a("s_mul_i32 s86, s84, 10")
    a("s_add_u32 s86, s86, s85")
    a("s_mul_i32 s87, s84, 20")
    a("s_add_u32 s87, s87, s85")
    a("s_add_u32 s87, s87, 70")
    a("s_cmp_lt_u32 s85, 10")
    a("s_cselect_b32 s86, s86, s87")
    a("v_lshrrev_b32 v2, 1, v0")
    a("v_and_b32 v3, 1, v0")
    a(f"s_mul_i32 s87, s{S_J}, 160")
    a("v_add_u32 v4, s87, v2")
    a("v_lshlrev_b32 v5, 1, v4")
    a("s_movk_i32 s87, 7680")
    a("v_mul_lo_u32 v6, v4, s87")
    a("s_lshl_b32 s88, s86, 5")
    a("v_lshl_add_u32 v6, v3, 4, v6")
    a("v_add_u32 v6, s88, v6")
    for m in range(5): a(f"buffer_load_ushort v{8+m}, v5, s[60:63], 0 offen offset:{64*m}")
    for m in range(5):
        a(f"s_mov_b32 s87, {m*32*7680}")
        a(f"buffer_load_dwordx4 v[{16+4*m}:{19+4*m}], v6, s[56:59], s87 offen")
    stamp(a, 54)
    a("s_waitcnt vmcnt(5)")
    stamp(a, 55)
    kernel_nonce(a)
    silu_bf16(a, 8, 40, 5)
    for m in range(5):
        a(f"s_waitcnt vmcnt({4-m})")
        for j in range(4):
            a(f"v_lshlrev_b32 v46, 16, v{16+4*m+j}")
            a(f"v_and_b32 v47, 0xffff0000, v{16+4*m+j}")
            op = "v_mul_f32" if m == 0 else "v_fmac_f32"
            a(f"{op} v{48+2*j}, v{8+m}, v46")
            a(f"{op} v{49+2*j}, v{8+m}, v47")
    stamp(a, 56)
    a(f"s_lshl_b32 s87, s{S_J}, 11")
    a(f"s_add_u32 s87, s87, {P0_RED}")
    a("v_lshlrev_b32 v7, 5, v0")
    a("v_add_u32 v7, s87, v7")
    a("ds_write_b128 v7, v[48:51]")
    a("ds_write_b128 v7, v[52:55] offset:16")
    a("s_waitcnt lgkmcnt(0)")

def silu_bf16(a, x, t, n):
    for m in range(n): a(f"v_lshlrev_b32 v{x+m}, 16, v{x+m}")
    for m in range(n): a(f"v_mul_f32 v{t+m}, {fl(-LOG2E)}, v{x+m}")
    for m in range(n): a(f"v_exp_f32 v{t+m}, v{t+m}")
    a("s_nop 0")
    for m in range(n): a(f"v_add_f32 v{t+m}, 1.0, v{t+m}")
    for m in range(n): a(f"v_rcp_f32 v{t+m}, v{t+m}")
    a("s_nop 0")
    for m in range(n): a(f"v_mul_f32 v{x+m}, v{x+m}, v{t+m}")
    for m in range(n): a(f"v_cvt_pk_bf16_f32 v{x+m}, v{x+m}, v{x+m}")
    for m in range(n): a(f"v_and_b32 v{x+m}, 0xffff0000, v{x+m}")

def gen_p01(a):
    L_ld, L_A, L_B, L_D = a.uid("P0_ld"), a.uid("P0_A"), a.uid("P0_B"), a.uid("P0_D")
    code_touch(a, 7)
    kernel_setup(a)
    map_p1(a)
    srd(a, SRD_A, P_WQKV, 0, 640*1920*2)
    a(f"s_cmp_ge_u32 s{S_WAVE}, 4")
    a(f"s_cbranch_scc1 {L_ld}")
    srd(a, 56, P_X, 0, S*D*2)
    srd(a, 60, P_WS, WS_HF, SZ_HF)
    a("s_lshl_b32 s85, s2, 3")
    a(f"s_lshl_b32 s86, s{S_WAVE}, 1")
    a("s_add_u32 s85, s85, s86")
    a("v_lshrrev_b32 v2, 5, v0")
    a("v_and_b32 v3, 31, v0")
    a("v_add_u32 v4, s85, v2")
    a("s_movk_i32 s87, 1280")
    a("v_mul_lo_u32 v5, v4, s87")
    a("v_lshl_add_u32 v5, v3, 3, v5")
    for m in range(5): a(f"buffer_load_dwordx2 v[{8+2*m}:{9+2*m}], v5, s[56:59], 0 offen offset:{256*m}")
    if OPTC["xcd"]:
        Lr = a.uid("P0_reg")
        a(f"s_cmp_lg_u32 s{S_WAVE}, 3")
        a(f"s_cbranch_scc1 {Lr}")
        role_register(a)
        a.label(Lr)
    a("s_barrier")
    a("s_waitcnt vmcnt(0)")
    kernel_nonce(a)
    if OPTC["xcd"]:
        Lr = a.uid("P0_reg2")
        a(f"s_cmp_lg_u32 s{S_WAVE}, 3")
        a(f"s_cbranch_scc1 {Lr}")
        role_register_finish(a)
        a.label(Lr)
    for m in range(5):
        for j in range(2):
            a(f"v_lshlrev_b32 v{20+4*m+2*j}, 16, v{8+2*m+j}")
            a(f"v_and_b32 v{21+4*m+2*j}, 0xffff0000, v{8+2*m+j}")
    def tree_sum(dst, src0, n, tmp):
        a(f"v_add_f32 v{tmp}, v{src0}, v{src0+1}")
        a(f"v_add_f32 v{tmp+1}, v{src0+2}, v{src0+3}")
        for r in range(4, n, 2):
            a(f"v_add_f32 v{tmp}, v{tmp}, v{src0+r}")
            a(f"v_add_f32 v{tmp+1}, v{tmp+1}, v{src0+r+1}")
        a(f"v_add_f32 v{dst}, v{tmp}, v{tmp+1}")
    def reduce32(x, t):
        for sh in (8, 4, 2, 1):
            a("s_nop 1")
            a(f"v_add_f32_dpp v{x}, v{x}, v{x} row_ror:{sh} row_mask:0xf bank_mask:0xf")
        reduce_swap(a, "v_permlane16_swap_b32", x, t)
    tree_sum(40, 20, 20, 42)
    reduce32(40, 41)
    a(f"v_mul_f32 v40, {fl(1.0/640)}, v40")
    for r in range(20): a(f"v_sub_f32 v{20+r}, v{20+r}, v40")
    a("v_mul_f32 v42, v20, v20")
    a("v_mul_f32 v43, v21, v21")
    for r in range(2, 20, 2):
        a(f"v_fmac_f32 v42, v{20+r}, v{20+r}")
        a(f"v_fmac_f32 v43, v{21+r}, v{21+r}")
    a("v_add_f32 v41, v42, v43")
    reduce32(41, 42)
    a(f"v_mov_b32 v42, {fl(1e-5)}")
    a(f"v_fmac_f32 v42, {fl(1.0/640)}, v41")
    a("v_rsq_f32 v42, v42")
    a("s_nop 0")
    for r in range(20): a(f"v_mul_f32 v{20+r}, v{20+r}, v42")
    a("v_lshlrev_b32 v6, 4, v3")
    a(f"v_add_u32 v6, {P0_TAB}, v6")
    if OPTC["h16"]:
        a("v_and_b32 v49, 1, v3")
        a("v_cmp_eq_u32 s[90:91], 0, v49")
        a("v_mul_u32_u24 v48, 248, v49")
        a("v_add_u32 v48, v48, v5")
    stamp(a, 1)
    a("s_barrier")
    stamp(a, 3)
    for m in range(5):
        a(f"ds_read_b128 v[{60+8*m}:{63+8*m}], v6 offset:{512*m}")
        a(f"ds_read_b128 v[{64+8*m}:{67+8*m}], v6 offset:{2560+512*m}")
    for m in range(5):
        a(f"s_waitcnt lgkmcnt({8-2*m})")
        for j in range(4): a(f"v_fma_f32 v{20+4*m+j}, v{20+4*m+j}, v{60+8*m+j}, v{64+8*m+j}")
        a(f"v_cvt_pk_bf16_f32 v{8+2*m}, v{20+4*m}, v{21+4*m}")
        a(f"v_cvt_pk_bf16_f32 v{9+2*m}, v{22+4*m}, v{23+4*m}")
        if not OPTC["h16"] or m == 4:
            a(f"buffer_store_dwordx2 v[{8+2*m}:{9+2*m}], v5, s[60:63], 0 offen offset:{256*m}{SC}")
        elif m % 2 == 1:
            e0, o0, t = 8+2*(m-1), 8+2*m, 44
            for r in range(2): a(f"v_cndmask_b32 v{t+r}, v{e0+r}, v{o0+r}, s[90:91]")
            a("s_nop 1")
            for r in range(2): a(f"v_mov_b32_dpp v{t+2+r}, v{t+r} quad_perm:[1,0,3,2] row_mask:0xf bank_mask:0xf")
            q = 100 + 4*(m//2)
            for r in range(2):
                a(f"v_cndmask_b32 v{q+r}, v{t+2+r}, v{e0+r}, s[90:91]")
                a(f"v_cndmask_b32 v{q+2+r}, v{o0+r}, v{t+2+r}, s[90:91]")
            a(f"buffer_store_dwordx4 v[{q}:{q+3}], v48, s[60:63], 0 offen offset:{256*(m-1)}{SC}")
    a("s_waitcnt vmcnt(0)")

    a(f"s_branch {L_D}")

    a.label(L_ld)
    a(f"s_sub_u32 s{S_J}, s{S_WAVE}, 4")
    L_nomod = a.uid("P0_nomod")
    a("s_cmp_ge_u32 s2, 240")
    a(f"s_cbranch_scc1 {L_nomod}")
    mod_job_critical(a)
    a(f"s_branch {L_A}")
    a.label(L_nomod)
    a("s_waitcnt vmcnt(0)")
    kernel_nonce(a)
    a.label(L_A)
    stamp(a, 1)
    a("s_barrier")
    L_w0, L_w12, L_pre = a.uid("P0_w0"), a.uid("P0_w1"), a.uid("P0_pre")
    a(f"s_cmp_eq_u32 s{S_J}, 0")
    a(f"s_cbranch_scc1 {L_w0}")
    a(f"s_cmp_eq_u32 s{S_J}, 3")
    a(f"s_cbranch_scc1 {L_pre}")
    a(f"s_branch {L_w12}")
    a.label(L_w0)
    a("s_cmp_ge_u32 s2, 240")
    a(f"s_cbranch_scc1 {L_pre}")
    srd(a, 56, P_WS, WS_MODG, SZ_MODG)
    a("v_and_b32 v3, 3, v0")
    a("v_lshrrev_b32 v2, 2, v0")
    a("v_lshlrev_b32 v7, 9, v2")
    a("v_lshl_add_u32 v7, v3, 4, v7")
    a(f"v_add_u32 v7, {P0_RED}, v7")
    for r in range(8): a(f"ds_read_b128 v[{64+4*r}:{67+4*r}], v7 offset:{r*64}")
    for r in range(1, 8):
        a(f"s_waitcnt lgkmcnt({7-r})")
        for j in range(4): a(f"v_add_f32 v{64+j}, v{64+j}, v{64+4*r+j}")
    for sh in (4, 8):
        a("s_nop 1")
        for j in range(4): a(f"v_add_f32_dpp v{64+j}, v{64+j}, v{64+j} row_ror:{sh} row_mask:0xf bank_mask:0xf")
    for op in ("v_permlane16_swap_b32", "v_permlane32_swap_b32"):
        for j in range(4): a(f"v_mov_b32 v{68+j}, v{64+j}")
        a("s_nop 1")
        for j in range(4): a(f"{op} v{64+j}, v{68+j}")
        a("s_nop 1")
        for j in range(4): a(f"v_add_f32 v{64+j}, v{64+j}, v{68+j}")
    a("v_cvt_pk_bf16_f32 v72, v64, v65")
    a("v_cvt_pk_bf16_f32 v73, v66, v67")
    a(f"v_mov_b32 v74, s{S_NONCE}")
    a("v_mov_b32 v75, 0")
    a("v_lshlrev_b32 v7, 4, v3")
    a(f"v_mul_u32_u24 v76, {MODG_REP}, v2")
    a("v_add_u32 v7, v7, v76")
    a("s_lshl_b32 s87, s86, 6")
    exec_lo32(a)
    a(f"buffer_store_dwordx4 v[72:75], v7, s[56:59], s87 offen{SC}")
    exec_all(a)
    a(f"s_branch {L_pre}")
    a.label(L_w12)
    srd(a, 56, P_WS, WS_MODG, SZ_MODG)
    a("s_and_b32 s84, s2, 7")
    a(f"s_mul_i32 s84, s84, {MODG_REP}")
    a(f"s_sub_u32 s85, s{S_J}, 1")
    a("s_mul_i32 s86, s85, 2560")
    a("s_add_u32 s84, s84, s86")
    a("v_lshlrev_b32 v7, 4, v0")
    a("v_add_u32 v8, 128, v0")
    a("v_min_u32 v8, 159, v8")
    a("v_lshlrev_b32 v8, 4, v8")
    loads = [f"buffer_load_dwordx4 v[16:19], v7, s[56:59], s84 offen{SC}",
             f"buffer_load_dwordx4 v[20:23], v7, s[56:59], s84 offen offset:1024{SC}",
             f"buffer_load_dwordx4 v[24:27], v8, s[56:59], s84 offen{SC}"]
    poll_granules(a, loads, [18, 22, 26], "P0_mod", sleep=OPTC["mod_sleep"])
    stamp(a, 2)
    a("s_cmp_eq_u32 s85, 0")
    a(f"s_mov_b32 s86, {P0_TAB}")
    a(f"s_cselect_b32 s86, {P0_TAB+2560}, s86")
    a("v_add_u32 v7, s86, v7")
    a("v_add_u32 v8, s86, v8")
    L_plain = a.uid("P0_plain")
    for n in range(3): unpack4(a, 40+4*n, 16+4*n)
    a("s_cmp_eq_u32 s85, 0")
    a(f"s_cbranch_scc1 {L_plain}")
    for n in range(3): one_plus_round(a, 40+4*n)
    a.label(L_plain)
    a("ds_write_b128 v7, v[40:43]")
    a("ds_write_b128 v7, v[44:47] offset:1024")
    a("ds_write_b128 v8, v[48:51]")
    a("s_waitcnt lgkmcnt(0)")
    a("s_barrier")
    p1_prefetch(a)
    a(f"s_branch {L_D}")
    a.label(L_pre)
    p1_prefetch(a)
    a("s_barrier")
    a.label(L_D)
    a("s_barrier")
    signal(a, 0, 2)
    stamp(a, 4)

    L_end = a.uid("P1_end")
    L_spare = a.uid("P1_spare")
    a(f"s_cmp_ge_u32 s{S_CG}, 15")
    a(f"s_cbranch_scc1 {L_spare}")
    lane_consts(a)
    L_comp, L_fin = a.uid("P1_comp"), a.uid("P1_fin")
    a(f"s_cmp_lt_u32 s{S_WAVE}, 4")
    a(f"s_cbranch_scc1 {L_comp}")
    p1_a_setup(a)
    srd(a, SRD_B, P_WS, WS_HF, SZ_HF)
    a("v_lshrrev_b32 v8, 3, v0")
    a("v_mul_u32_u24 v8, 1280, v8")
    a("v_and_b32 v9, 7, v0")
    a("v_lshrrev_b32 v10, 4, v0")
    a("v_xor_b32 v11, v9, v10")
    a("v_lshl_add_u32 v57, v11, 4, v8")
    a("v_xor_b32 v11, 4, v11")
    a("v_lshl_add_u32 v58, v11, 4, v8")
    a(f"s_lshl_b32 s72, s{S_J}, 12")
    a(f"s_lshl_b32 s74, s{S_RB}, 7")
    a(f"s_lshl_b32 s76, s{S_J}, 5")
    a("s_add_u32 s74, s74, s76")
    a("s_mul_i32 s74, s74, 1280")
    def a_issue(c):
        if c < 3: return 4 + (c == 2)
        return p1_a_issue(a, c)
    def b_issue(c):
        for p in range(4): dma(a, 72, P1_RB + (c % 3)*16384 + p*1024, 57 + p % 2, SRD_B, 74, p*8*1280 + c*128, True)
        return 4
    plain_loader(a, NC=10, a_issue=a_issue, b_issue=b_issue, n_pre_a=3, after_pre=lambda vq: None,
                 deps=lambda: a("s_barrier"), sb=8)
    a(f"s_branch {L_fin}")
    a.label(L_comp)
    a(f"s_lshl_b32 s71, s{S_WAVE}, 12")
    a(f"s_add_u32 s71, s71, {P1_RB}")
    a("v_lshlrev_b32 v8, 7, v2")
    a("v_add_u32 v8, s71, v8")
    a("v_bfe_u32 v9, v2, 1, 3")
    for sp in range(4):
        a(f"v_add_u32 v10, {2*sp}, v3")
        a("v_xor_b32 v10, v10, v9")
        a(f"v_lshl_add_u32 v{44+sp}, v10, 4, v8")
    tr_lane_parts(a, 8, 9, 10)
    a("v_lshl_add_u32 v11, v3, 3, v8")
    a("v_lshlrev_b32 v11, 8, v11")
    a("v_lshl_add_u32 v11, v9, 5, v11")
    a("v_lshl_add_u32 v11, v10, 3, v11")
    for T in range(4):
        a(f"v_xor_b32 v12, {T}, v8")
        a(f"v_lshl_add_u32 v{40+T}, v12, 6, v11")
    a(f"s_lshl_b32 s72, s{S_RB}, 2")
    a(f"s_add_u32 s72, s72, s{S_WAVE}")
    ACC = 64
    def pv_reads(s, t, reg):
        o = ((s//4) % 4)*16384 + (s % 4)*4096
        return two64(reg, 40+t, o, 40+t, o + 1024, True)
    args = dict(KS=40, CK=4, NU=4, P=4, acc=lambda t: ACC+16*t, sh_regs=[32, 36], pv_regs=[16, 20, 24, 28],
                sh_reads=lambda s, reg: b128(reg, 44 + s % 4, ((s//4) % 3)*16384), pv_reads=pv_reads, sb=8)
    def deps():
        a(f"s_lshl_b32 s71, s{S_RB}, 4")
        a("v_and_b32 v240, 15, v0")
        a("v_add_u32 v240, s71, v240")
        if OPTC["xcd"]: role_resolve(a, 1)
        wait_flags(a, [240], 0)
        a("s_barrier")
    L_v = a.uid("P1_v")
    a(f"s_cmp_ge_u32 s{S_CG}, 10")
    a(f"s_cbranch_scc1 {L_v}")
    a(f"s_mov_b32 s73, {KVT}")
    a(f"s_mov_b32 s74, {WS_KV}")
    a(f"s_cmp_lt_u32 s{S_CG}, 5")
    a(f"s_cselect_b32 s73, {QT}, s73")
    a(f"s_cselect_b32 s74, {WS_Q}, s74")
    a(f"s_cselect_b32 s76, {fl(QSCALE)}, 1.0")
    a("s_cselect_b32 s75, 0, 5")
    a(f"s_sub_u32 s75, s{S_CG}, s75")
    a(f"s_add_u32 s{SRD_E0}, s{P_WS}, s74")
    a(f"s_addc_u32 s{SRD_E0+1}, s{P_WS+1}, 0")
    a(f"s_mov_b32 s{SRD_E0+2}, {hex(SZ_KV)}")
    a(f"s_mov_b32 s{SRD_E0+3}, 0x20000")
    a("s_mul_i32 s78, s72, s73")
    a("s_lshl_b32 s79, s73, 6")
    a("s_lshl_b32 s80, s75, 5")
    a("v_add_u32 v5, s80, v3")
    a("v_lshlrev_b32 v6, 3, v2")
    for T in range(4):
        for g in range(4):
            o = 128 + 4*T + g
            a(f"v_add_u32 v8, {8*T+2*g}, v5")
            a("v_mul_u32_u24 v9, 0xcccd, v8")
            a("v_lshrrev_b32 v9, 18, v9")
            a("v_mul_u32_u24 v10, 5, v9")
            a("v_sub_u32 v10, v8, v10")
            a(f"v_mul_lo_u32 v{o}, v9, s79")
            a("v_lshl_add_u32 v10, v10, 8, v6")
            a(f"v_add_u32 v{o}, v{o}, v10")
    deps()
    compute_loop(a, swap=False, **args)
    a.nop(12)
    L_ns = a.uid("P1_noscale")
    a(f"s_cmp_ge_u32 s{S_CG}, 5")
    a(f"s_cbranch_scc1 {L_ns}")
    for r in range(64): a(f"v_mul_f32 v{ACC+r}, s76, v{ACC+r}")
    a.label(L_ns)
    for T in range(4):
        for g in range(4):
            r = ACC + 16*T + 4*g
            p = 16 + 2*((4*T+g) % 8)
            a(f"v_cvt_pk_bf16_f32 v{p}, v{r}, v{r+1}")
            a(f"v_cvt_pk_bf16_f32 v{p+1}, v{r+2}, v{r+3}")
            a(f"buffer_store_dwordx2 v[{p}:{p+1}], v{128+4*T+g}, s[{SRD_E0}:{SRD_E0+3}], s78 offen{SC}")
    a(f"s_branch {L_fin}")
    a.label(L_v)
    srd(a, SRD_E0, P_WS, WS_KV, SZ_KV)
    a(f"s_mul_i32 s78, s72, {KVT}")
    a(f"s_sub_u32 s75, s{S_CG}, 10")
    a("s_lshl_b32 s80, s75, 7")
    a("v_add_u32 v5, s80, v2")
    a("v_mul_u32_u24 v6, 320, v3")
    a(f"s_mov_b32 s79, {64*KVT}")
    for T in range(4):
        a(f"v_add_u32 v8, {32*T}, v5")
        a("v_mul_u32_u24 v9, 0xcccd, v8")
        a("v_lshrrev_b32 v9, 20, v9")
        a("v_mul_u32_u24 v10, 20, v9")
        a("v_sub_u32 v10, v8, v10")
        a(f"v_mul_lo_u32 v{128+T}, v9, s79")
        a(f"v_lshl_add_u32 v{128+T}, v10, 4, v{128+T}")
        a(f"v_add_u32 v{128+T}, v{128+T}, v6")
    deps()
    compute_loop(a, swap=True, **args)
    a.nop(12)
    for T in range(4):
        for tp in range(2):
            r = ACC + 16*T + 8*tp
            p = 16 + 4*((2*T+tp) % 4)
            for j in range(4): a(f"v_cvt_pk_bf16_f32 v{p+j}, v{r+2*j}, v{r+2*j+1}")
            a(f"buffer_store_dwordx4 v[{p}:{p+3}], v{128+T}, s[{SRD_E0}:{SRD_E0+3}], s78 offen offset:{1280+640*tp}{SC}")
    a.label(L_fin)
    stamp(a, 14)
    a("s_waitcnt vmcnt(0)")
    a("s_barrier")
    a(f"s_lshl_b32 s71, s{S_CG}, 4")
    a(f"s_add_u32 s71, s71, s{S_RB}")
    signal(a, 1, 71)
    a(f"s_branch {L_end}")
    a.label(L_spare)
    if OPTC["xcd"]:
        role_resolve(a, 1)
        a("s_barrier")
    a.label(L_end)
    if OPTC["xcd"]: role_read(a)
    stamp(a, 15)
```

```python
from gemm import *

CH = 40960
ONES = 3*CH
LDS_P2 = 4*CH
Q1, Q2, CM, SA, SB, OA = 8, 12, 16, 32, 48, 64
P0, P1 = 80, 84
KB = [(88, 92), (96, 100)]
VB = [(104, 108), (112, 116)]
AK1, AK2, AV = 120, 123, 126
SRD_Q, SRD_KV, SRD_O = 44, 48, 52
S_HEAD, S_TQ = 68, 69
OPT = {"prio": 0, "sched": 1}

def exps(S): return [f"v_exp_f32 v{S+i}, v{S+i}" for i in range(16)]
def cvt(S, i): return f"v_cvt_pk_bf16_f32 v{(P0 if i < 8 else P1) + (i//2) % 4}, v{S+i}, v{S+i+1}"
def qk1(a, S, kb):  a(f"v_mfma_f32_32x32x16_bf16 v[{S}:{S+15}], v[{kb[0]}:{kb[0]+3}], v[{Q1}:{Q1+3}], v[{CM}:{CM+15}]")
def qk2(a, S, kb):  a(f"v_mfma_f32_32x32x8bf16_1k v[{S}:{S+15}], v[{kb[1]}:{kb[1]+1}], v[{Q2}:{Q2+1}], v[{S}:{S+15}]")
def pv(a, vreg, P, first=False):
    c = "0" if first else f"v[{OA}:{OA+15}]"
    a(f"v_mfma_f32_32x32x16_bf16 v[{OA}:{OA+15}], v[{vreg}:{vreg+3}], v[{P}:{P+3}], {c}")
V1B = [108, 116, 132]
def v1reg(t): return V1B[t % 3] if OPTC["lean"] else VB[t % 2][1]
def rdK(a, t):
    c, tl = divmod(t, 16); kb = KB[t % 2]
    if OPTC["lean"]:
        a(f"ds_read2st64_b64 v[{kb[0]}:{kb[0]+3}], v{AK1 + c % 3} offset0:{5*tl} offset1:{5*tl+1}")
    else:
        a(f"ds_read_b64 v[{kb[0]}:{kb[0]+1}], v{AK1 + c % 3} offset:{tl*KVT}")
        a(f"ds_read_b64 v[{kb[0]+2}:{kb[0]+3}], v{AK1 + c % 3} offset:{tl*KVT + 512}")
    a(f"ds_read_b64 v[{kb[1]}:{kb[1]+1}], v{AK2 + c % 3} offset:{tl*KVT}")
def rdV(a, t, tp):
    c, tl = divmod(t, 16); r = VB[t % 2][0] if tp == 0 else v1reg(t)
    a(f"ds_read_b128 v[{r}:{r+3}], v{AV + c % 3} offset:{tl*KVT + 1280 + 640*tp}")

def deps_p2(a):
    a(f"s_mul_i32 s71, s{S_HEAD}, 20")
    a("s_lshr_b32 s72, s71, 7")
    a("s_add_u32 s71, s71, 19")
    a("s_lshr_b32 s71, s71, 7")
    a("v_min_u32 v242, 47, v0")
    a("v_lshrrev_b32 v243, 4, v242")
    a("v_mul_u32_u24 v243, 80, v243")
    a("v_and_b32 v242, 15, v242")
    a("v_add_u32 v242, v242, v243")
    a("s_lshl_b32 s72, s72, 4")
    a("s_lshl_b32 s71, s71, 4")
    a("v_add_u32 v240, s72, v242")
    a("v_add_u32 v241, s71, v242")
    wait_flags(a, [240, 241], 1)

def gen_p2(a):
    if OPTC["xcd"] and OPTC["att_local"]:
        a(f"s_and_b32 s{S_HEAD}, s{S_ROLE}, 31")
        a(f"s_lshr_b32 s72, s{S_ROLE}, 5")
    else:
        a(f"s_and_b32 s{S_HEAD}, s2, 31")
        a("s_lshr_b32 s72, s2, 5")
    a("s_lshl_b32 s72, s72, 3")
    a(f"s_add_u32 s{S_TQ}, s72, s{S_WAVE}")
    srd(a, SRD_Q, P_WS, WS_Q, SZ_Q)
    srd(a, SRD_KV, P_WS, WS_KV, SZ_KV)
    srd(a, SRD_O, P_WS, WS_O, SZ_O)
    lane_consts(a)
    vq = VmQ(a)
    if OPTC["zero_rows"]:
        a("v_and_b32 v6, 15, v0")
        a("v_mov_b32 v7, 0x1221")
        a("v_lshrrev_b32 v7, v6, v7")
        a("v_and_b32 v7, 1, v7")
        a("v_mul_u32_u24 v7, 0x3f80, v7")
        a("v_lshl_or_b32 v7, v7, 16, v7")
        for j in range(4): a(f"v_mov_b32 v{SA+j}, v7")
    else:
        for j in range(4): a(f"v_mov_b32 v{SA+j}, 0x3f803f80")
    a("v_lshrrev_b32 v6, 4, v0")
    a(f"s_lshl_b32 s74, s{S_WAVE}, 2")
    a("v_add_u32 v6, s74, v6")
    a("v_lshrrev_b32 v7, 1, v6")
    a(f"v_mul_u32_u24 v7, {KVT}, v7")
    a("v_and_b32 v6, 1, v6")
    a("v_mul_u32_u24 v6, 640, v6")
    a("v_add_u32 v7, v7, v6")
    a("v_and_b32 v6, 15, v0")
    a("v_lshl_add_u32 v7, v6, 4, v7")
    a(f"v_add_u32 v7, {ONES+1280}, v7")
    a(f"ds_write_b128 v7, v[{SA}:{SA+3}]")
    a("v_lshlrev_b32 v4, 3, v2")
    a("v_add_u32 v4, 1024, v4")
    a("v_mul_u32_u24 v6, 320, v3")
    a("v_lshl_add_u32 v6, v2, 4, v6")
    a("v_cmp_gt_u32 vcc, 28, v2")
    a("v_mov_b32 v7, 192")
    a("v_mov_b32 v14, 64")
    a("v_cndmask_b32 v7, v7, v14, vcc")
    a("v_lshlrev_b32 v14, 6, v3")
    a("v_add_u32 v7, v7, v14")
    a("v_and_b32 v7, 255, v7")
    if OPTC["zero_rows"]:
        a("v_cmp_eq_u32 vcc, 24, v2")
        a("v_add_u32 v14, 16, v7")
        a("s_nop 0")
        a("v_cndmask_b32 v7, v7, v14, vcc")
        a("v_cmp_lt_u32 vcc, 28, v2")
        a("v_add_u32 v14, 16, v7")
        a("s_nop 0")
        a("v_cndmask_b32 v7, v7, v14, vcc")
    a(f"v_add_u32 v7, {ONES}, v7")
    a("v_cmp_gt_u32 vcc, 20, v2")
    a("v_lshlrev_b32 v129, 3, v2")
    a("v_lshl_add_u32 v129, v3, 8, v129")
    for sl in range(3):
        a(f"v_add_u32 v{AK1+sl}, {sl*CH}, v129")
        a(f"v_add_u32 v{AK2+sl}, {sl*CH}, v4")
        if OPTC["zero_k2"]:
            a("v_cmp_eq_u32 s[82:83], 0, v3")
            a(f"v_mov_b32 v15, {ONES + 1280 + 16}")
            a("s_nop 0")
            a(f"v_cndmask_b32 v{AK2+sl}, v15, v{AK2+sl}, s[82:83]")
        a(f"v_add_u32 v14, {sl*CH}, v6")
        a(f"v_cndmask_b32 v{AV+sl}, v7, v14, vcc")
    a(f"s_lshl_b32 s71, s{S_HEAD}, 6")
    a(f"s_add_u32 s71, s71, s{S_TQ}")
    a(f"s_mul_i32 s76, s71, {QT}")
    a(f"s_mul_i32 s77, s{S_HEAD}, {64*KVT}")
    a(f"s_lshl_b32 s73, s{S_WAVE}, 10")
    a("v_add_u32 v5, s73, v1")
    a(f"v_mov_b32 v{Q2}, 0")
    a(f"v_mov_b32 v{Q2+1}, 0")
    retile_setup(a)
    deps_p2(a); a("s_barrier")
    stamp(a, 16)
    def ld_qk(r1, r2, srd_, soff, mask2):
        a(f"buffer_load_dwordx2 v[{r1}:{r1+1}], v129, s[{srd_}:{srd_+3}], s{soff} offen{SC}")
        a(f"buffer_load_dwordx2 v[{r1+2}:{r1+3}], v129, s[{srd_}:{srd_+3}], s{soff} offen offset:512{SC}")
        if mask2: exec_lo32(a)
        a(f"buffer_load_dwordx2 v[{r2}:{r2+1}], v4, s[{srd_}:{srd_+3}], s{soff} offen{SC}")
        if mask2: exec_all(a)
    ld_qk(Q1, Q2, SRD_Q, 76, True); vq.issue("Q", 3)
    ld_qk(KB[0][0], KB[0][1], SRD_KV, 77, False); vq.issue("Q", 3)
    def dmac(c, lo=0, hi=5):
        for n in range(lo, hi):
            a(f"s_add_u32 m0, s73, {(c % 3)*CH + n*8192}")
            a(f"s_add_u32 s74, s77, {c*CH + n*8192}")
            a(f"buffer_load_dwordx4 v5, s[{SRD_KV}:{SRD_KV+3}], s74 offen{SC} lds")
            vq.issue(("C", c, n))
    if OPTC["fast_start"]:
        dmac(0, 0, 1)
        dmac(0, 1, 5)
    else: dmac(0)
    def max16(dst, S, init=True):
        if init: a(f"v_max3_f32 v{dst}, v{S}, v{S+1}, v{S+2}")
        else:
            a(f"v_max3_f32 v{dst}, v{dst}, v{S}, v{S+1}")
            a(f"v_max_f32 v{dst}, v{dst}, v{S+2}")
        for i in range(3, 15, 2): a(f"v_max3_f32 v{dst}, v{dst}, v{S+i}, v{S+i+1}")
        a(f"v_max_f32 v{dst}, v{dst}, v{S+15}")
    def set_cm(m):
        a(f"v_mov_b32 v14, v{m}")
        a("s_nop 1")
        a(f"v_permlane32_swap_b32 v{m}, v14")
        a("s_nop 1")
        a(f"v_max_f32 v{m}, v{m}, v14")
        for i in range(16): a(f"v_sub_f32 v{CM+i}, 0, v{m}")
    vq.wait("Q")
    stamp(a, 17)
    a(f"v_mfma_f32_32x32x16_bf16 v[{SA}:{SA+15}], v[{KB[0][0]}:{KB[0][0]+3}], v[{Q1}:{Q1+3}], 0")
    qk2(a, SA, KB[0])
    dmac(1)
    a.nop(2)
    max16(15, SA)
    set_cm(15)
    stamp(a, 18)
    vq.wait(("C", 0, 0) if OPTC["fast_start"] else ("C", 0, 4))
    a("s_waitcnt lgkmcnt(0)")
    a("s_barrier")
    stamp(a, 19)
    if OPTC["prio_at"]:
        L = a.uid("prio")
        a(f"s_cmp_lt_u32 s{S_WAVE}, 4")
        a(f"s_cbranch_scc1 {L}")
        a("s_setprio 1")
        a.label(L)
    rdK(a, 0); rdK(a, 1); rdV(a, 0, 0); rdV(a, 0, 1)
    if not OPTC["spread"]: dmac(2)
    a(f"s_waitcnt lgkmcnt({4 if OPTC['lean'] else 5})")
    qk1(a, SA, KB[0]); qk2(a, SA, KB[0])
    a.nop(8)
    NT = 64
    for t in range(NT):
        S = SA if t % 2 == 0 else SB
        SN = SB if t % 2 == 0 else SA
        nxt = t + 1 < NT
        if t == 1 and OPTC["fast_start"]:
            vq.wait(("C", 0, 4))
            a("s_barrier")
        if t % 16 == 14 and t + 2 < NT:
            c1 = t // 16 + 1
            if c1 == 1: vq.wait(("C", 1, 4))
            else: vq.drain()
            a("s_barrier")
            if c1 == 3:
                signal(a, 5, 2)
                code_touch(a, 7)
        side = None
        if OPTC["spread"]:
            if t < 5: side = lambda: dmac(2, t, t+1)
            elif 15 <= t < 20: side = lambda: retile_load(a, t-15)
            elif 31 <= t < 36: side = lambda: dmac(3, t-31, t-30)
            elif 36 <= t < 41: side = lambda: retile_store(a, t-36)
        else:
            if t == 14:
                for p in range(5): retile_load(a, p)
            if t == 30:
                dmac(3)
                for p in range(5): retile_store(a, p)
        e = exps(S); c = {i: cvt(S, i) for i in range(0, 16, 2)}
        lean = OPTC["lean"]
        a(f"s_waitcnt lgkmcnt({0 if lean else 2})")
        if nxt: qk1(a, SN, KB[(t+1) % 2])
        if t + 2 < NT: rdK(a, t+2)
        elif nxt: a("s_nop 1")
        else: a.nop(2)
        if lean and nxt: rdV(a, t+1, 0); rdV(a, t+1, 1)
        for x in [e[0], e[1], e[2], c[0], e[3], e[4]]: a(x)
        if t > 0: pv(a, v1reg(t-1), P1, first=False)
        if side: side()
        if nxt and not lean: rdV(a, t+1, 0); rdV(a, t+1, 1)
        for x in [c[2], e[5], e[6], c[4], e[7], e[8]]: a(x)
        if nxt: qk2(a, SN, KB[(t+1) % 2])
        for x in [c[6], e[9], e[10], c[8], e[11], e[12]]: a(x)
        if not lean:
            n_out = (3 if t + 2 < NT else 0) + (2 if nxt else 0) + 1
            a(f"s_waitcnt lgkmcnt({n_out})")
        pv(a, VB[t % 2][0], P0, first=(t == 0))
        for x in [c[10], e[13], e[14], e[15], c[12], c[14]]: a(x)
    a("s_waitcnt lgkmcnt(0)")
    a("s_nop 0")
    pv(a, v1reg(NT-1), P1)
    a.nop(12)
    stamp(a, 25)
    if OPTC["prio_at"]: a("s_setprio 0")
    L_slow, L_epi, L_fin = a.uid("P2_slow"), a.uid("P2_epi"), a.uid("P2_fin")
    a(f"v_max3_f32 v14, abs(v{OA}), abs(v{OA+1}), abs(v{OA+2})")
    for i in range(3, 11, 2): a(f"v_max3_f32 v14, v14, abs(v{OA+i}), abs(v{OA+i+1})")
    a(f"v_max_f32 v14, v14, abs(v{OA+11})")
    a(f"v_mov_b32 v15, {fl(2.0**60)}")
    a(f"v_cmp_nlt_f32 vcc, v{OA+12}, v15")
    a(f"v_mov_b32 v15, {fl(2.0**120)}")
    a("v_cmp_nlt_f32 s[80:81], v14, v15")
    a("s_nop 1")
    a("s_or_b64 vcc, vcc, s[80:81]")
    a(f"s_cbranch_vccnz {L_slow}")
    a.label(L_epi)
    a(f"v_rcp_f32 v14, v{OA+12}")
    a(f"s_mul_i32 s74, s{S_TQ}, 40960")
    a(f"s_mul_i32 s75, s{S_HEAD}, 5")
    for i in range(12): a(f"v_mul_f32 v{OA+i}, v{OA+i}, v14")
    for g in range(3):
        a(f"v_cvt_pk_bf16_f32 v{P0+2*g}, v{OA+4*g}, v{OA+4*g+1}")
        a(f"v_cvt_pk_bf16_f32 v{P0+2*g+1}, v{OA+4*g+2}, v{OA+4*g+3}")
    a("v_add_u32 v6, s75, v3")
    a("v_lshlrev_b32 v6, 8, v6")
    a("v_lshl_add_u32 v6, v2, 3, v6")
    for g in range(3):
        if g == 2: exec_lo32(a)
        a(f"buffer_store_dwordx2 v[{P0+2*g}:{P0+2*g+1}], v6, s[{SRD_O}:{SRD_O+3}], s74 offen offset:{512*g}{LSC(OPTC['att_local'])}")
    exec_all(a)
    a(f"s_branch {L_fin}")
    a.label(L_slow)
    kb, vb = KB[0], VB[0]
    a("v_mov_b32 v15, 0xff800000")
    a("s_mov_b32 s78, 0")
    L1, L2 = a.uid("P2_max"), a.uid("P2_pv")
    a.label(L1)
    a("s_add_u32 s79, s77, s78")
    ld_qk(kb[0], kb[1], SRD_KV, 79, False)
    a("s_waitcnt vmcnt(0)")
    a(f"v_mfma_f32_32x32x16_bf16 v[{SA}:{SA+15}], v[{kb[0]}:{kb[0]+3}], v[{Q1}:{Q1+3}], 0")
    qk2(a, SA, kb)
    a.nop(12)
    max16(15, SA, init=False)
    a(f"s_add_u32 s78, s78, {KVT}")
    a(f"s_cmp_lt_u32 s78, {64*KVT}")
    a(f"s_cbranch_scc1 {L1}")
    set_cm(15)
    for i in range(16): a(f"v_mov_b32 v{OA+i}, 0")
    a("v_mul_u32_u24 v6, 320, v3")
    a("v_lshl_add_u32 v6, v2, 4, v6")
    for j in range(4):
        a(f"v_mov_b32 v{vb[0]+j}, 0x3f803f80")
        a(f"v_mov_b32 v{vb[1]+j}, 0x3f803f80")
    a("v_cmp_gt_u32 s[82:83], 20, v2")
    a("s_mov_b32 s78, 0")
    a.label(L2)
    a("s_add_u32 s79, s77, s78")
    ld_qk(kb[0], kb[1], SRD_KV, 79, False)
    a("s_mov_b64 exec, s[82:83]")
    a(f"buffer_load_dwordx4 v[{vb[0]}:{vb[0]+3}], v6, s[{SRD_KV}:{SRD_KV+3}], s79 offen offset:1280{SC}")
    a(f"buffer_load_dwordx4 v[{vb[1]}:{vb[1]+3}], v6, s[{SRD_KV}:{SRD_KV+3}], s79 offen offset:1920{SC}")
    a("s_mov_b64 exec, -1")
    a("s_waitcnt vmcnt(0)")
    qk1(a, SA, kb); qk2(a, SA, kb)
    a.nop(12)
    for x in exps(SA): a(x)
    a("s_nop 0")
    for i in range(0, 16, 2): a(cvt(SA, i))
    a("s_nop 1")
    pv(a, vb[0], P0); pv(a, vb[1], P1)
    a(f"s_add_u32 s78, s78, {KVT}")
    a(f"s_cmp_lt_u32 s78, {64*KVT}")
    a(f"s_cbranch_scc1 {L2}")
    a.nop(12)
    a(f"s_branch {L_epi}")
    a.label(L_fin)
    stamp(a, 26)
    if OPTC["tail_touch"]:
        Lw, Lb = a.uid("tt_drain"), a.uid("tt_bar")
        retile_producer_ids(a)
        L = a.uid("tt")
        a(f"s_cmp_lg_u32 s{S_WAVE}, 1")
        a(f"s_cbranch_scc1 {L}")
        wait_flags(a, [240, 241, 242], 5, wave=1)
        a(f"s_branch {Lb}")
        a.label(L)
        for wave in (2, 3):
            L = a.uid("tt")
            a(f"s_cmp_lg_u32 s{S_WAVE}, {wave}")
            a(f"s_cbranch_scc1 {L}")
            wait_flags(a, [243], 5, wave=wave)
            a("s_mul_i32 s84, s71, 245760")
            a("s_lshr_b32 s85, s2, 3")
            a("s_and_b32 s85, s85, 7")
            a("s_mul_i32 s85, s85, 30720")
            a("s_add_u32 s84, s84, s85")
            a(f"s_add_u32 s84, s84, {(wave-2)*15360}")
            srd(a, 88, P_WS, WS_WD, SZ_WD)
            a("v_min_u32 v30, 59, v0")
            a("v_lshlrev_b32 v30, 7, v30")
            for i in range(OPTC["tail_touch"]):
                a("buffer_load_dword v31, v30, s[88:91], s84 offen")
                a("s_add_u32 s84, s84, 7680")
            a(f"s_branch {Lb}")
            a.label(L)
        a.label(Lw)
        a("s_waitcnt vmcnt(0)")
        a.label(Lb)
    else:
        retile_producer_ids(a)
        wait_flags(a, [240, 241, 242], 5)
        a("s_waitcnt vmcnt(0)")
    a("s_barrier")
    a(f"s_lshr_b32 s71, s{S_TQ}, 3")
    a("s_lshl_b32 s71, s71, 5")
    a(f"s_add_u32 s71, s71, s{S_HEAD}")
    signal(a, 2, 71, local=bool(OPTC['att_local']))
    stamp(a, 27)

RT, RTP = 136, 160
S_RN, S_RSRC, S_RDST = 84, 85, 78
SRD_RS, SRD_RD = 56, 60
def patterns(a, n, lanes, pitch):
    for p in range(n):
        a(f"v_add_u32 v{RT}, {64*p}, v0")
        vdiv_small(a, RT+1, RT, lanes)
        a(f"v_mul_u32_u24 v{RT+2}, {lanes}, v{RT+1}")
        a(f"v_sub_u32 v{RT+2}, v{RT}, v{RT+2}")
        a(f"v_mul_u32_u24 v{RT+1}, {pitch}, v{RT+1}")
        a(f"v_lshl_add_u32 v{RTP+p}, v{RT+2}, 4, v{RT+1}")
def retile_setup(a):
    Lgu, Ld, Lo, Ln = a.uid("rt_gu"), a.uid("rt_d"), a.uid("rt_o"), a.uid("rt_n")
    a(f"s_mov_b32 s{S_RN}, 0")
    srd(a, SRD_RS, P_WO, 0, 640*640*2)
    srd(a, SRD_RD, P_WS, WS_WO, SZ_WO)
    a(f"s_mov_b32 s{S_RSRC}, 0")
    a(f"s_mov_b32 s{S_RDST}, 0")
    for p in range(5): a(f"v_mov_b32 v{RTP+p}, 0")
    a(f"s_lshl_b32 s79, s{S_WAVE}, 8")
    a("s_add_u32 s79, s79, s2")
    a("s_cmp_lt_u32 s79, 1280")
    a(f"s_cbranch_scc1 {Lgu}")
    a("s_cmp_lt_u32 s79, 1664")
    a(f"s_cbranch_scc1 {Ld}")
    a("s_cmp_lt_u32 s79, 1824")
    a(f"s_cbranch_scc1 {Lo}")
    a(f"s_branch {Ln}")
    a.label(Lgu)
    a(f"s_mov_b32 s{S_RN}, 3")
    patterns(a, 3, 12, 3072)
    a("s_and_b32 s80, s79, 1")
    a("s_lshr_b32 s79, s79, 1")
    divmod_const(a, 81, 82, 79, 40)
    a("s_cmp_eq_u32 s80, 0")
    a(f"s_cselect_b32 s{SRD_RS}, s{P_WG}, s{P_WU}")
    a(f"s_cselect_b32 s{SRD_RS+1}, s{P_WG+1}, s{P_WU+1}")
    a(f"s_mov_b32 s{SRD_RS+2}, {hex(640*1536*2)}")
    a(f"s_mov_b32 s{SRD_RS+3}, 0x20000")
    srd(a, SRD_RD, P_WS, WS_WGU, SZ_WGU)
    a(f"s_mul_i32 s{S_RSRC}, s82, 49152")
    a("s_mul_i32 s83, s81, 192")
    a(f"s_add_u32 s{S_RSRC}, s{S_RSRC}, s83")
    a(f"s_mul_i32 s{S_RDST}, s81, 245760")
    a("s_lshr_b32 s83, s82, 2")
    a("s_mul_i32 s83, s83, 24576")
    a(f"s_add_u32 s{S_RDST}, s{S_RDST}, s83")
    a("s_mul_i32 s83, s80, 12288")
    a(f"s_add_u32 s{S_RDST}, s{S_RDST}, s83")
    a("s_and_b32 s83, s82, 3")
    a("s_mul_i32 s83, s83, 3072")
    a(f"s_add_u32 s{S_RDST}, s{S_RDST}, s83")
    a(f"s_branch {Ln}")
    for L, first, per_cg, ptr, rows, off, size in ((Ld, 1280, 48, P_WD, 1536, WS_WD, SZ_WD), (Lo, 1664, 20, P_WO, 640, WS_WO, SZ_WO)):
        a.label(L)
        a(f"s_mov_b32 s{S_RN}, 5")
        patterns(a, 5, 10, 1280)
        a(f"s_sub_u32 s79, s79, {first}")
        divmod_const(a, 81, 82, 79, per_cg)
        srd(a, SRD_RS, ptr, 0, rows*640*2)
        srd(a, SRD_RD, P_WS, off, size)
        a(f"s_mul_i32 s{S_RSRC}, s82, 40960")
        a("s_mul_i32 s83, s81, 160")
        a(f"s_add_u32 s{S_RSRC}, s{S_RSRC}, s83")
        a(f"s_mul_i32 s{S_RDST}, s81, {rows*160}")
        a("s_mul_i32 s83, s82, 5120")
        a(f"s_add_u32 s{S_RDST}, s{S_RDST}, s83")
        if L == Ld: a(f"s_branch {Ln}")
    a.label(Ln)
def retile_load(a, p):
    L = a.uid("rl")
    a(f"s_cmp_le_u32 s{S_RN}, {p}")
    a(f"s_cbranch_scc1 {L}")
    a(f"buffer_load_dwordx4 v[{RT+4*p}:{RT+4*p+3}], v{RTP+p}, s[{SRD_RS}:{SRD_RS+3}], s{S_RSRC} offen")
    a.label(L)
def retile_store(a, p):
    L = a.uid("rs")
    a(f"s_cmp_le_u32 s{S_RN}, {p}")
    a(f"s_cbranch_scc1 {L}")
    a(f"s_add_u32 s79, s{S_RDST}, {1024*p}")
    a(f"buffer_store_dwordx4 v[{RT+4*p}:{RT+4*p+3}], v1, s[{SRD_RD}:{SRD_RD+3}], s79 offen{SC}")
    a.label(L)

def retile_producer_ids(a):
    if OPTC["xcd"]:
        a(f"s_and_b32 s72, s{S_ROLE}, 15")
        a(f"s_and_b32 s71, s{S_ROLE}, 7")
    else:
        a("s_and_b32 s71, s2, 7")
        a("s_lshr_b32 s72, s71, 1")
        a("s_lshl_b32 s72, s72, 2")
        a("s_lshr_b32 s74, s2, 6")
        a("s_add_u32 s72, s72, s74")
        a("s_lshr_b32 s71, s71, 2")
        a("s_lshl_b32 s71, s71, 2")
        a("s_add_u32 s71, s71, s74")
    a("s_mov_b32 s75, s72")
    a("s_mul_i32 s72, s72, 80")
    a("v_add_u32 v240, s72, v0")
    if OPTC["tail_touch"]:
        a("v_min_u32 v241, 15, v0")
        a("v_add_u32 v241, 64, v241")
        a("v_add_u32 v241, s72, v241")
        a("s_mul_i32 s74, s71, 48")
        a("v_min_u32 v243, 47, v0")
        a("v_add_u32 v243, s74, v243")
    else:
        a("v_add_u32 v241, 64, v240")
        a("s_mul_i32 s74, s71, 48")
        a("s_sub_u32 s74, s74, 16")
        a("v_add_u32 v243, s74, v0")
        a("v_cmp_gt_u32 vcc, 16, v0")
        a("s_nop 1")
        a("v_cndmask_b32 v241, v243, v241, vcc")
    a("s_mul_i32 s74, s71, 20")
    a("s_add_u32 s74, s74, 128")
    a("v_min_u32 v242, 19, v0")
    a("v_add_u32 v242, s74, v242")
    for r in (240, 241, 242, 243): a(f"v_and_b32 v{r}, 255, v{r}")
```

```python
from gemm import *

def map_thin(a):
    if OPTC["xcd"]:
        a(f"s_lshr_b32 s{S_RB}, s{S_ROLE}, 3")
        a(f"s_and_b32 s{S_CG}, s{S_ROLE}, 7")
        return
    a("s_and_b32 s71, s2, 7")
    a("s_lshr_b32 s72, s2, 3")
    a("s_and_b32 s73, s71, 3")
    a("s_lshl_b32 s73, s73, 3")
    a("s_and_b32 s74, s72, 7")
    a(f"s_add_u32 s{S_RB}, s73, s74")
    a("s_lshr_b32 s73, s71, 2")
    a("s_lshl_b32 s73, s73, 2")
    a("s_lshr_b32 s74, s72, 3")
    a(f"s_add_u32 s{S_CG}, s73, s74")

TA, TB = 20480, 16384
T_RB = 4*TA
T_RES = T_RB + 3*TB
T_TAB = T_RES + 10240
T_RED = T_TAB + 1024
T_ST = T_RED + 3072
ACC0 = 64

def thin_compute_setup(a):
    tr_lane_parts(a, 11, 12, 13)
    a("v_lshl_add_u32 v11, v3, 2, v11")
    a("v_mul_u32_u24 v11, 160, v11")
    a(f"s_cmp_eq_u32 s{S_WAVE}, 2")
    a("s_cselect_b32 s71, 0, 32")
    a("v_mul_u32_u24 v12, s71, v12")
    a("v_add_u32 v11, v11, v12")
    a("v_lshl_add_u32 v11, v13, 3, v11")
    a(f"s_lshl_b32 s71, s{S_WAVE}, 6")
    a("v_add_u32 v11, s71, v11")
    lds_addr_set(a, 4, 2, 11)

def thin_loop(a, KS, grouped_b, sb):
    if grouped_b:
        a("v_lshlrev_b32 v12, 3, v2")
        a("v_lshl_add_u32 v12, v3, 8, v12")
        a(f"v_add_u32 v12, {T_RB}, v12")
    else:
        a(f"v_add_u32 v12, {T_RB}, v1")
    lds_addr_set(a, 8, 2, 12)
    def sh(s, reg):
        o = ((s//8) % 4)*TA + (s % 8)*2560
        v0, o0 = seg(4, o); v1, o1 = seg(4, o + 1280)
        return two64(reg, v0, o0, v1, o1, True)
    def pvv(s, t, reg):
        o = ((s//8) % 3)*TB + t*8192 + (s % 8)*1024
        if grouped_b: return two64(reg, 8, o, 8, o + 512, False)
        return b128(reg, 8, o)
    compute_loop(a, KS=KS, CK=8, NU=2, P=4, acc=lambda t: ACC0+16*t, sh_regs=[32, 36, 40], pv_regs=[16, 20, 24, 28],
                 sh_reads=sh, pv_reads=pvv, swap=True, sb=sb)

def thin_loader(a, *, NC, KS, raw_pitch, n_pre_a, extra_barriers, sb, raw_res=False, tail=None):
    a(f"s_lshl_b32 s72, s{S_J}, 10")
    a("v_add_u32 v7, s72, v1")
    a(f"s_mul_i32 s77, s{S_J}, 5120")
    if raw_res:
        for p in range(5):
            a(f"v_add_u32 v8, {64*p}, v0")
            vdiv_small(a, 9, 8, 10)
            a("v_mul_u32_u24 v10, 10, v9")
            a("v_sub_u32 v10, v8, v10")
            a("v_mul_u32_u24 v9, 1280, v9")
            a(f"v_lshl_add_u32 v{16+p}, v10, 4, v9")
    a(f"s_mul_i32 s73, s{S_CG}, {KS*16*160}")
    a("s_add_u32 s73, s73, s77")
    a(f"s_lshl_b32 s74, s{S_RB}, 1")
    a(f"s_mul_i32 s74, s74, {KS*1024}")
    def a_issue(c):
        for p in range(5):
            dma(a, 77, (c % 4)*TA + p*1024, 1, SRD_A, 73, c*TA + p*1024, True)
        return 5
    def b_issue(c):
        for n in range(4):
            tb, hl = divmod(n, 2)
            dma(a, 72, T_RB + (c % 3)*TB + n*4096, 7, SRD_B, 74, tb*KS*1024 + c*8192 + hl*4096, True)
        return 4
    def residual(vq):
        L = a.uid("res")
        if raw_res:
            a(f"s_cmp_ge_u32 s{S_J}, 2")
            a(f"s_cbranch_scc1 {L}")
            a(f"s_lshl_b32 s78, s{S_RB}, 6")
            a(f"s_lshl_b32 s79, s{S_J}, 5")
            a("s_add_u32 s78, s78, s79")
            a("s_mul_i32 s78, s78, 1280")
            a(f"s_mul_i32 s79, s{S_CG}, 160")
            a("s_add_u32 s78, s78, s79")
            for p in range(5):
                a(f"s_add_u32 m0, s77, {T_RES + p*1024}")
                a("s_nop 0")
                a(f"buffer_load_dwordx4 v{16+p}, s[{SRD_E1}:{SRD_E1+3}], s78 offen lds")
            a.label(L)
            return
        a(f"s_lshl_b32 s78, s{S_RB}, 1")
        a("s_mul_i32 s78, s78, 40960")
        a(f"s_mul_i32 s79, s{S_CG}, 5120")
        a("s_add_u32 s78, s78, s79")
        for n in range(3):
            if n == 2:
                a(f"s_cmp_ge_u32 s{S_J}, 2")
                a(f"s_cbranch_scc1 {L}")
            a(f"s_add_u32 s79, s{S_J}, {4*n}")
            a("s_cmp_ge_u32 s79, 5")
            a("s_cselect_b32 s80, 35840, 0")
            a("s_lshl_b32 s79, s79, 10")
            a(f"s_add_u32 m0, s79, {T_RES}")
            a("s_add_u32 s79, s79, s80")
            a("s_add_u32 s79, s79, s78")
            a(f"buffer_load_dwordx4 v1, s[{SRD_E1}:{SRD_E1+3}], s79 offen{SC} lds")
        a.label(L)
    plain_loader(a, NC=NC, a_issue=a_issue, b_issue=b_issue, n_pre_a=n_pre_a, after_pre=residual,
                 deps=lambda: a("s_barrier"), extra_barriers=extra_barriers, sb=sb, tail=tail)

def table_wave(a, vecs, plus_one):
    n = len(vecs)
    a(f"v_min_u32 v4, {20*n-1}, v0")
    vdiv_small(a, 5, 4, 20)
    a("v_mul_u32_u24 v6, 20, v5")
    a("v_sub_u32 v6, v4, v6")
    a(f"v_add_u32 v7, {vecs[0]}, v5")
    a("v_mul_u32_u24 v7, 160, v7")
    a("v_add_u32 v7, v7, v6")
    a(f"s_mul_i32 s71, s{S_CG}, 20")
    a("v_add_u32 v7, s71, v7")
    a("v_lshlrev_b32 v7, 4, v7")
    a("v_mov_b32 v15, v7")
    a("v_mul_u32_u24 v7, 320, v5")
    a("v_lshl_add_u32 v7, v6, 4, v7")
    a(f"v_add_u32 v7, {T_TAB}, v7")
    a("s_barrier")
    a("s_barrier")
    poll_granules(a, [f"buffer_load_dwordx4 v[8:11], v15, s[{SRD_M}:{SRD_M+3}], 0 offen{SC}"], [10], "tab")
    unpack4(a, 12, 8)
    if plus_one is not None:
        for j in range(4): a(f"v_mov_b32 v{16+j}, v{12+j}")
        a(f"v_cmp_eq_u32 vcc, {plus_one}, v5")
        one_plus_round(a, 16)
        for j in range(4): a(f"v_cndmask_b32 v{12+j}, v{12+j}, v{16+j}, vcc")
    a("ds_write_b128 v7, v[12:15]")
    a("s_waitcnt lgkmcnt(0)")

def read_table(a, dst, k):
    for g in range(4): a(f"ds_read_b128 v[{dst+4*g}:{dst+4*g+3}], v13 offset:{320*k + 32*g}")
def epi_setup(a):
    a(f"s_lshl_b32 s71, s{S_WAVE}, 7")
    a(f"s_add_u32 s71, s71, {T_TAB}")
    a("v_lshl_add_u32 v13, v3, 4, s71")
    a(f"s_lshl_b32 s71, s{S_WAVE}, 11")
    a(f"s_add_u32 s71, s71, {T_RES}")
    a("v_add_u32 v14, s71, v1")
def read_residual_raw(a, XR):
    a("v_mul_u32_u24 v14, 160, v2")
    a("v_lshl_add_u32 v14, v3, 3, v14")
    a(f"s_lshl_b32 s71, s{S_WAVE}, 6")
    a(f"s_add_u32 s71, s71, {T_RES}")
    a("v_add_u32 v14, s71, v14")
    for u in range(2):
        for g in range(4):
            a(f"ds_read_b64 v[{XR+8*u+2*g}:{XR+8*u+2*g+1}], v14 offset:{u*5120 + 16*g}")
def read_residual(a, XR):
    for u in range(2):
        for tp in range(2):
            a(f"ds_read_b128 v[{XR+8*u+4*tp}:{XR+8*u+4*tp+3}], v14 offset:{u*5120 + tp*1024}")

def touch_region(a, off, size, n):
    per = size // 128
    assert per == n*60*128
    a(f"s_and_b32 s84, s{S_ROLE}, 31")
    a("s_lshl_b32 s84, s84, 2")
    a(f"s_add_u32 s84, s84, s{S_J}")
    a(f"s_mul_i32 s84, s84, {per}")
    srd(a, 88, P_WS, off, size)
    a("v_min_u32 v30, 59, v0")
    a("v_lshlrev_b32 v30, 7, v30")
    for i in range(n):
        a("buffer_load_dword v31, v30, s[88:91], s84 offen")
        if i + 1 < n: a("s_add_u32 s84, s84, 7680")

def touch_ffn_weights(a):
    if OPTC["xcd"] and OPTC["touchw"]: touch_region(a, WS_WGU, SZ_WGU, 4)
    code_touch(a, 7)

OPT345 = {"touch": False}
def touch_tile(a, ws_off, size, cg_sgpr_expr, waves):
    L = a.uid("touch")
    a(f"s_cmp_lt_u32 s{S_WAVE}, {waves[0]}")
    a(f"s_cbranch_scc1 {L}")
    a(f"s_cmp_gt_u32 s{S_WAVE}, {waves[1]}")
    a(f"s_cbranch_scc1 {L}")
    cg_sgpr_expr()
    a("s_mul_i32 s86, s86, 245760")
    a("s_lshr_b32 s85, s2, 3")
    a("s_and_b32 s85, s85, 7")
    a("s_mul_i32 s85, s85, 30720")
    a("s_add_u32 s86, s86, s85")
    a(f"s_sub_u32 s85, s{S_WAVE}, {waves[0]}")
    a("s_mul_i32 s85, s85, 15360")
    a("s_add_u32 s86, s86, s85")
    srd(a, 88, P_WS, ws_off, size)
    a("v_min_u32 v30, 59, v0")
    a("v_lshlrev_b32 v30, 7, v30")
    a("buffer_load_dword v31, v30, s[88:91], s86 offen")
    a("s_add_u32 s86, s86, 7680")
    a("buffer_load_dword v31, v30, s[88:91], s86 offen")
    a.label(L)
def cg_p4(a):
    a("s_and_b32 s86, s2, 7")
    a("s_lshr_b32 s86, s86, 1")
    a("s_lshl_b32 s86, s86, 2")
    a("s_lshr_b32 s87, s2, 6")
    a("s_add_u32 s86, s86, s87")
def cg_p5(a):
    a("s_and_b32 s86, s2, 7")
    a("s_lshr_b32 s86, s86, 2")
    a("s_lshl_b32 s86, s86, 2")
    a("s_lshr_b32 s87, s2, 6")
    a("s_add_u32 s86, s86, s87")

def gen_p3(a):
    map_thin(a)
    srd(a, SRD_A, P_WS, WS_WO, SZ_WO)
    srd(a, SRD_B, P_WS, WS_O, SZ_O)
    srd(a, SRD_M, P_WS, WS_MODG, SZ_MODG)
    srd(a, SRD_E1, P_X, 0, S*D*2)
    lane_consts(a)
    L_comp, L_w3, L_fin = a.uid("P3_comp"), a.uid("P3_w3"), a.uid("P3_fin")
    a(f"s_cmp_lt_u32 s{S_WAVE}, 4")
    a(f"s_cbranch_scc1 {L_comp}")
    a(f"s_sub_u32 s{S_J}, s{S_WAVE}, 4")
    thin_loader(a, NC=5, KS=40, raw_pitch=0, n_pre_a=3, extra_barriers=2, sb=28, raw_res=True, tail=lambda: touch_ffn_weights(a))
    a(f"s_branch {L_fin}")
    a.label(L_comp)
    a(f"s_cmp_eq_u32 s{S_WAVE}, 3")
    a(f"s_cbranch_scc1 {L_w3}")
    srd(a, SRD_E0, P_WS, WS_X1, SZ_X1)
    srd(a, SRD_E2, P_WS, WS_H2, SZ_H2)
    thin_compute_setup(a)
    a(f"s_lshr_b32 s71, s{S_RB}, 2")
    a("s_lshl_b32 s71, s71, 5")
    a("v_add_u32 v240, s71, v2")
    if OPTC["touch4"]: touch_tile(a, WS_WGU, SZ_WGU, lambda: cg_p4(a), (1, 2))
    wait_flags(a, [240], 2, local=bool(OPTC['att_local']))
    a("s_barrier")
    thin_loop(a, 40, True, 28)
    GA, XR, G2, S2 = 112, 96, 128, 144
    epi_setup(a)
    read_table(a, GA, 0); read_residual_raw(a, XR)
    a(f"s_mul_i32 s73, s{S_CG}, 5")
    a(f"s_lshl_b32 s74, s{S_WAVE}, 1")
    a("s_add_u32 s73, s73, s74")
    a("s_lshl_b32 s73, s73, 10")
    a(f"s_lshl_b32 s74, s{S_RB}, 1")
    a("s_mul_i32 s74, s74, 40960")
    a("s_add_u32 s73, s73, s74")
    a("s_waitcnt lgkmcnt(0)")
    stamp(a, 50)
    a.nop(2)
    def per_half(u, body):
        L = a.uid("P3_e")
        for tp in range(2):
            if tp == 1:
                a(f"s_cmp_eq_u32 s{S_WAVE}, 2")
                a(f"s_cbranch_scc1 {L}")
            body(tp)
        a.label(L)
    for u in range(2):
        acc = ACC0 + 16*u
        sm, sq = 44 + 2*u, 45 + 2*u
        a(f"v_mov_b32 v{sm}, 0")
        a(f"v_mov_b32 v{sq}, 0")
        def body(tp):
            for gg in range(2):
                g = 2*tp + gg
                for jj in range(2):
                    x = XR + 8*u + 2*g + jj
                    a(f"v_lshlrev_b32 v48, 16, v{x}")
                    a(f"v_and_b32 v49, 0xffff0000, v{x}")
                    r = acc + 4*g + 2*jj
                    a(f"v_fma_f32 v{r}, v{GA+4*g+2*jj}, v{r}, v48")
                    a(f"v_fma_f32 v{r+1}, v{GA+4*g+2*jj+1}, v{r+1}, v49")
            p = 160 + 4*(2*u + tp)
            for j in range(4): a(f"v_cvt_pk_bf16_f32 v{p+j}, v{acc+8*tp+2*j}, v{acc+8*tp+2*j+1}")
            for j in range(4):
                a(f"v_lshlrev_b32 v{acc+8*tp+2*j}, 16, v{p+j}")
                a(f"v_and_b32 v{acc+8*tp+2*j+1}, 0xffff0000, v{p+j}")
            for i in range(8):
                a(f"v_add_f32 v{sm}, v{sm}, v{acc+8*tp+i}")
                a(f"v_fmac_f32 v{sq}, v{acc+8*tp+i}, v{acc+8*tp+i}")
        per_half(u, body)
        stamp(a, 51 + u)
    a(f"s_lshl_b32 s75, s{S_WAVE}, 9")
    a(f"s_add_u32 s75, s75, {T_RED}")
    a("v_lshl_add_u32 v15, v0, 3, s75")
    a("ds_write_b64 v15, v[44:45]")
    a("ds_write_b64 v15, v[46:47] offset:1536")
    read_table(a, S2, 1); read_table(a, G2, 2)
    a("s_waitcnt lgkmcnt(0)")
    stamp(a, 32)
    a("s_barrier")
    a("s_barrier")
    stamp(a, 33)
    a("v_lshlrev_b32 v15, 3, v2")
    a(f"v_add_u32 v15, {T_ST}, v15")
    a("ds_read_b64 v[44:45], v15")
    a("ds_read_b64 v[46:47], v15 offset:256")
    a("s_waitcnt lgkmcnt(0)")
    for u in range(2):
        acc = ACC0 + 16*u
        a(f"s_add_u32 s75, s73, {u*40960}")
        def body(tp):
            for i in range(8):
                r = acc + 8*tp + i
                a(f"v_fma_f32 v{r}, v{r}, v{44+2*u}, v{45+2*u}")
            for i in range(8):
                r = acc + 8*tp + i
                a(f"v_fma_f32 v{r}, v{r}, v{G2+8*tp+i}, v{S2+8*tp+i}")
            p = 16 + 4*(2*u + tp)
            for j in range(4): a(f"v_cvt_pk_bf16_f32 v{p+j}, v{acc+8*tp+2*j}, v{acc+8*tp+2*j+1}")
            a(f"buffer_store_dwordx4 v[{p}:{p+3}], v1, s[{SRD_E2}:{SRD_E2+3}], s75 offen offset:{1024*tp}{LSC()}")
            x = 160 + 4*(2*u + tp)
            a(f"buffer_store_dwordx4 v[{x}:{x+3}], v1, s[{SRD_E0}:{SRD_E0+3}], s75 offen offset:{1024*tp}{LSC()}")
        per_half(u, body)
    a(f"s_branch {L_fin}")
    a.label(L_w3)
    table_wave(a, [2, 3, 4], 2)
    for _ in range(4): a("s_barrier")
    stamp(a, 50)
    a("s_barrier")
    stamp(a, 51)
    srd(a, SRD_E0, P_WS, WS_STAT, SZ_STAT)
    a("v_mul_u32_u24 v13, 1536, v3")
    a("v_lshl_add_u32 v13, v2, 3, v13")
    a(f"v_add_u32 v13, {T_RED}, v13")
    for T in range(3):
        for h in range(2):
            r = 48 + 2*(2*T+h)
            a(f"ds_read_b64 v[{r}:{r+1}], v13 offset:{T*512 + h*256}")
    a("s_waitcnt lgkmcnt(0)")
    for i in range(1, 6):
        a(f"v_add_f32 v48, v48, v{48+2*i}")
        a(f"v_add_f32 v49, v49, v{49+2*i}")
    a(f"v_mov_b32 v50, s{S_NONCE}")
    a("v_mov_b32 v51, 0")
    a(f"s_lshl_b32 s75, s{S_RB}, 13")
    a(f"s_lshl_b32 s76, s{S_CG}, 10")
    a("s_add_u32 s76, s76, s75")
    if OPTC["xcd"]:
        Lg, Le = a.uid("st_g"), a.uid("st_e")
        a(f"s_cmp_eq_u32 s{S_PURE}, 0")
        a(f"s_cbranch_scc1 {Lg}")
        a(f"buffer_store_dwordx4 v[48:51], v1, s[{SRD_E0}:{SRD_E0+3}], s76 offen")
        a(f"s_branch {Le}")
        a.label(Lg)
        a(f"buffer_store_dwordx4 v[48:51], v1, s[{SRD_E0}:{SRD_E0+3}], s76 offen{SC}")
        a.label(Le)
    else:
        a(f"buffer_store_dwordx4 v[48:51], v1, s[{SRD_E0}:{SRD_E0+3}], s76 offen{SC}")
    a(f"s_add_u32 s76, s75, 4096")
    def loads(base):
        return [f"buffer_load_dwordx4 v[{base+4*c}:{base+3+4*c}], v1, s[{SRD_E0}:{SRD_E0+3}], s{75 if c < 4 else 76} offen offset:{1024*(c % 4)}{SC}" for c in range(8)]
    stamp(a, 52)
    if OPTC["stat_pre"] and not OPTC["xcd"]: a(f"s_sleep {OPTC['stat_pre']}")
    poll_granules(a, loads(64), [66+4*c for c in range(8)], "P3_stat", sleep=OPTC["stat_sleep"])
    stamp(a, 32)
    if CTX.instrument is True: a(f"v_writelane_b32 v255, s94, 53")
    for c in range(1, 8):
        a(f"v_add_f32 v64, v64, v{64+4*c}")
        a(f"v_add_f32 v65, v65, v{65+4*c}")
    a(f"v_mul_f32 v64, {fl(1.0/640)}, v64")
    a(f"v_mul_f32 v65, {fl(1.0/640)}, v65")
    a("v_fma_f32 v65, -v64, v64, v65")
    a("v_max_f32 v65, 0, v65")
    a(f"v_add_f32 v65, {fl(1e-5)}, v65")
    a("v_rsq_f32 v66, v65")
    a("s_nop 0")
    a("v_mul_f32 v67, v64, v66")
    a("v_sub_f32 v67, 0, v67")
    a("v_lshlrev_b32 v13, 3, v0")
    a(f"v_add_u32 v13, {T_ST}, v13")
    a("ds_write_b64 v13, v[66:67]")
    a("s_waitcnt lgkmcnt(0)")
    a("s_barrier")
    a.label(L_fin)
    stamp(a, 34)
    a("s_waitcnt vmcnt(0)")
    a("s_barrier")
    a(f"s_lshl_b32 s71, s{S_RB}, 3")
    a(f"s_add_u32 s71, s71, s{S_CG}")
    signal(a, 3, 71, local=True)
    stamp(a, 35)

def gen_p5(a):
    map_thin(a)
    srd(a, SRD_A, P_WS, WS_WD, SZ_WD)
    srd(a, SRD_B, P_WS, WS_HH, SZ_HH)
    srd(a, SRD_M, P_WS, WS_MODG, SZ_MODG)
    srd(a, SRD_E1, P_WS, WS_X1, SZ_X1)
    lane_consts(a)
    L_comp, L_w3, L_fin = a.uid("P5_comp"), a.uid("P5_w3"), a.uid("P5_fin")
    a(f"s_cmp_lt_u32 s{S_WAVE}, 4")
    a(f"s_cbranch_scc1 {L_comp}")
    a(f"s_sub_u32 s{S_J}, s{S_WAVE}, 4")
    thin_loader(a, NC=12, KS=96, raw_pitch=0, n_pre_a=3, extra_barriers=1 if OPTC["out_lds"] else 0, sb=44)
    a(f"s_branch {L_fin}")
    a.label(L_comp)
    a(f"s_cmp_eq_u32 s{S_WAVE}, 3")
    a(f"s_cbranch_scc1 {L_w3}")
    srd(a, SRD_E0, P_OUT, 0, S*D*2)
    thin_compute_setup(a)
    a(f"s_lshr_b32 s71, s{S_RB}, 1")
    a("s_lshl_b32 s71, s71, 4")
    a("v_and_b32 v240, 15, v0")
    a("v_add_u32 v240, s71, v240")
    wait_flags(a, [240], 4, local=True)
    a("s_barrier")
    thin_loop(a, 96, False, 44)
    GB, XR = 112, 96
    epi_setup(a)
    read_table(a, GB, 0); read_residual(a, XR)
    T_OUT = 0
    if OPTC["out_lds"]:
        a("v_mul_u32_u24 v15, 160, v2")
        a("v_lshl_add_u32 v15, v3, 3, v15")
        a(f"s_lshl_b32 s73, s{S_WAVE}, 6")
        a(f"s_add_u32 s73, s73, {T_RED}")
        a("v_add_u32 v15, s73, v15")
    a("v_mul_u32_u24 v14, 1280, v2")
    a("v_lshl_add_u32 v14, v3, 3, v14")
    a(f"s_mul_i32 s72, s{S_CG}, 160")
    a(f"s_lshl_b32 s73, s{S_WAVE}, 6")
    a("s_add_u32 s72, s72, s73")
    a(f"s_mul_i32 s73, s{S_RB}, {64*1280}")
    a("s_add_u32 s72, s72, s73")
    a("s_waitcnt lgkmcnt(0)")
    a.nop(2)
    for u in range(2):
        acc = ACC0 + 16*u
        L = a.uid("P5_e")
        a(f"s_add_u32 s74, s72, {u*32*1280}")
        for g in range(4):
            if g == 2:
                a(f"s_cmp_eq_u32 s{S_WAVE}, 2")
                a(f"s_cbranch_scc1 {L}")
            for jj in range(2):
                x = XR + 8*u + 2*g + jj
                a(f"v_lshlrev_b32 v48, 16, v{x}")
                a(f"v_and_b32 v49, 0xffff0000, v{x}")
                r = acc + 4*g + 2*jj
                a(f"v_fma_f32 v{r}, v{GB+4*g+2*jj}, v{r}, v48")
                a(f"v_fma_f32 v{r+1}, v{GB+4*g+2*jj+1}, v{r+1}, v49")
            p = 16 + 2*((4*u+g) % 8)
            a(f"v_cvt_pk_bf16_f32 v{p}, v{acc+4*g}, v{acc+4*g+1}")
            a(f"v_cvt_pk_bf16_f32 v{p+1}, v{acc+4*g+2}, v{acc+4*g+3}")
            if OPTC["out_lds"]: a(f"ds_write_b64 v15, v[{p}:{p+1}] offset:{u*5120 + 16*g}")
            else: a(f"buffer_store_dwordx4 v[{p}:{p+1}], v14, s[{SRD_E0}:{SRD_E0+3}], s74 offen offset:{16*g}".replace("dwordx4", "dwordx2"))
        a.label(L)
    if OPTC["out_lds"]:
        a("s_waitcnt lgkmcnt(0)")
        a("s_barrier")
        a(f"s_mul_i32 s72, s{S_CG}, 160")
        a(f"s_mul_i32 s73, s{S_RB}, {64*1280}")
        a("s_add_u32 s72, s72, s73")
        sc = SC if OPTC["out_sc"] else ""
        Lq = a.uid("P5_q")
        for n in range(4):
            if n == 3:
                a(f"s_cmp_lg_u32 s{S_WAVE}, 0")
                a(f"s_cbranch_scc1 {Lq}")
            a(f"s_add_u32 s73, s{S_WAVE}, {3*n}")
            a("s_lshl_b32 s73, s73, 6")
            a("v_add_u32 v8, s73, v0")
            a(f"v_lshlrev_b32 v9, 4, v8")
            a(f"v_add_u32 v9, {T_RED}, v9")
            a(f"ds_read_b128 v[{96+4*n}:{99+4*n}], v9")
            vdiv_small(a, 10, 8, 10)
            a("v_mul_u32_u24 v11, 10, v10")
            a("v_sub_u32 v11, v8, v11")
            a("v_mul_u32_u24 v10, 1280, v10")
            a(f"v_lshl_add_u32 v{20+n}, v11, 4, v10")
            a("s_waitcnt lgkmcnt(0)")
            a(f"buffer_store_dwordx4 v[{96+4*n}:{99+4*n}], v{20+n}, s[{SRD_E0}:{SRD_E0+3}], s72 offen{sc}")
        a.label(Lq)
    a(f"s_branch {L_fin}")
    a.label(L_w3)
    table_wave(a, [5], None)
    for _ in range(11 + (1 if OPTC["out_lds"] else 0)): a("s_barrier")
    a.label(L_fin)
    stamp(a, 48)

SLOT4 = 24640
P4_RB = 4*SLOT4
def gen_p4(a):
    if OPTC["xcd"]:
        a(f"s_lshr_b32 s{S_RB}, s{S_ROLE}, 4")
        a(f"s_and_b32 s{S_CG}, s{S_ROLE}, 15")
    else:
        a("s_and_b32 s71, s2, 7")
        a("s_lshr_b32 s72, s2, 3")
        a("s_and_b32 s73, s71, 1")
        a("s_lshl_b32 s73, s73, 3")
        a("s_and_b32 s74, s72, 7")
        a(f"s_add_u32 s{S_RB}, s73, s74")
        a("s_lshr_b32 s73, s71, 1")
        a("s_lshl_b32 s73, s73, 2")
        a("s_lshr_b32 s74, s72, 3")
        a(f"s_add_u32 s{S_CG}, s73, s74")
    srd(a, SRD_A, P_WS, WS_WGU, SZ_WGU)
    srd(a, SRD_B, P_WS, WS_H2, SZ_H2)
    lane_consts(a)
    L_comp, L_fin = a.uid("P4_comp"), a.uid("P4_fin")
    a(f"s_cmp_lt_u32 s{S_WAVE}, 4")
    a(f"s_cbranch_scc1 {L_comp}")
    a(f"s_sub_u32 s{S_J}, s{S_WAVE}, 4")
    a(f"s_lshl_b32 s72, s{S_J}, 10")
    a("v_add_u32 v7, s72, v1")
    a(f"s_mul_i32 s77, s{S_J}, 3072")
    a(f"s_mul_i32 s73, s{S_CG}, 245760")
    a("s_add_u32 s73, s73, s77")
    a(f"s_lshl_b32 s74, s{S_RB}, 2")
    a("s_mul_i32 s74, s74, 40960")
    def a_issue(c):
        for m in range(2):
            for p in range(3): dma(a, 77, (c % 4)*SLOT4 + m*12320 + p*1024, 1, SRD_A, 73, c*24576 + m*12288 + p*1024, True)
        return 6
    def b_issue(c):
        for tb in range(4): dma(a, 72, P4_RB + (c % 3)*16384 + tb*4096, 7, SRD_B, 74, tb*40960 + c*4096, True)
        return 4
    plain_loader(a, NC=10, a_issue=a_issue, b_issue=b_issue, n_pre_a=3, after_pre=lambda vq: None,
                 deps=lambda: a("s_barrier"), sb=36,
                 tail=(lambda: touch_region(a, WS_WD, SZ_WD, 2)) if OPTC["xcd"] and OPTC["touchw"] else None)
    a(f"s_branch {L_fin}")
    a.label(L_comp)
    srd(a, SRD_E1, P_WS, WS_HH, SZ_HH)
    tr_lane_parts(a, 8, 9, 10)
    a("v_lshl_add_u32 v8, v3, 2, v8")
    a("v_mul_u32_u24 v8, 192, v8")
    a("v_mul_u32_u24 v9, 12320, v9")
    a("v_add_u32 v8, v8, v9")
    a("v_lshl_add_u32 v8, v10, 3, v8")
    lds_addr_set(a, 4, 2, 8)
    a(f"s_lshl_b32 s71, s{S_WAVE}, 12")
    a(f"s_add_u32 s71, s71, {P4_RB}")
    a("v_add_u32 v6, s71, v1")
    ACC = 64
    def pv_reads(s, t, reg):
        o = ((s//4) % 4)*SLOT4 + (s % 4)*3072 + t*32
        v0, o0 = seg(4, o); v1, o1 = seg(4, o + 1536)
        return two64(reg, v0, o0, v1, o1, True)
    a(f"s_lshl_b32 s71, s{S_RB}, 4")
    a("v_and_b32 v240, 15, v0")
    a("v_add_u32 v240, s71, v240")
    if OPTC["touch5"]: touch_tile(a, WS_WD, SZ_WD, lambda: cg_p5(a), (1, 2))
    wait_flags(a, [240], 3, local=True)
    a("s_barrier")
    compute_loop(a, KS=40, CK=4, NU=6, P=6, acc=lambda t: ACC+16*t, sh_regs=[40, 44], pv_regs=[16, 20, 24, 28, 32, 36],
                 sh_reads=lambda s, reg: b128(reg, 6, ((s//4) % 3)*16384 + (s % 4)*1024), pv_reads=pv_reads, swap=False, sb=36)
    a(f"s_lshl_b32 s72, s{S_RB}, 2")
    a(f"s_add_u32 s72, s72, s{S_WAVE}")
    a("s_mul_i32 s72, s72, 98304")
    a(f"s_mul_i32 s73, s{S_CG}, 6144")
    a("s_add_u32 s72, s72, s73")
    a.nop(8)
    for T in range(6):
        g = ACC + 16*T; u = g + 8
        for i in range(8): a(f"v_mul_f32 v{g+i}, {fl(-LOG2E)}, v{g+i}")
        for i in range(8): a(f"v_exp_f32 v{g+i}, v{g+i}")
        for i in range(8): a(f"v_add_f32 v{g+i}, 1.0, v{g+i}")
        for i in range(8): a(f"v_rcp_f32 v{g+i}, v{g+i}")
        for i in range(8): a(f"v_mul_f32 v{g+i}, v{g+i}, v{u+i}")
        p = 16 + 4*(T % 4)
        for j in range(4): a(f"v_cvt_pk_bf16_f32 v{p+j}, v{g+2*j}, v{g+2*j+1}")
        a(f"s_add_u32 s73, s72, {T*1024}")
        a(f"buffer_store_dwordx4 v[{p}:{p+3}], v1, s[{SRD_E1}:{SRD_E1+3}], s73 offen{LSC()}")
    a.label(L_fin)
    stamp(a, 41)
    a("s_waitcnt vmcnt(0)")
    a("s_barrier")
    a(f"s_lshl_b32 s71, s{S_RB}, 4")
    a(f"s_add_u32 s71, s71, s{S_CG}")
    signal(a, 4, 71, local=True)
    stamp(a, 42)
```
